```python
import torch

def _softmax(x, axis=-1):
    return torch.softmax(x, dim=axis)
def _gelu(x):
    return torch.nn.functional.gelu(x, approximate="tanh")
def _silu(x):
    return torch.nn.functional.silu(x)
def _sigmoid(x):
    return torch.sigmoid(x)
def _layernorm(x, axis=-1, eps=1e-5):
    m = x.mean(dim=axis, keepdim=True)
    v = x.var(dim=axis, keepdim=True, unbiased=False)
    return (x - m) / torch.sqrt(v + eps)
def _scatter_add(tgt, idx, src, axis=0):
    return tgt.clone().index_add_(axis, idx, src)
def _segment_sum(src, seg, n):
    out = torch.zeros((n,) + src.shape[1:], dtype=src.dtype)
    return out.index_add_(0, seg, src)
def _pad(x, pw):
    flat = tuple(v for pair in reversed(pw) for v in pair)
    return torch.nn.functional.pad(x, flat)

kernel_name = 'parallel_sum__grouped_kv_mqa__dense_activation_gelu__prompt'

def setup_inputs():

    _w = (lambda a: (lambda t: t.to(torch.bfloat16) if t.is_floating_point() else t)(torch.as_tensor(a)))
    def _A_setup():
        B, S, D, H = 1, 2048, 512, 32
        Dh = D // H
        return {
            "x": _w((lambda *s: torch.randn(*s, dtype=torch.bfloat16) * 0.05)(B, S, D)),
            "wq": _w((lambda *s: torch.randn(*s, dtype=torch.bfloat16) * 0.05)(D, H * Dh)),
            "wk": _w((lambda *s: torch.randn(*s, dtype=torch.bfloat16) * 0.05)(D, Dh)),
            "wv": _w((lambda *s: torch.randn(*s, dtype=torch.bfloat16) * 0.05)(D, Dh)),
            "wo": _w((lambda *s: torch.randn(*s, dtype=torch.bfloat16) * 0.05)(H * Dh, D)),
        }
    _A_in = _A_setup()

    def _B_setup():
        B, S, D, F = 1, 2048, 512, 1376
        return {
            "x": _w((lambda *s: torch.randn(*s, dtype=torch.bfloat16) * 0.05)(B, S, D)),
            "w1": _w((lambda *s: torch.randn(*s, dtype=torch.bfloat16) * 0.8)(D, F) * (D ** -0.5)),
            "b1": _w((lambda *s: torch.randn(*s, dtype=torch.bfloat16) * 12.8)(F) * 0.01),
            "w2": _w((lambda *s: torch.randn(*s, dtype=torch.bfloat16) * 0.8)(F, D) * (F ** -0.5)),
            "b2": _w((lambda *s: torch.randn(*s, dtype=torch.bfloat16) * 12.8)(D) * 0.01),
        }
    _B_in = _B_setup()

    return {
        "A_x": _A_in["x"],
        "A_wq": _A_in["wq"],
        "A_wk": _A_in["wk"],
        "A_wv": _A_in["wv"],
        "A_wo": _A_in["wo"],
        "B_x": _B_in["x"],
        "B_w1": _B_in["w1"],
        "B_b1": _B_in["b1"],
        "B_w2": _B_in["w2"],
        "B_b2": _B_in["b2"],
    }

def reference(A_x, A_wq, A_wk, A_wv, A_wo, B_x, B_w1, B_b1, B_w2, B_b2):
    def _A_ref(x, wq, wk, wv, wo):
        B, S, D = x.shape
        H = 32
        Dh = D // H
        q = (lambda x, *d: x.permute(*d))((x @ wq).reshape(B, S, H, Dh), 0, 2, 1, 3)
        k = x @ wk
        v = x @ wv
        scores = torch.einsum("bhqd,bkd->bhqk", q, k) * (Dh ** -0.5)
        p = _softmax(scores, axis=-1)
        o = torch.einsum("bhqk,bkd->bhqd", p, v)
        return (lambda x, *d: x.permute(*d))(o, 0, 2, 1, 3).reshape(B, S, H * Dh) @ wo

    def _B_ref(x, w1, b1, w2, b2):
        h = torch.einsum("bsd,df->bsf", x, w1) + b1
        h = _gelu(h)
        return torch.einsum("bsf,fd->bsd", h, w2) + b2

    x = A_x
    xn = _layernorm(x, axis=-1)
    return x + _A_ref(xn, A_wq, A_wk, A_wv, A_wo) + _B_ref(xn, B_w1, B_b1, B_w2, B_b2)
```

```python
import re

TRANS = ("v_exp_f32", "v_log_f32", "v_rcp_f32", "v_rsq_f32", "v_sqrt_f32", "v_sin_f32", "v_cos_f32",
         "v_exp_f16", "v_rcp_f16", "v_rcp_iflag_f32")

def parse_reg(tok):
    tok = tok.strip()
    neg = False
    if tok.startswith("-"):
        tok = tok[1:]
    if tok.startswith("abs(") and tok.endswith(")"):
        tok = tok[4:-1]
    if tok.startswith("|") and tok.endswith("|"):
        tok = tok[1:-1]
    m = re.fullmatch(r"([vsa])(\d+)", tok)
    if m:
        return [f"{m.group(1)}{m.group(2)}"]
    m = re.fullmatch(r"([vsa])\[(\d+):(\d+)\]", tok)
    if m:
        return [f"{m.group(1)}{i}" for i in range(int(m.group(2)), int(m.group(3)) + 1)]
    if tok in ("vcc", "exec"):
        return [tok + "_lo", tok + "_hi"]
    if tok in ("vcc_lo", "vcc_hi", "exec_lo", "exec_hi", "m0", "scc"):
        return [tok]
    return []

class Ins:
    __slots__ = ("text", "op", "rd", "wr", "cls", "passes", "srcA", "srcB", "srcC", "dpp", "wide_store", "lds_dma", "ops")
    def __init__(self, text):
        self.text = text
        t = text.split(";")[0].strip()
        parts = t.split(None, 1)
        self.op = op = parts[0]
        rest = parts[1] if len(parts) > 1 else ""
        ops = []
        depth = 0; cur = ""
        for ch in rest:
            if ch == "[": depth += 1
            if ch == "]": depth -= 1
            if ch == "," and depth == 0:
                ops.append(cur.strip()); cur = ""
            else:
                cur += ch
        if cur.strip(): ops.append(cur.strip())
        mods = ""
        if ops:
            last = ops[-1].split(None, 1)
            if len(last) > 1:
                ops[-1] = last[0]; mods = last[1]
        self.ops = ops
        R = [parse_reg(o) for o in ops]
        self.rd = set(); self.wr = set(); self.passes = 0
        self.srcA = self.srcB = self.srcC = ()
        self.dpp = ("_dpp" in op) or ("row_" in mods) or ("quad_perm" in mods)
        self.wide_store = False; self.lds_dma = False
        allr = lambda lst: set(r for x in lst for r in x)
        if op.startswith("v_mfma"):
            self.cls = "mfma"
            self.passes = 8 if "32x32" in op else 4
            self.wr = set(R[0]); self.srcA = tuple(R[1]); self.srcB = tuple(R[2]); self.srcC = tuple(R[3])
            self.rd = allr(R[1:]) | {"exec_lo", "exec_hi"}
        elif op.startswith("v_"):
            self.cls = "trans" if op.replace("_e32", "").replace("_e64", "") in TRANS else ("dot" if op.startswith("v_dot") else "valu")
            if op.startswith("v_cmp"):
                self.wr = set(R[0]); self.rd = allr(R[1:])
                if op.startswith("v_cmpx"): self.wr |= {"exec_lo", "exec_hi"}
            elif op.startswith("v_permlane") and "swap" in op:
                self.wr = allr(R[:2]); self.rd = allr(R[:2]); self.cls = "permlane"
            elif op.startswith(("v_add_co", "v_sub_co", "v_addc_co", "v_subb_co", "v_subrev_co")):
                self.wr = allr(R[:2]); self.rd = allr(R[2:])
            elif op.startswith(("v_readfirstlane", "v_readlane")):
                self.wr = set(R[0]); self.rd = allr(R[1:]); self.cls = "readlane"
            else:
                self.wr = set(R[0]); self.rd = allr(R[1:])
                if op.startswith(("v_fmac", "v_dot2c", "v_writelane")) or self.dpp:
                    self.rd |= set(R[0])
                if op.startswith("v_cndmask") and len(ops) == 3:
                    self.rd |= {"vcc_lo", "vcc_hi"}
            self.rd |= {"exec_lo", "exec_hi"}
        elif op.startswith("ds_"):
            self.cls = "ds"
            if op.startswith(("ds_read", "ds_bpermute", "ds_permute", "ds_swizzle")) or "_rtn" in op:
                self.wr = set(R[0]); self.rd = allr(R[1:])
            else:
                self.rd = allr(R)
            self.rd |= {"exec_lo", "exec_hi"}
        elif op.startswith(("buffer_", "global_")):
            self.cls = "vmem"
            toks = mods.split()
            if "lds" in toks:
                self.lds_dma = True; self.rd = allr(R) | {"m0"}
            elif "load" in op:
                self.wr = set(R[0]); self.rd = allr(R[1:])
            elif "atomic" in op:
                self.rd = allr(R)
                if "sc0" in toks: self.wr = set(R[0])
            else:
                self.rd = allr(R)
                if "x4" in op or "x3" in op:
                    self.wide_store = True
                    self.srcA = tuple(R[0]) if op.startswith("buffer_") else tuple(R[1])
            self.rd |= {"exec_lo", "exec_hi"}
        elif op.startswith(("s_load", "s_buffer_load", "s_memtime", "s_memrealtime")):
            self.cls = "smem"
            self.wr = set(R[0]); self.rd = allr(R[1:])
        elif op.startswith("s_"):
            self.cls = "salu"
            if op.startswith(("s_cmp", "s_bitcmp")):
                self.rd = allr(R); self.wr = {"scc"}
            elif op.startswith(("s_cbranch", "s_branch", "s_nop", "s_waitcnt", "s_barrier", "s_endpgm", "s_setprio", "s_sleep")):
                self.rd = allr(R)
            elif "saveexec" in op:
                self.wr = set(R[0]) | {"exec_lo", "exec_hi", "scc"}; self.rd = allr(R[1:]) | {"exec_lo", "exec_hi"}
            else:
                self.wr = set(R[0]) | {"scc"}; self.rd = allr(R[1:])
                if op.startswith(("s_mov", "s_movk", "s_cselect", "s_mul")): self.wr.discard("scc")
                if op.startswith(("s_addk", "s_mulk", "s_bitset")): self.rd |= set(R[0])
                if op.startswith("s_bitset"): self.wr.discard("scc")
        else:
            raise ValueError("unknown instr " + text)

    def is_valu(self):
        return self.cls in ("valu", "trans", "dot", "permlane", "readlane")

class Asm:
    def __init__(self):
        self.out = []
        self.hist = []
        self.slot = 0
        self.vm = []
        self.lg = []
        self.smem_pending = set()
        self.smem_out = False
        self.nops = 0
        self.auto_wait = True

    def raw(self, s):
        self.out.append(s)
    def comment(self, s):
        self.out.append("    ; " + s)
    def label(self, name, nop=True):
        self.out.append(name + ":")
    def save(self):
        return (list(self.hist), self.slot, [dict(o) for o in self.vm], [dict(o) for o in self.lg], set(self.smem_pending), self.smem_out)
    def restore(self, st):
        self.hist = list(st[0]); self.slot = st[1]; self.vm = [dict(o) for o in st[2]]; self.lg = [dict(o) for o in st[3]]
        self.smem_pending = set(st[4]); self.smem_out = st[5]
    def flush_state(self, pad=0):
        if pad:
            self._emit_nop(pad)
        self.hist = []

    def _emit_nop(self, n):
        while n > 0:
            k = min(n, 16)
            self.out.append(f"    s_nop {k-1}")
            self.slot += k; self.nops += k
            n -= k

    def _need(self, ins):
        need = 0
        vregs = lambda s: set(r for r in s if r[0] in "va" and r[1:].isdigit())
        sregs = lambda s: set(r for r in s if (r[0] == "s" and r[1:].isdigit()) or r.startswith("vcc"))
        for (p, ps) in self.hist:
            dist = self.slot - ps - 1
            req = 0
            pw_v = vregs(p.wr)
            if p.is_valu():
                if ins.cls == "mfma" and pw_v & set(ins.srcA + ins.srcB + ins.srcC): req = max(req, 2)
                if ins.dpp and ins.is_valu() and pw_v & ins.rd: req = max(req, 2)
                if ins.cls == "permlane" and pw_v & ins.rd: req = max(req, 2)
                if ins.cls == "readlane" and pw_v & ins.rd: req = max(req, 1)
                if p.cls == "trans" and ins.is_valu() and ins.cls != "trans" and pw_v & (ins.rd): req = max(req, 1)
                if p.cls == "trans" and ins.cls == "trans" and pw_v & ins.rd: req = max(req, 1)
                if p.cls == "trans" and ins.cls in ("ds", "vmem") and pw_v & ins.rd: req = max(req, 1)
                if p.cls == "dot" and pw_v & (ins.rd | ins.wr):
                    if ins.op == p.op:
                        ab = set(parse_reg(ins.ops[1]) + parse_reg(ins.ops[2]))
                        if pw_v & ab: req = max(req, 3)
                    else:
                        req = max(req, 3)
                pw_s = sregs(p.wr)
                if pw_s:
                    if ins.is_valu() and pw_s & ins.rd: req = max(req, 4 if ins.cls == "readlane" else 2)
                    if ins.cls == "mfma" and pw_s & ins.rd: req = max(req, 2)
                    if ins.cls in ("vmem",) and pw_s & ins.rd: req = max(req, 5)
                    if ins.cls in ("salu", "smem") and pw_s & ins.rd: req = max(req, 1)
                if "exec_lo" in p.wr:
                    if ins.cls == "mfma": req = max(req, 4)
                    if ins.dpp: req = max(req, 5)
                    if ins.cls in ("permlane", "readlane"): req = max(req, 4)
            if p.cls == "mfma":
                D = p.wr
                big = p.passes == 8
                if ins.cls == "mfma":
                    if D & set(ins.srcA + ins.srcB): req = max(req, 12 if big else 8)
                    if D & set(ins.srcC):
                        if tuple(sorted(D, key=lambda r: int(r[1:]))) == ins.srcC and ins.passes == p.passes:
                            pass
                        else:
                            req = max(req, 10 if big else 6)
                    elif D & ins.wr:
                        req = max(req, 10 if big else 6)
                elif ins.is_valu() or ins.cls in ("ds", "vmem"):
                    if D & (ins.rd | ins.wr): req = max(req, 12 if big else 8)
                if (ins.is_valu() or ins.cls in ("ds", "vmem")) and set(p.srcC) & ins.wr:
                    req = max(req, 7 if big else 3)
            if p.cls == "salu" and "m0" in p.wr and "m0" in ins.rd: req = max(req, 1)
            if p.wide_store and set(p.srcA) & ins.wr: req = max(req, 2 if ins.is_valu() else 1)
            if req > dist: need = max(need, req - dist)
        return need

    def _waits(self, ins):
        touched = ins.rd | ins.wr
        vmN = None; lgN = None
        for i, o in enumerate(self.vm):
            if o["regs"] & touched:
                vmN = len(self.vm) - 1 - i
        for i, o in enumerate(self.lg):
            if o["regs"] & touched:
                lgN = len(self.lg) - 1 - i
        if self.smem_pending & touched:
            lgN = 0
        if lgN is not None and self.smem_out:
            lgN = 0
        self.waitcnt(vmN, lgN)

    def waitcnt(self, vm=None, lg=None):
        parts = []
        if vm is not None:
            vm = min(vm, 63)
            if len(self.vm) > vm:
                parts.append(f"vmcnt({vm})")
                self.vm = self.vm[len(self.vm) - vm:] if vm else []
        if lg is not None:
            lg = min(lg, 15)
            if len(self.lg) > lg or (lg == 0 and self.smem_out):
                parts.append(f"lgkmcnt({lg})")
                self.lg = self.lg[len(self.lg) - lg:] if lg else []
                if lg == 0:
                    self.smem_pending = set(); self.smem_out = False
        if parts:
            self.out.append("    s_waitcnt " + " ".join(parts))
            self.slot += 1

    def wait_vm_tag(self, tag):
        idx = None
        for i, o in enumerate(self.vm):
            if o["tag"] == tag: idx = i
        if idx is not None:
            self.waitcnt(vm=len(self.vm) - 1 - idx)
    def wait_lg_tag(self, tag):
        idx = None
        for i, o in enumerate(self.lg):
            if o["tag"] == tag: idx = i
        if idx is not None:
            self.waitcnt(lg=0 if self.smem_out else len(self.lg) - 1 - idx)
    def wait_all(self):
        self.waitcnt(0, 0)

    def I(self, text, tag=None):
        ins = Ins(text)
        if ins.op == "s_waitcnt":
            raise ValueError("use waitcnt()")
        if self.auto_wait:
            self._waits(ins)
        n = self._need(ins)
        if n: self._emit_nop(n)
        self.out.append("    " + text)
        if ins.op == "s_nop":
            self.slot += int(ins.ops[0]) + 1
        else:
            self.slot += 1
        self.hist.append((ins, self.slot - 1))
        if len(self.hist) > 24: self.hist.pop(0)
        if ins.cls == "vmem":
            self.vm.append({"regs": set(ins.wr), "tag": tag})
        elif ins.cls == "ds":
            self.lg.append({"regs": set(ins.wr), "tag": tag})
        elif ins.cls == "smem":
            self.smem_pending |= ins.wr; self.smem_out = True
        return ins

    def force_wait(self, vm=None, lg=None):
        parts = []
        if vm is not None:
            parts.append(f"vmcnt({vm})"); self.vm = self.vm[len(self.vm) - vm:] if (vm and len(self.vm) > vm) else ([] if not vm else self.vm)
        if lg is not None:
            parts.append(f"lgkmcnt({lg})"); self.lg = self.lg[len(self.lg) - lg:] if (lg and len(self.lg) > lg) else ([] if not lg else self.lg)
            if lg == 0:
                self.smem_pending = set(); self.smem_out = False
        self.out.append("    s_waitcnt " + " ".join(parts)); self.slot += 1

    def barrier(self):
        self.force_wait(lg=0)
        self.I("s_barrier")

    def text(self):
        return "\n".join(self.out) + "\n"
```

```python
import sys, math, struct
sys.path.insert(0, "gen")
from asmlib import Asm

NAME = "parallel_sum__grouped_kv_mqa__dense_activation_gelu__prompt"
OPT = dict(stop=99, stamps=False)
for a_ in sys.argv[1:]:
    if "=" in a_:
        k_, v_ = a_.split("="); OPT[k_] = int(v_)

def fbits(x): return "0x%08x" % struct.unpack("<I", struct.pack("<f", x))[0]

WS_EPOCH = 0
WS_KVFLAG = 0x1000
WS_HFLAG = 0x2000
WS_K = 0x10000
WS_V = 0x20000
WS_H = 0x100000
H_STRIDE = 0x2C000
WS_O = 0x800000
WS_DBG = 0xA00000
WS_SIZE = 0x1000000
XC = 0; XCS = 1040
RING2 = 66560
KL = 0; VL = 65536; VS = 272
QX = 135168
W2R = 143360
MISC = 159744
RSTD = MISC; KMAX = MISC + 256
LDS_BYTES = 163840
SX, SW, SKVW, SWS, SH, SO, SW2, SWO, SB1, SB2, SOUT = 44, 48, 52, 56, 60, 64, 68, 72, 76, 80, 84
def srd(n): return f"s[{n}:{n+3}]"
sW, sG, sC, sTAG, sKSTR, sOFF, sT0, sT1, sT2, sTILE = 3, 4, 5, 6, 7, 8, 16, 17, 18, 12
sONES, sSELLO, sSELHI, sCNT = 13, 14, 15, 42
sC0, sC1 = 88, 90
sTB, sKIND, sFT, sTT, sKH, sNT2, sTT2 = 92, 93, 94, 95, 96, 97, 98
sEX = 100

a = Asm(); I = a.I
def vr(b, n): return f"v[{b}:{b+n-1}]"
lblc = [0]
def newlabel(p):
    lblc[0] += 1
    return f"L_{p}_{lblc[0]}"

def stamp(idx):
    if not OPT["stamps"]: return
    a.waitcnt(lg=0)
    I("s_memtime s[98:99]".replace("98:99", "100:101"))
    a.waitcnt(lg=0)
    I("v_mov_b32 v250, s100")
    I(f"s_lshl_b32 s100, s2, 3"); I(f"s_add_u32 s100, s100, s{sW}"); I("s_lshl_b32 s100, s100, 6")
    I(f"s_add_u32 s100, s100, {WS_DBG + 4*idx}")
    I("v_mov_b32 v251, s100")
    I(f"buffer_store_dword v250, v251, {srd(SWS)}, 0 offen")

def mk_srd(n, lo, hi, nbytes):
    I(f"s_mov_b32 s{n}, s{lo}"); I(f"s_mov_b32 s{n+1}, s{hi}")
    I(f"s_mov_b32 s{n+2}, {nbytes}"); I(f"s_mov_b32 s{n+3}, 0x00020000")

I("s_cmp_ge_u32 s2, 256")
I("s_cbranch_scc1 L_end")
I("s_load_dwordx16 s[16:31], s[0:1], 0")
I("s_load_dwordx8 s[32:39], s[0:1], 64")
I("s_load_dwordx2 s[40:41], s[0:1], 96")
I("v_lshrrev_b32 v3, 6, v0")
I("v_and_b32 v1, 63, v0")
I(f"v_readfirstlane_b32 s{sW}, v3")
I("v_lshlrev_b32 v2, 4, v1")
I("s_and_b32 s9, s2, 7"); I("s_lshl_b32 s9, s9, 2"); I("s_bfe_u32 s10, s2, 0x20003"); I(f"s_or_b32 s{sG}, s9, s10")
I(f"s_lshr_b32 s{sC}, s2, 5")
I(f"s_mov_b32 s{sONES}, 0x3f803f80"); I(f"s_mov_b32 s{sSELLO}, 0x00003f80"); I(f"s_mov_b32 s{sSELHI}, 0x3f800000")
I(f"s_and_b32 s9, s{sC}, 3"); I(f"s_lshl_b32 s10, s{sG}, 2"); I(f"s_add_u32 s{sTB}, s9, s10"); I(f"s_lshr_b32 s{sKIND}, s{sC}, 2")
I(f"s_bfe_u32 s{sFT}, s{sW}, 0x10001"); I(f"s_and_b32 s{sTT}, s{sW}, 1"); I(f"s_lshr_b32 s{sKH}, s{sW}, 2")
I(f"s_and_b32 s{sNT2}, s{sW}, 1"); I(f"s_bfe_u32 s{sTT2}, s{sW}, 0x10001")
I("v_lshrrev_b32 v4, 4, v1")
I("v_and_b32 v5, 15, v1")
I(f"s_lshl_b32 s9, s{sW}, 2")
I("v_add_u32 v6, s9, v4")
I(f"s_lshl_b32 s10, s{sG}, 6")
I("v_add_u32 v7, s10, v6")
I("v_lshlrev_b32 v7, 10, v7")
I("v_lshl_add_u32 v7, v5, 4, v7")
I(f"v_mul_u32_u24 v8, {XCS}, v6")
I("v_lshl_add_u32 v8, v5, 4, v8")
I("v_lshlrev_b32 v9, 2, v6")
I(f"v_add_u32 v9, {RSTD}, v9")
mk_srd(SX, 16, 17, 2048*1024)
XR = 32
for s in range(2):
    for i in range(4):
        I(f"buffer_load_dwordx4 {vr(XR+16*s+4*i,4)}, v7, {srd(SX)}, 0 offen offset:{i*256}" if s == 0 else
          f"buffer_load_dwordx4 {vr(XR+16*s+4*i,4)}, v10, {srd(SX)}, 0 offen offset:{i*256}")
    if s == 0:
        I("v_add_u32 v10, 0x8000, v7")
mk_srd(SWS, 40, 41, WS_SIZE)
I(f"s_load_dword s{sTAG}, s[40:41], {WS_EPOCH}")
I(f"s_cmp_eq_u32 s{sKIND}, 0")
I("s_cselect_b32 s9, s20, s22"); I("s_cselect_b32 s10, s21, s23")
mk_srd(SKVW, 9, 10, 16384)
I(f"s_lshl_b32 s9, s{sW}, 11")
I(f"s_add_u32 s10, s9, {W2R}")
I("s_mov_b32 m0, s10")
I(f"buffer_load_dwordx4 v2, {srd(SKVW)}, s9 offen lds", tag="kvw")
I(f"buffer_load_dwordx4 v2, {srd(SKVW)}, s9 offen offset:1024 lds", tag="kvw")
I(f"s_lshl_b32 s9, s{sG}, 16"); I(f"s_add_u32 s9, s9, {WS_O}")
I("s_add_u32 s9, s40, s9"); I("s_addc_u32 s10, s41, 0")
mk_srd(SO, 9, 10, 65536)
sOSLOT = 43
I(f"s_lshl_b32 s9, s{sC}, 2"); I(f"s_lshl_b32 s10, s{sFT}, 1"); I("s_add_u32 s9, s9, s10"); I(f"s_add_u32 s9, s9, s{sKH}")
I("s_lshl_b32 s9, s9, 1"); I(f"s_add_u32 s9, s9, s{sTT}"); I(f"s_lshl_b32 s{sOSLOT}, s9, 10")
for i in range(4): I(f"v_mov_b32 v{12+i}, -1")
I(f"buffer_store_dwordx4 v[12:15], v2, {srd(SO)}, s{sOSLOT} offen sc1", tag="sent")
L_ffn = newlabel("ffnrole"); L_roledone = newlabel("roledone")
I(f"s_mov_b32 s{SW+3}, 0x00020000")
I(f"s_cmp_ge_u32 s{sW}, 2")
I(f"s_cbranch_scc1 {L_ffn}")
I(f"s_mov_b32 s{SW}, s18"); I(f"s_mov_b32 s{SW+1}, s19"); I(f"s_mov_b32 s{SW+2}, {512*1024}")
I(f"s_lshl_b32 s9, s{sC}, 1"); I(f"s_add_u32 s{sTILE}, s9, s{sW}")
I(f"s_mov_b32 s11, 1024")
I(f"s_branch {L_roledone}")
a.label(L_ffn)
I(f"s_mov_b32 s{SW}, s28"); I(f"s_mov_b32 s{SW+1}, s29"); I(f"s_mov_b32 s{SW+2}, {512*2752}")
I(f"s_mul_i32 s9, s{sC}, 5"); I(f"s_min_u32 s10, s{sC}, 3"); I("s_add_u32 s9, s9, s10")
I(f"s_add_u32 s9, s9, s{sW}"); I(f"s_sub_u32 s{sTILE}, s9, 2")
I(f"s_mov_b32 s11, 2752")
I(f"s_cmp_ge_u32 s{sC}, 3"); I("s_cselect_b32 s9, 1, 0"); I(f"s_cmp_eq_u32 s{sW}, 7"); I("s_cselect_b32 s9, s9, 0")
I("s_cmp_eq_u32 s9, 1"); I(f"s_cselect_b32 s{sTILE}, 63, s{sTILE}"); I(f"s_cselect_b32 s{SW+2}, 0, s{SW+2}")
a.label(L_roledone)
a.flush_state()
I(f"s_lshl_b32 s{sKSTR}, s11, 4")
I("v_lshrrev_b32 v11, 2, v1")
I("v_mul_lo_u32 v11, v11, s11")
I("v_and_b32 v16, 3, v1")
I("v_lshl_add_u32 v11, v16, 4, v11")
I(f"s_lshl_b32 s9, s{sTILE}, 6")
I("v_add_u32 v11, s9, v11")
WR = 128
NEARLY = 8
I(f"s_mov_b32 s{sOFF}, 0")
def wload(s):
    I(f"buffer_load_dwordx4 {vr(WR+4*s,4)}, v11, {srd(SW)}, s{sOFF} offen")
    I(f"s_add_u32 s{sOFF}, s{sOFF}, s{sKSTR}")
for s in range(NEARLY): wload(s)
sSWN = 99
I(f"s_mov_b32 s{sSWN}, s{SW+2}")
I(f"s_cmp_eq_u32 s{sW}, 0")
I(f"s_cselect_b32 s{SW+2}, 0, s{SW+2}")
for s in range(NEARLY, 32): wload(s)
I(f"s_mov_b32 s{SW+2}, s{sSWN}")
stamp(0)

T = 64
def dpp_allreduce_add(r, t):
    I(f"v_add_f32_dpp v{t}, v{r}, v{r} row_ror:8 row_mask:0xf bank_mask:0xf")
    I(f"v_add_f32_dpp v{r}, v{t}, v{t} row_ror:4 row_mask:0xf bank_mask:0xf")
    I(f"v_add_f32_dpp v{t}, v{r}, v{r} row_ror:2 row_mask:0xf bank_mask:0xf")
    I(f"v_add_f32_dpp v{r}, v{t}, v{t} row_ror:1 row_mask:0xf bank_mask:0xf")
def ln_set(s):
    X = XR + 16*s
    a0, a1, mu, sq0, sq1 = T, T+1, T+2, T+3, T+4
    I(f"v_dot2_f32_bf16 v{a0}, v{X}, s{sONES}, 0")
    I(f"v_dot2_f32_bf16 v{a1}, v{X+1}, s{sONES}, 0")
    for i in range(2, 16):
        r = a0 if i % 2 == 0 else a1
        I(f"v_dot2_f32_bf16 v{r}, v{X+i}, s{sONES}, v{r}")
    I(f"v_add_f32 v{a0}, v{a0}, v{a1}")
    dpp_allreduce_add(a0, a1)
    I(f"v_mul_f32 v{mu}, {fbits(-1.0/512)}, v{a0}")
    for q in range(4):
        tb = T + 8 + 8*(q % 2)
        for i in range(4):
            I(f"v_dot2_f32_bf16 v{tb+2*i}, v{X+4*q+i}, s{sSELLO}, v{mu}")
            I(f"v_dot2_f32_bf16 v{tb+2*i+1}, v{X+4*q+i}, s{sSELHI}, v{mu}")
        if q > 0:
            pb = T + 8 + 8*((q-1) % 2)
            for i in range(4):
                I(f"v_cvt_pk_bf16_f32 v{X+4*(q-1)+i}, v{pb+2*i}, v{pb+2*i+1}")
            I(f"ds_write_b128 v8, {vr(X+4*(q-1),4)} offset:{s*32*XCS + (q-1)*256}")
    pb = T + 8 + 8*(3 % 2)
    for i in range(4):
        I(f"v_cvt_pk_bf16_f32 v{X+12+i}, v{pb+2*i}, v{pb+2*i+1}")
    I(f"ds_write_b128 v8, {vr(X+12,4)} offset:{s*32*XCS + 3*256}")
    I(f"v_dot2_f32_bf16 v{sq0}, v{X}, v{X}, 0")
    I(f"v_dot2_f32_bf16 v{sq1}, v{X+1}, v{X+1}, 0")
    for i in range(2, 16):
        r = sq0 if i % 2 == 0 else sq1
        I(f"v_dot2_f32_bf16 v{r}, v{X+i}, v{X+i}, v{r}")
    I(f"v_add_f32 v{sq0}, v{sq0}, v{sq1}")
    dpp_allreduce_add(sq0, sq1)
    I(f"v_mov_b32 v{sq1}, {fbits(1e-5)}")
    I(f"v_fmac_f32 v{sq1}, {fbits(1.0/512)}, v{sq0}")
    I(f"v_rsq_f32 v{sq0}, v{sq1}")
    I(f"ds_write_b32 v9, v{sq0} offset:{s*128}")
ln_set(0)
ln_set(1)
I(f"s_mul_i32 s{sTAG}, s{sTAG}, 0x9E3779B1")
I(f"s_add_u32 s{sTAG}, s{sTAG}, 0x7F4A7C15")
a.wait_vm_tag("sent")
a.barrier()
stamp(1)

L_nokv = newlabel("nokv"); L_kvV = newlabel("kvV"); L_kvpub = newlabel("kvpub")
I(f"s_cmp_lg_u32 s{sW}, 0")
I(f"s_cbranch_scc1 {L_nokv}")
vm_others = [dict(o) for o in a.vm]
I(f"s_and_b32 s9, s{sC}, 3"); I("s_lshl_b32 s9, s9, 4")
I("v_add_u32 v12, s9, v5")
I(f"v_mul_u32_u24 v13, {XCS}, v12")
I("v_lshl_add_u32 v13, v4, 4, v13")
I("v_lshrrev_b32 v14, 2, v5")
I("v_lshl_add_u32 v14, v4, 3, v14")
I("v_lshlrev_b32 v14, 5, v14")
I("v_and_b32 v15, 3, v1")
I("v_lshl_add_u32 v14, v15, 3, v14")
I(f"v_add_u32 v14, {W2R}, v14")
KD = 88
def kv_mm(kind):
    for bt in range(4):
        for j in range(4):
            s = 4*bt + j
            b = 32 + 8*j
            I(f"ds_read_b128 {vr(b,4)}, v13 offset:{s*64}")
            I(f"ds_read_b64_tr_b16 {vr(b+4,2)}, v14 offset:{s*1024}")
            I(f"ds_read_b64_tr_b16 {vr(b+6,2)}, v14 offset:{s*1024 + 128}")
        for j in range(4):
            s = 4*bt + j
            b = 32 + 8*j
            c_ = "0" if s == 0 else vr(KD, 4)
            if kind == 0: I(f"v_mfma_f32_16x16x32_bf16 {vr(KD,4)}, {vr(b+4,4)}, {vr(b,4)}, {c_}")
            else:         I(f"v_mfma_f32_16x16x32_bf16 {vr(KD,4)}, {vr(b,4)}, {vr(b+4,4)}, {c_}")
I(f"s_cmp_lg_u32 s{sKIND}, 0")
I(f"s_cbranch_scc1 {L_kvV}")
st_kv = a.save()
I("v_lshlrev_b32 v16, 2, v12"); I(f"v_add_u32 v16, {RSTD}, v16")
I(f"ds_read_b32 v17, v16")
kv_mm(0)
for r in range(4): I(f"v_mul_f32 v{KD+r}, v{KD+r}, v17")
I(f"v_cvt_pk_bf16_f32 v18, v{KD}, v{KD+1}"); I(f"v_cvt_pk_bf16_f32 v19, v{KD+2}, v{KD+3}")
I(f"s_lshr_b32 s9, s{sTB}, 1"); I("s_lshl_b32 s9, s9, 10"); I(f"s_and_b32 s10, s{sTB}, 1"); I("s_lshl_b32 s10, s10, 8")
I("s_add_u32 s9, s9, s10"); I(f"s_add_u32 s9, s9, {WS_K}")
I("v_bfe_u32 v20, v1, 4, 1"); I("v_lshlrev_b32 v20, 9, v20"); I("v_lshl_add_u32 v20, v5, 4, v20")
I("v_lshrrev_b32 v21, 5, v1"); I("v_lshl_add_u32 v20, v21, 3, v20")
I(f"buffer_store_dwordx2 v[18:19], v20, {srd(SWS)}, s9 offen sc1", tag="kvst")
I("v_dot2_f32_bf16 v22, v18, v18, 0"); I("v_dot2_f32_bf16 v22, v19, v19, v22")
I("v_mov_b32 v23, v22"); I("v_permlane32_swap_b32 v22, v23"); I("v_add_f32 v22, v22, v23")
I("v_mov_b32 v23, v22"); I("v_permlane16_swap_b32 v22, v23"); I("v_add_f32 v22, v22, v23")
for ro in (8, 4, 2, 1):
    I(f"v_max_f32_dpp v23, v22, v22 row_ror:{ro} row_mask:0xf bank_mask:0xf"); I("v_mov_b32 v22, v23")
I("v_mov_b32 v25, v22")
I(f"s_branch {L_kvpub}")
a.label(L_kvV); a.restore(st_kv)
I(f"s_and_b32 s9, s{sC}, 3"); I("s_lshl_b32 s9, s9, 6"); I(f"s_add_u32 s9, s9, {RSTD}")
I("v_lshl_add_u32 v16, v4, 4, s9")
I(f"ds_read_b128 v[28:31], v16")
kv_mm(1)
for r in range(4): I(f"v_mul_f32 v{KD+r}, v{KD+r}, v{28+r}")
I(f"v_cvt_pk_bf16_f32 v18, v{KD}, v{KD+1}"); I(f"v_cvt_pk_bf16_f32 v19, v{KD+2}, v{KD+3}")
I(f"s_lshl_b32 s9, s{sTB}, 9"); I(f"s_add_u32 s9, s9, {WS_V}")
I("v_bfe_u32 v20, v1, 4, 1"); I("v_lshlrev_b32 v20, 8, v20"); I("v_lshl_add_u32 v20, v5, 4, v20")
I("v_lshrrev_b32 v21, 5, v1"); I("v_lshl_add_u32 v20, v21, 3, v20")
I(f"buffer_store_dwordx2 v[18:19], v20, {srd(SWS)}, s9 offen sc1", tag="kvst")
I("v_mov_b32 v25, 0")
a.label(L_kvpub); a.flush_state(2)
I(f"s_mul_i32 s{sOFF}, s{sKSTR}, {NEARLY}")
for s in range(NEARLY, 32): wload(s)
I(f"v_mov_b32 v24, s{sTAG}")
I(f"s_lshl_b32 s9, s{sTB}, 1"); I(f"s_add_u32 s9, s9, s{sKIND}"); I("s_lshl_b32 s9, s9, 3"); I(f"s_add_u32 s9, s9, {WS_KVFLAG}")
I("v_mov_b32 v26, 0")
a.wait_vm_tag("kvst")
I("s_mov_b64 exec, 1")
I(f"buffer_store_dwordx2 v[24:25], v26, {srd(SWS)}, s9 offen sc1")
I("s_mov_b64 exec, -1")
a.label(L_nokv); a.flush_state(2); a.vm = vm_others; a.lg = []
stamp(2)

ACC = 96
AF = 64; BF = 72
I(f"s_lshl_b32 s9, s{sW}, 12"); I(f"s_add_u32 s9, s9, {RING2}")
I("v_add_u32 v12, s9, v2")
I("v_and_b32 v15, 3, v1"); I("v_lshlrev_b32 v13, 3, v15")
I("v_bfe_u32 v15, v1, 2, 2"); I("v_lshl_add_u32 v13, v15, 6, v13")
I("v_bfe_u32 v15, v1, 4, 1"); I("v_lshl_add_u32 v13, v15, 5, v13")
I("v_mov_b32 v17, v13")
I("v_lshrrev_b32 v16, 5, v1")
I("v_lshl_add_u32 v13, v16, 9, v13"); I("v_add_u32 v13, s9, v13")
I("v_and_b32 v18, 31, v1")
I(f"v_mul_u32_u24 v14, {XCS}, v18"); I("v_lshl_add_u32 v14, v16, 4, v14")
mk_srd(SB1, 30, 31, 2752)
I(f"s_lshl_b32 s9, s{sTILE}, 6")
I("v_lshl_add_u32 v19, v16, 3, s9")
for q in range(4):
    I(f"buffer_load_dwordx2 {vr(24+2*q,2)}, v19, {srd(SB1)}, 0 offen offset:{16*q}")
I("v_lshlrev_b32 v19, 2, v18"); I(f"v_add_u32 v19, {RSTD}, v19")
I(f"ds_read_b32 v20, v19"); I(f"ds_read_b32 v22, v19 offset:128")
def p2_write(s): I(f"ds_write_b128 v12, {vr(WR+4*s,4)} offset:{(s%4)*1024}")
def p2_read(s):
    ab = AF + 4*(s % 2); bb = BF + 8*(s % 2)
    I(f"ds_read_b64_tr_b16 {vr(ab,2)}, v13 offset:{(s%4)*1024}")
    I(f"ds_read_b64_tr_b16 {vr(ab+2,2)}, v13 offset:{(s%4)*1024+256}")
    I(f"ds_read_b128 {vr(bb,4)}, v14 offset:{s*32}")
    I(f"ds_read_b128 {vr(bb+4,4)}, v14 offset:{32*XCS + s*32}")
def p2_mma(s):
    ab = AF + 4*(s % 2); bb = BF + 8*(s % 2)
    for tt in range(2):
        c_ = "0" if s == 0 else vr(ACC+16*tt, 16)
        I(f"v_mfma_f32_32x32x16_bf16 {vr(ACC+16*tt,16)}, {vr(ab,4)}, {vr(bb+4*tt,4)}, {c_}")
p2_write(0); p2_write(1); p2_read(0)
for s in range(32):
    if s + 2 < 32: p2_write(s + 2)
    if s + 1 < 32: p2_read(s + 1)
    p2_mma(s)
stamp(3)
L_epf = newlabel("epffn"); L_epdone = newlabel("epdone")
I(f"s_mul_i32 s9, s{sG}, {H_STRIDE}"); I(f"s_add_u32 s9, s9, {WS_H}")
I("s_add_u32 s9, s40, s9"); I("s_addc_u32 s10, s41, 0")
mk_srd(SH, 9, 10, 86*2048)
a.waitcnt(vm=0)
I(f"s_cmp_ge_u32 s{sW}, 2")
I(f"s_cbranch_scc1 {L_epf}")
st_ep = a.save()
QS = 0.25 * math.log2(math.e)
I(f"v_mul_f32 v20, {fbits(QS)}, v20"); I(f"v_mul_f32 v22, {fbits(QS)}, v22")
I(f"s_lshl_b32 s9, s{sW}, 12"); I(f"s_add_u32 s9, s9, {QX}")
I("v_add_u32 v19, s9, v2")
for tt in range(2):
    rs = 20 + 2*tt
    for p in range(8):
        r = ACC + 16*tt + 2*p
        I(f"v_pk_mul_f32 {vr(r,2)}, {vr(r,2)}, {vr(rs,2)} op_sel_hi:[1,0]")
    for p in range(8):
        r = ACC + 16*tt + 2*p
        I(f"v_cvt_pk_bf16_f32 v{32+8*tt+p}, v{r}, v{r+1}")
    for x in range(2):
        I(f"ds_write_b128 v19, {vr(32+8*tt+4*x,4)} offset:{(tt*2+x)*1024}")
I(f"s_branch {L_epdone}")
a.label(L_epf); a.restore(st_ep)
C0 = -2.0 * math.sqrt(2.0/math.pi) * math.log2(math.e)
C1 = C0 * 0.044715
I(f"s_mov_b32 s{sC0}, {fbits(C0)}"); I(f"s_mov_b32 s{sC0+1}, {fbits(C0)}")
I(f"s_mov_b32 s{sC1}, {fbits(C1)}"); I(f"s_mov_b32 s{sC1+1}, {fbits(C1)}")
B1 = 32
for q in range(4):
    for d in range(2):
        I(f"v_lshlrev_b32 v{B1+4*q+2*d}, 16, v{24+2*q+d}")
        I(f"v_and_b32 v{B1+4*q+2*d+1}, 0xffff0000, v{24+2*q+d}")
I(f"v_mov_b32 v48, s{sC0}"); I(f"v_mov_b32 v49, s{sC0}")
I(f"s_lshl_b32 s9, s{sTILE}, 12")
def gelu8(r, rs, b, outr):
    t = 52
    for p in range(4): I(f"v_pk_fma_f32 {vr(r+2*p,2)}, {vr(r+2*p,2)}, {vr(rs,2)}, {vr(b+2*p,2)} op_sel_hi:[1,0,1]")
    for p in range(4): I(f"v_pk_mul_f32 {vr(t+2*p,2)}, {vr(r+2*p,2)}, {vr(r+2*p,2)}")
    for p in range(4): I(f"v_pk_fma_f32 {vr(t+2*p,2)}, {vr(t+2*p,2)}, s[{sC1}:{sC1+1}], v[48:49]")
    for p in range(4): I(f"v_pk_mul_f32 {vr(t+2*p,2)}, {vr(t+2*p,2)}, {vr(r+2*p,2)}")
    for i in range(8): I(f"v_exp_f32 v{t+i}, v{t+i}")
    for p in range(4): I(f"v_pk_add_f32 {vr(t+2*p,2)}, {vr(t+2*p,2)}, 1.0 op_sel_hi:[1,0]")
    for i in range(8): I(f"v_rcp_f32 v{t+i}, v{t+i}")
    for p in range(4): I(f"v_pk_mul_f32 {vr(t+2*p,2)}, {vr(t+2*p,2)}, {vr(r+2*p,2)}")
    for p in range(4): I(f"v_cvt_pk_bf16_f32 v{outr+p}, v{t+2*p}, v{t+2*p+1}")
for tt in range(2):
    for u in range(2):
        o_ = 64 + 4*(2*tt+u)
        gelu8(ACC+16*tt+8*u, 20+2*tt, B1+8*u, o_)
        I(f"buffer_store_dwordx4 {vr(o_,4)}, v2, {srd(SH)}, s9 offen offset:{u*2048 + tt*1024} sc1", tag="hst")
a.wait_vm_tag("hst")
I(f"s_lshl_b32 s9, s{sG}, 8"); I(f"s_lshl_b32 s10, s{sTILE}, 2"); I("s_add_u32 s9, s9, s10"); I(f"s_add_u32 s9, s9, {WS_HFLAG}")
I(f"v_mov_b32 v24, s{sTAG}"); I("v_mov_b32 v26, 0")
I("s_mov_b64 exec, 1")
I(f"buffer_store_dword v24, v26, {srd(SWS)}, s9 offen sc1")
I("s_mov_b64 exec, -1")
a.label(L_epdone); a.flush_state(2); a.vm = []; a.lg = []
stamp(4)

def poll(load_fn, check_fn, name):
    L = newlabel(name); Ld = newlabel(name + "ok")
    I(f"s_mov_b32 s{sCNT}, 0x4000")
    a.label(L)
    load_fn()
    a.force_wait(vm=0)
    check_fn()
    I("s_nop 4")
    I(f"s_cbranch_vccz {Ld}")
    I("s_sleep 2")
    I(f"s_sub_u32 s{sCNT}, s{sCNT}, 1")
    I(f"s_cmp_lg_u32 s{sCNT}, 0")
    I(f"s_cbranch_scc1 {L}")
    a.label(Ld)

I("v_lshlrev_b32 v19, 3, v18")
I(f"s_lshl_b32 s9, s{sW}, 8"); I(f"s_add_u32 s9, s9, {WS_KVFLAG}")
poll(lambda: I(f"buffer_load_dwordx2 v[24:25], v19, {srd(SWS)}, s9 offen sc1"),
     lambda: I(f"v_cmp_ne_u32 vcc, s{sTAG}, v24"), "pkv")
stamp(5)
KVS = 128
I(f"s_lshl_b32 s9, s{sW}, 13"); I(f"s_add_u32 s10, s9, {WS_V}"); I(f"s_add_u32 s9, s9, {WS_K}")
I("v_add_u32 v19, 0x1000, v2")
for i in range(8):
    I(f"buffer_load_dwordx4 {vr(KVS+4*i,4)}, {'v2' if i < 4 else 'v19'}, {srd(SWS)}, s9 offen offset:{(i%4)*1024} sc1")
for i in range(8):
    I(f"buffer_load_dwordx4 {vr(KVS+32+4*i,4)}, {'v2' if i < 4 else 'v19'}, {srd(SWS)}, s10 offen offset:{(i%4)*1024} sc1")
for ro in (8, 4, 2, 1):
    I(f"v_max_f32_dpp v26, v25, v25 row_ror:{ro} row_mask:0xf bank_mask:0xf"); I("v_mov_b32 v25, v26")
I("v_mov_b32 v26, v25"); I("v_permlane16_swap_b32 v25, v26"); I("v_max_f32 v25, v25, v26")
I(f"s_lshl_b32 s11, s{sW}, 2"); I(f"s_add_u32 s11, s11, {KMAX}"); I("v_mov_b32 v26, s11")
I(f"ds_write_b32 v26, v25")
I(f"s_lshl_b32 s11, s{sW}, 13"); I("v_add_u32 v24, s11, v2")
I(f"s_mul_i32 s11, s{sW}, {16*2*VS}"); I(f"s_add_u32 s11, s11, {VL}")
I(f"v_mul_u32_u24 v25, {VS}, v4"); I("v_lshl_add_u32 v25, v5, 4, v25"); I("v_add_u32 v25, s11, v25")
I(f"v_mul_u32_u24 v26, {VS}, v18"); I("v_add_u32 v26, s11, v26")
for i in range(4): I(f"v_mov_b32 v{28+i}, s{sONES}")
a.barrier()
I(f"ds_write_b128 v26, v[28:31] offset:256")
QA, QB, KF, V1, V2 = 4, 8, 12, 16, 20
CA, CB, SA, SB, OA, OB = 32, 48, 64, 80, 96, 112
ACC2, A2, B2, XRES, BB2 = 128, 192, 200, 216, 220
vKA, vVA, vTR, vL16h, vH, vJ = 24, 25, 26, 27, 28, 29
I("v_mov_b32 v224, v17"); I("v_mov_b32 v225, v16"); I("v_mov_b32 v226, v18"); I("v_mov_b32 v227, v5"); I("v_mov_b32 v228, v4")
I(f"s_and_b32 s11, s{sW}, 3"); I("s_lshl_b32 s11, s11, 11"); I(f"s_add_u32 s11, s11, {QX}")
I("v_add_u32 v229, s11, v2")
I(f"ds_read_b128 {vr(QA,4)}, v229"); I(f"ds_read_b128 {vr(QB,4)}, v229 offset:1024")
I("v_mov_b32 v230, 0"); I(f"v_mov_b32 v231, {KMAX}")
I(f"ds_read_b128 v[232:235], v231"); I(f"ds_read_b128 v[236:239], v231 offset:16")
for i in range(8): I(f"ds_write_b128 v24, {vr(KVS+4*i,4)} offset:{KL + i*1024}")
for i in range(8): I(f"ds_write_b128 v25, {vr(KVS+32+4*i,4)} offset:{i*4*VS}")
I("v_max3_f32 v232, v232, v233, v234"); I("v_max3_f32 v236, v236, v237, v238"); I("v_max3_f32 v232, v232, v235, v239")
I("v_max_f32 v232, v232, v236")
for (q, t) in ((QA, 240), (QB, 242)):
    I(f"v_dot2_f32_bf16 v{t}, v{q}, v{q}, 0")
    for i in range(1, 4): I(f"v_dot2_f32_bf16 v{t}, v{q+i}, v{q+i}, v{t}")
for t in (240, 242):
    I(f"v_mov_b32 v{t+1}, v{t}"); I(f"v_permlane32_swap_b32 v{t}, v{t+1}"); I(f"v_add_f32 v{t}, v{t}, v{t+1}")
    I(f"v_mul_f32 v{t}, v{t}, v232"); I(f"v_sqrt_f32 v{t}, v{t}")
I("v_max_f32 v244, v240, v242")
a.barrier()
L_noep = newlabel("noep")
I("s_or_b32 s11, s2, s%d" % sW); I("s_cmp_lg_u32 s11, 0"); I(f"s_cbranch_scc1 {L_noep}")
I(f"v_mov_b32 v245, s{sTAG}")
I("s_mov_b64 exec, 1")
I(f"buffer_store_dword v245, v230, {srd(SWS)}, 0 offen offset:{WS_EPOCH} sc1")
I("s_mov_b64 exec, -1")
a.label(L_noep); a.flush_state(2); a.vm = []
L_fast = newlabel("fast"); L_slow = newlabel("slowloop")
I(f"v_cmp_nle_f32 vcc, v244, {fbits(50.0)}".replace(f"v244, {fbits(50.0)}", f"{fbits(50.0)}, v244").replace("nle", "nge"))
I("s_nop 4")
I(f"s_cbranch_vccz {L_fast}")
I(f"v_mov_b32 v240, {fbits(-3.0e38)}"); I(f"v_mov_b32 v242, {fbits(-3.0e38)}")
I("v_mov_b32 v246, v2"); I("s_mov_b32 s11, 64")
a.label(L_slow); a.flush_state(16)
I(f"ds_read_b128 {vr(KF,4)}, v246 offset:{KL}")
I(f"v_mfma_f32_32x32x16_bf16 {vr(SA,16)}, {vr(KF,4)}, {vr(QA,4)}, 0")
I(f"v_mfma_f32_32x32x16_bf16 {vr(SB,16)}, {vr(KF,4)}, {vr(QB,4)}, 0")
I("v_add_u32 v246, 1024, v246")
for (S_, t) in ((SA, 240), (SB, 242)):
    for i in range(8): I(f"v_max3_f32 v{t}, v{t}, v{S_+2*i}, v{S_+2*i+1}")
I("s_sub_u32 s11, s11, 1"); I("s_cmp_lg_u32 s11, 0"); I(f"s_cbranch_scc1 {L_slow}")
for t in (240, 242):
    I(f"v_mov_b32 v{t+1}, v{t}"); I(f"v_permlane32_swap_b32 v{t}, v{t+1}"); I(f"v_max_f32 v{t}, v{t}, v{t+1}")
a.label(L_fast); a.flush_state(16)
for i in range(16):
    I(f"v_sub_f32 v{CA+i}, 0, v240"); I(f"v_sub_f32 v{CB+i}, 0, v242")
stamp(6)

I(f"s_lshl_b32 s11, s{sKH}, 15"); I(f"v_add_u32 v{vKA}, s11, v2")
I(f"s_mul_i32 s11, s{sKH}, {64*2*VS}"); I(f"s_add_u32 s11, s11, {VL}")
I(f"v_min_u32 v{vVA}, 16, v226"); I(f"v_lshlrev_b32 v{vVA}, 4, v{vVA}")
I(f"v_mul_u32_u24 v247, {VS}, v225"); I(f"v_add3_u32 v{vVA}, v{vVA}, v247, s11")
I(f"s_lshl_b32 s11, s{sW}, 11"); I(f"s_add_u32 s{sT0}, s11, {W2R}")
I(f"v_lshl_add_u32 v{vTR}, v225, 8, v224"); I(f"v_add_u32 v{vTR}, s{sT0}, v{vTR}")
vWD = 30
I(f"v_lshrrev_b32 v{vWD}, 2, v226"); I(f"v_lshlrev_b32 v{vWD}, 10, v{vWD}")
I(f"v_lshl_add_u32 v{vWD}, v225, 6, v{vWD}"); I("v_and_b32 v247, 3, v1"); I(f"v_lshl_add_u32 v{vWD}, v247, 4, v{vWD}")
I(f"s_lshl_b32 s11, s{sC}, 7"); I(f"v_add_u32 v{vWD}, s11, v{vWD}")
mk_srd(SW2, 32, 33, 1376*1024)
mk_srd(SWO, 24, 25, 512*1024)
mk_srd(SB2, 34, 35, 1024)
mk_srd(SOUT, 36, 37, 2048*1024)
sW2OFF, sHOFF = sT1, sT2
I(f"s_mul_i32 s{sW2OFF}, s{sW}, {11*16384}")
I(f"s_mul_i32 s{sHOFF}, s{sW}, {11*2048}")
vOUT = 31
I(f"s_lshl_b32 s11, s{sC}, 7"); I(f"s_lshl_b32 s9, s{sNT2}, 6"); I("s_add_u32 s11, s11, s9"); I(f"s_lshl_b32 s9, s{sKH}, 5"); I("s_add_u32 s11, s11, s9")
I(f"v_lshl_add_u32 v247, v225, 4, s11")
I(f"buffer_load_dwordx4 {vr(BB2,4)}, v247, {srd(SB2)}, 0 offen")
I(f"s_lshl_b32 s9, s{sG}, 6"); I(f"s_lshl_b32 s10, s{sTT2}, 5"); I("s_add_u32 s9, s9, s10")
I(f"v_add_u32 v{vOUT}, s9, v226"); I(f"v_lshl_add_u32 v{vOUT}, v{vOUT}, 10, v247")
I(f"buffer_load_dwordx4 {vr(XRES,4)}, v{vOUT}, {srd(SX)}, 0 offen")

def mm(d, x, y, c):
    cs = "0" if c is None else vr(c, 16)
    return f"v_mfma_f32_32x32x16_bf16 {vr(d,16)}, {vr(x,4)}, {vr(y,4)}, {cs}"
def blk(S_, h):
    b = S_ + 8*h
    return [f"v_exp_f32 v{b+i}, v{b+i}" for i in range(8)] + [f"v_cvt_pk_bf16_f32 v{b+i}, v{b+2*i}, v{b+2*i+1}" for i in range(4)]
def rdK(t): return f"ds_read_b128 {vr(KF,4)}, v{vKA} offset:{KL + t*1024}"
def rdV(reg, u): return f"ds_read_b128 {vr(reg,4)}, v{vVA} offset:{u*2*VS}"

def w2_dma(n):
    L = []
    for hf in range(2):
        L.append(("I", f"s_add_u32 m0, s{sT0}, {hf*1024}"))
        L.append(("I", f"buffer_load_dwordx4 v{vWD}, {srd(SW2)}, s{sW2OFF} offen lds", f"w2_{n}"))
        L.append(("I", f"s_add_u32 s{sW2OFF}, s{sW2OFF}, 8192"))
    return L
def h_load(n):
    b = B2 + 8*(n % 2)
    return [("I", f"buffer_load_dwordx4 {vr(b,4)}, v2, {srd(SH)}, s{sHOFF} offen sc1"),
            ("I", f"buffer_load_dwordx4 {vr(b+4,4)}, v2, {srd(SH)}, s{sHOFF} offen offset:1024 sc1"),
            ("I", f"s_add_u32 s{sHOFF}, s{sHOFF}, 2048")]
def w2_tr(n):
    L = [("WV", f"w2_{n}")]
    for nt in range(2):
        L.append(("I", f"ds_read_b64_tr_b16 {vr(A2+4*nt,2)}, v{vTR} offset:{nt*512}", f"tr_{n}"))
        L.append(("I", f"ds_read_b64_tr_b16 {vr(A2+4*nt+2,2)}, v{vTR} offset:{1024+nt*512}", f"tr_{n}"))
    return L
def f2_mm(n, nt, tt):
    d = ACC2 + 16*(2*nt+tt)
    return [("I", mm(d, A2+4*nt, B2+8*(n%2)+4*tt, None if n == 0 else d))]
def hpoll():
    I(f"s_mul_i32 s9, s{sW}, 11"); I("s_lshr_b32 s9, s9, 1")
    I("v_min_u32 v247, 5, v1"); I("v_add_u32 v247, s9, v247"); I("v_min_u32 v247, 42, v247"); I("v_lshlrev_b32 v247, 2, v247")
    I(f"s_lshl_b32 s9, s{sG}, 8"); I(f"s_add_u32 s9, s9, {WS_HFLAG}")
    poll(lambda: I(f"buffer_load_dword v248, v247, {srd(SWS)}, s9 offen sc1"),
         lambda: I(f"v_cmp_ne_u32 vcc, s{sTAG}, v248"), "ph")
WOL = 0
def wo_dma(i):
    return [("I", f"s_add_u32 m0, s{sWOM}, {wo_lds_off(i)}"),
            ("I", f"buffer_load_dwordx4 v{vWD}, {srd(SWO)}, s{sWOOFF} offen lds", "wo"),
            ("I", f"s_add_u32 s{sWOOFF}, s{sWOOFF}, 8192")]
sWOM, sWOOFF = sKSTR, sOFF
WOREG = [0, 32768, VL, VL + 64*2*VS]
def wo_lds_off(i): return i*1024
NSTEP = 32
T0 = OPT.get("t0", 8)
TBAR = 18
extra = {t: {} for t in range(NSTEP + 1)}
def add(t, pos, L): extra[t].setdefault(pos, []).extend(L)
add(T0-3, 20, [("F", hpoll)])
add(T0-3, 21, w2_dma(0)); add(T0-3, 22, h_load(0)); add(T0-2, 22, h_load(1))
for n in range(11):
    t = T0 + 2*n
    add(t, 5, w2_tr(n))
    add(t, 20, f2_mm(n, 0, 0)); add(t, 44, f2_mm(n, 1, 0))
    if n + 1 < 11: add(t, 45, [("WL", f"tr_{n}")] + w2_dma(n+1))
    add(t+1, 20, f2_mm(n, 0, 1)); add(t+1, 44, f2_mm(n, 1, 1))
    if n + 2 < 11: add(t+1, 46, h_load(n+2))
add(TBAR, 47, [("B",)])
for i in range(8): add(TBAR + 1 + i, 30, wo_dma(i))
I(f"s_lshr_b32 s9, s{sW}, 1")
I(f"s_cmp_eq_u32 s9, 1"); I(f"s_cselect_b32 s{sWOM}, {WOREG[1]}, {WOREG[0]}")
I(f"s_cmp_eq_u32 s9, 2"); I(f"s_cselect_b32 s{sWOM}, {WOREG[2]}, s{sWOM}")
I(f"s_cmp_eq_u32 s9, 3"); I(f"s_cselect_b32 s{sWOM}, {WOREG[3]}, s{sWOM}")
I(f"s_and_b32 s9, s{sW}, 1"); I("s_lshl_b32 s9, s9, 13"); I(f"s_add_u32 s{sWOM}, s{sWOM}, s9")
I(f"s_lshl_b32 s{sWOOFF}, s{sW}, 16")

def emit(L):
    for e in L:
        if e[0] == "I": I(e[1], tag=e[2] if len(e) > 2 else None)
        elif e[0] == "WV": a.wait_vm_tag(e[1])
        elif e[0] == "WL": a.wait_lg_tag(e[1])
        elif e[0] == "F": e[1]()
        elif e[0] == "B": a.barrier()
I(rdK(0)); I(rdV(V1, 0))
I(mm(SA, KF, QA, CA))
I("s_nop 7")
for t in range(NSTEP):
    valu = blk(SA, 0) + blk(SA, 1) + blk(SB, 0) + blk(SB, 1)
    ins = {}
    ins[2] = ([("I", mm(OB, V2, SB+8, OB))] if t > 0 else []) + [("I", rdV(V2, 2*t+1))]
    ins[9] = [("I", mm(SB, KF, QB, CB))] + ([("I", rdK(t+1))] if t+1 < NSTEP else [])
    ins[15] = [("I", mm(OA, V1, SA, OA if t > 0 else None))]
    ins[26] = [("I", mm(OA, V2, SA+8, OA))]
    ins[33] = [("I", mm(SA, KF, QA, CA))] if t+1 < NSTEP else []
    ins[39] = [("I", mm(OB, V1, SB, OB if t > 0 else None))] + ([("I", rdV(V1, 2*t+2))] if t+1 < NSTEP else [])
    for p_, L in extra[t].items():
        ins.setdefault(p_, []); ins[p_] = ins[p_] + L
    for i, v in enumerate(valu):
        if i in ins: emit(ins[i])
        I(v)
I(mm(OB, V2, SB+8, OB))
stamp(7)

L_k1 = newlabel("k1"); L_kj = newlabel("kj")
I(f"v_add_u32 v24, s{sT0}, v2")
I(f"s_xor_b32 s10, s{sT0}, 0"); I(f"s_xor_b32 s9, s{sW}, 4"); I("s_lshl_b32 s10, s9, 11"); I(f"s_add_u32 s10, s10, {W2R}"); I("v_add_u32 v25, s10, v2")
I(f"s_lshl_b32 s9, s9, 8"); I(f"s_add_u32 s9, s9, {QX}"); I("v_lshl_add_u32 v29, v1, 2, s9")
I(f"s_lshl_b32 s9, s{sW}, 8"); I(f"s_add_u32 s9, s9, {QX}"); I("v_lshl_add_u32 v28, v1, 2, s9")
a.wait_vm_tag("wo")
I(f"s_cmp_lg_u32 s{sKH}, 0"); I(f"s_cbranch_scc1 {L_k1}")
hs = a.save()
for q in range(2): I(f"ds_write_b128 v24, {vr(OB+4*q,4)} offset:{q*1024}")
I(f"ds_write_b32 v28, v{OB+8}")
I(f"s_branch {L_kj}")
a.label(L_k1); a.restore(hs)
for q in range(2): I(f"ds_write_b128 v24, {vr(OA+4*q,4)} offset:{q*1024}")
I(f"ds_write_b32 v28, v{OA+8}")
for i in range(9): I(f"v_mov_b32 v{OA+i}, v{OB+i}")
a.label(L_kj); a.flush_state(2)
a.barrier()
for q in range(2): I(f"ds_read_b128 {vr(OB+4*q,4)}, v25 offset:{q*1024}")
I(f"ds_read_b32 v{OB+8}, v29")
WOF = 32
I(f"s_mov_b32 s11, {WOREG[3]}")
I(f"s_cmp_eq_u32 s{sKH}, 0")
I(f"s_cselect_b32 s9, {WOREG[0]}, {WOREG[2]}"); I(f"s_cselect_b32 s10, {WOREG[1]}, s11")
I(f"s_lshl_b32 s11, s{sNT2}, 9"); I("s_add_u32 s9, s9, s11"); I("s_add_u32 s10, s10, s11")
I("v_lshl_add_u32 v26, v225, 8, v224"); I("v_add_u32 v27, s10, v26"); I("v_add_u32 v26, s9, v26")
for i in range(9): I(f"v_add_f32 v{OA+i}, v{OA+i}, v{OB+i}")
I(f"v_rcp_f32 v{OA+8}, v{OA+8}")
for p in range(4): I(f"v_pk_mul_f32 {vr(OA+2*p,2)}, {vr(OA+2*p,2)}, {vr(OA+8,2)} op_sel_hi:[1,0]")
for p in range(4): I(f"v_cvt_pk_bf16_f32 v{OB+p}, v{OA+2*p}, v{OA+2*p+1}")
I(f"buffer_store_dwordx4 {vr(OB,4)}, v2, {srd(SO)}, s{sOSLOT} offen sc1")
stamp(8)
for hd in range(16):
    ad = "v26" if hd < 8 else "v27"
    I(f"ds_read_b64_tr_b16 {vr(WOF+4*hd,2)}, {ad} offset:{(hd%8)*2048}")
    I(f"ds_read_b64_tr_b16 {vr(WOF+4*hd+2,2)}, {ad} offset:{(hd%8)*2048+1024}")
a.barrier()
I(f"s_and_b32 s9, s{sW}, 3"); I("s_lshl_b32 s9, s9, 12"); I(f"s_lshl_b32 s10, s{sKH}, 16"); I("s_add_u32 s9, s9, s10")
I("v_add_u32 v24, s9, v2")
for nt in range(2):
    for tt in range(2):
        d = tt*2 + nt
        for q in range(4):
            I(f"ds_write_b128 v24, {vr(ACC2+16*(2*nt+tt)+4*q,4)} offset:{d*16384 + q*1024}")
a.barrier()
I(f"s_lshl_b32 s9, s{sW}, 14"); I("v_add_u32 v24, s9, v2")
RB = 128
for j in range(4):
    for q in range(4):
        I(f"ds_read_b128 {vr(RB+16*j+4*q,4)}, v24 offset:{j*4096 + q*1024}")
FA = 96
for p in range(8):
    I(f"v_pk_add_f32 {vr(RB+2*p,2)}, {vr(RB+2*p,2)}, {vr(RB+16+2*p,2)}")
    I(f"v_pk_add_f32 {vr(RB+32+2*p,2)}, {vr(RB+32+2*p,2)}, {vr(RB+48+2*p,2)}")
for p in range(8):
    I(f"v_pk_add_f32 {vr(FA+2*p,2)}, {vr(RB+2*p,2)}, {vr(RB+32+2*p,2)}")
stamp(9)
OF = 128
I(f"s_lshl_b32 s9, s{sKH}, 15"); I(f"s_lshl_b32 s10, s{sTT2}, 10"); I("s_add_u32 s9, s9, s10")
for k_ in range(1, 8): I(f"v_add_u32 v{111+k_}, {k_*4096}, v2")
def oload():
    for hd in range(16):
        ad = "v2" if hd < 2 else f"v{111 + hd//2}"
        I(f"buffer_load_dwordx4 {vr(OF+4*hd,4)}, {ad}, {srd(SO)}, s9 offen offset:{(hd%2)*2048} sc1")
def ocheck():
    I(f"v_max3_u32 v120, v{OF}, v{OF+1}, v{OF+2}")
    I(f"v_max3_u32 v121, v{OF+3}, v{OF+4}, v{OF+5}")
    for i in range(6, 62, 4):
        I(f"v_max3_u32 v120, v120, v{OF+i}, v{OF+i+1}")
        I(f"v_max3_u32 v121, v121, v{OF+i+2}, v{OF+i+3}")
    I(f"v_max3_u32 v120, v120, v{OF+62}, v{OF+63}")
    I("v_max_u32 v120, v120, v121")
    I("v_cmp_eq_u32 vcc, -1, v120")
poll(oload, ocheck, "po")
stamp(10)
for hd in range(16):
    I(mm(FA, WOF+4*hd, OF+4*hd, FA))
L_k1 = newlabel("r1"); L_kj = newlabel("rj")
I(f"s_lshl_b32 s9, s{sW}, 11"); I(f"s_add_u32 s9, s9, {QX}"); I("v_add_u32 v24, s9, v2")
I(f"s_xor_b32 s10, s{sW}, 4"); I("s_lshl_b32 s10, s10, 11"); I(f"s_add_u32 s10, s10, {QX}"); I("v_add_u32 v25, s10, v2")
for d in range(4):
    I(f"v_lshlrev_b32 v{32+2*d}, 16, v{XRES+d}"); I(f"v_and_b32 v{33+2*d}, 0xffff0000, v{XRES+d}")
    I(f"v_lshlrev_b32 v{40+2*d}, 16, v{BB2+d}"); I(f"v_and_b32 v{41+2*d}, 0xffff0000, v{BB2+d}")
for p in range(4): I(f"v_pk_add_f32 {vr(32+2*p,2)}, {vr(32+2*p,2)}, {vr(40+2*p,2)}")
I(f"s_cmp_lg_u32 s{sKH}, 0"); I(f"s_cbranch_scc1 {L_k1}")
hs = a.save()
for q in range(2): I(f"ds_write_b128 v24, {vr(FA+8+4*q,4)} offset:{q*1024}")
I(f"s_branch {L_kj}")
a.label(L_k1); a.restore(hs)
for q in range(2): I(f"ds_write_b128 v24, {vr(FA+4*q,4)} offset:{q*1024}")
for i in range(8): I(f"v_mov_b32 v{FA+i}, v{FA+8+i}")
a.label(L_kj); a.flush_state(2)
a.barrier()
for q in range(2): I(f"ds_read_b128 {vr(48+4*q,4)}, v25 offset:{q*1024}")
for p in range(4): I(f"v_pk_add_f32 {vr(FA+2*p,2)}, {vr(FA+2*p,2)}, {vr(48+2*p,2)}")
for i in range(4): I(f"v_permlane32_swap_b32 v{FA+i}, v{FA+4+i}")
for p in range(4): I(f"v_pk_add_f32 {vr(FA+2*p,2)}, {vr(FA+2*p,2)}, {vr(32+2*p,2)}")
for p in range(4): I(f"v_cvt_pk_bf16_f32 v{56+p}, v{FA+2*p}, v{FA+2*p+1}")
I(f"buffer_store_dwordx4 v[56:59], v{vOUT}, {srd(SOUT)}, 0 offen")
stamp(11)
a.raw("L_end:")
a.raw("    s_endpgm")

ref = open(f"cdna_kernels/{NAME}.s.ref").read()
head = ref[:ref.index("; Override launch geometry")]
out = head + f"""; Generated by gen/gen.py (hand-written generator).  One workgroup of 8 waves per CU.
; @launch grid=(256,1,1) block=(512,1,1) lds={LDS_BYTES}
.amdgcn_target "amdgcn-amd-amdhsa--gfx950"
.text
.globl {NAME}_kernel
.p2align 8
.type {NAME}_kernel,@function
{NAME}_kernel:
""" + a.text() + f""".section .rodata,"a"
.p2align 6
.amdhsa_kernel {NAME}_kernel
  .amdhsa_next_free_vgpr 256
  .amdhsa_next_free_sgpr 102
  .amdhsa_accum_offset 256
  .amdhsa_group_segment_fixed_size 0
  .amdhsa_kernarg_size 104
  .amdhsa_user_sgpr_count 2
  .amdhsa_user_sgpr_kernarg_segment_ptr 1
  .amdhsa_system_sgpr_workgroup_id_x 1
.end_amdhsa_kernel
"""
path = OPT_OUT if (OPT_OUT := next((x for x in sys.argv[1:] if x.endswith(".s")), None)) else f"cdna_kernels/{NAME}.s"
open(path, "w").write(out)
print("wrote", path, "lines", len(a.out), "nops", a.nops)
```

```python
import sys, math, struct
sys.path.insert(0, "gen")
from asmlib import Asm

NAME = "parallel_sum__grouped_kv_mqa__dense_activation_gelu__prompt"
OPT = dict(stop=99, stamps=False)
for a_ in sys.argv[1:]:
    if "=" in a_:
        k_, v_ = a_.split("="); OPT[k_] = int(v_)

def fbits(x): return "0x%08x" % struct.unpack("<I", struct.pack("<f", x))[0]

WS_EPOCH = 0
WS_KVFLAG = 0x1000
WS_HFLAG = 0x2000
WS_K = 0x10000
WS_V = 0x20000
WS_H = 0x100000
H_STRIDE = 0x2C000
WS_O = 0x800000
WS_DBG = 0xA00000
WS_SIZE = 0x1000000
XC = 0; XCS = 1040
RING2 = 66560
KL = 0; VL = 65536; VS = 272
QX = 135168
W2R = 143360
MISC = 159744
RSTD = MISC; KMAX = MISC + 256
LDS_BYTES = 163840
SX, SW, SKVW, SWS, SH, SO, SW2, SWO, SB1, SB2, SOUT = 44, 48, 52, 56, 60, 64, 68, 72, 76, 80, 84
def srd(n): return f"s[{n}:{n+3}]"
sW, sG, sC, sTAG, sKSTR, sOFF, sT0, sT1, sT2, sTILE = 3, 4, 5, 6, 7, 8, 16, 17, 18, 12
sONES, sSELLO, sSELHI, sCNT = 13, 14, 15, 42
sC0, sC1 = 88, 90
sTB, sKIND, sFT, sTT, sKH, sNT2, sTT2 = 92, 93, 94, 95, 96, 97, 98
sEX = 100

a = Asm(); I = a.I
def vr(b, n): return f"v[{b}:{b+n-1}]"
lblc = [0]
def newlabel(p):
    lblc[0] += 1
    return f"L_{p}_{lblc[0]}"

P4FLAG = [False]
def stamp(idx):
    if not OPT["stamps"]: return
    if OPT.get("astamps", 0) and idx < 7 and not P4FLAG[0]: return
    a.waitcnt(lg=0)
    for k_, op in enumerate(("s_memtime", "s_memrealtime")):
        I(f"{op} s[100:101]")
        a.waitcnt(lg=0)
        I("v_mov_b32 v3, s100")
        I(f"s_lshl_b32 s100, s2, 3"); I(f"s_add_u32 s100, s100, s{sW}"); I("s_lshl_b32 s100, s100, 7")
        I(f"s_add_u32 s100, s100, {WS_DBG + 4*idx + 64*k_}")
        I(f"buffer_store_dword v3, off, {srd(SWS)}, s100")

def mk_srd(n, lo, hi, nbytes):
    I(f"s_mov_b32 s{n}, s{lo}"); I(f"s_mov_b32 s{n+1}, s{hi}")
    I(f"s_mov_b32 s{n+2}, {nbytes}"); I(f"s_mov_b32 s{n+3}, 0x00020000")


NE_OLD = OPT.get("ne_old", 8)
T0 = OPT.get("t0", 8)
TBAR = OPT.get("tbar", 18)
LCNT = MISC + 512
NSLOT = 8
KVPOLL = OPT.get("kvpoll", 12)
I("s_cmp_ge_u32 s2, 256")
I("s_cbranch_scc1 L_end")
if OPT["stamps"]:
    I("s_memrealtime s[26:27]"); I("s_memtime s[38:39]"); a.waitcnt(lg=0); I("s_mov_b32 s19, s26"); I("s_mov_b32 s101, s38")
    I("v_mov_b32 v126, s19"); I("v_mov_b32 v127, s101")
I("s_load_dwordx16 s[16:31], s[0:1], 0")
I("s_load_dwordx8 s[32:39], s[0:1], 64")
I("s_load_dwordx2 s[40:41], s[0:1], 96")
I("v_lshrrev_b32 v3, 6, v0")
I("v_and_b32 v1, 63, v0")
I(f"v_readfirstlane_b32 s{sW}, v3")
I("v_lshlrev_b32 v2, 4, v1")
I("s_and_b32 s9, s2, 7"); I("s_lshl_b32 s9, s9, 2"); I("s_bfe_u32 s10, s2, 0x20003"); I(f"s_or_b32 s{sG}, s9, s10")
I(f"s_lshr_b32 s{sC}, s2, 5")
I("v_lshrrev_b32 v4, 4, v1")
I("v_and_b32 v5, 15, v1")
XR = 32; T = 96
I(f"s_lshl_b32 s9, s{sW}, 2")
I("v_add_u32 v6, s9, v4")
I(f"s_lshl_b32 s10, s{sG}, 6")
I("v_add_u32 v7, s10, v6")
I("v_lshlrev_b32 v7, 10, v7")
I("v_lshl_add_u32 v7, v5, 4, v7")
sBLK = [88, 89, 90, 91]
for k_ in range(4):
    I(f"s_add_u32 s{sBLK[k_]}, s{sC}, {k_}"); I(f"s_and_b32 s{sBLK[k_]}, s{sBLK[k_]}, 3"); I(f"s_lshl_b32 s{sBLK[k_]}, s{sBLK[k_]}, 14")
L_nox = newlabel("nox")
I("v_mov_b32 v12, 0"); I(f"v_mov_b32 v13, {LCNT}")
I("ds_write_b32 v13, v12")
a.barrier()
I(f"s_mov_b32 s{SX+2}, {2048*1024}"); I(f"s_mov_b32 s{SX+3}, 0x00020000")
I(f"s_cmp_ge_u32 s{sW}, 4")
I(f"s_mov_b32 s{SX}, s16"); I(f"s_mov_b32 s{SX+1}, s17")
I(f"s_cbranch_scc1 {L_nox}")
for k_ in range(4):
    for i in range(4):
        I(f"buffer_load_dwordx4 {vr(XR+16*k_+4*i,4)}, v7, {srd(SX)}, s{sBLK[k_]} offen offset:{i*256}")
vm_x = [dict(o) for o in a.vm]
a.label(L_nox); a.vm = []
I(f"s_mov_b32 s{sONES}, 0x3f803f80"); I(f"s_mov_b32 s{sSELLO}, 0x00003f80"); I(f"s_mov_b32 s{sSELHI}, 0x3f800000")
I(f"s_mul_i32 s9, s{sC}, 5"); I(f"s_min_u32 s10, s{sC}, 3"); I("s_add_u32 s9, s9, s10")
I(f"s_sub_u32 s10, s{sW}, 4"); I(f"s_add_u32 s11, s{sW}, 1")
I(f"s_cmp_ge_u32 s{sW}, 4"); I("s_cselect_b32 s10, s10, s11")
I(f"s_cmp_eq_u32 s{sW}, 7"); I("s_cselect_b32 s10, 5, s10")
I(f"s_add_u32 s{sTILE}, s9, s10")
I(f"s_lshl_b32 s9, s{sC}, 1"); I(f"s_add_u32 s9, s9, s{sW}")
I(f"s_cmp_lt_u32 s{sW}, 2"); I(f"s_cselect_b32 s{sTILE}, s9, s{sTILE}")
I("s_mov_b32 s11, 2752"); I("s_cselect_b32 s11, 1024, s11")
I(f"s_mov_b32 s{SW+2}, {512*2752}"); I(f"s_cselect_b32 s{SW+2}, {512*1024}, s{SW+2}")
I(f"s_cselect_b32 s{SW}, s18, s28"); I(f"s_cselect_b32 s{SW+1}, s19, s29")
I(f"s_mov_b32 s{SW+3}, 0x00020000")
I(f"s_cmp_ge_u32 s{sC}, 3"); I("s_cselect_b32 s9, 1, 0"); I(f"s_cmp_eq_u32 s{sW}, 7"); I("s_cselect_b32 s9, s9, 0")
I("s_cmp_eq_u32 s9, 1"); I(f"s_cselect_b32 s{sTILE}, 63, s{sTILE}"); I(f"s_cselect_b32 s{SW+2}, 0, s{SW+2}")
I(f"s_lshl_b32 s{sKSTR}, s11, 4")
I("v_lshrrev_b32 v11, 2, v1")
I("v_mul_lo_u32 v11, v11, s11")
I("v_and_b32 v16, 3, v1")
I("v_lshl_add_u32 v11, v16, 4, v11")
I(f"s_lshl_b32 s9, s{sTILE}, 6")
I("v_add_u32 v11, s9, v11")
sWB = [26, 27, 38, 39]; sRING = 99; sQ = 19
I(f"s_and_b32 s{sQ}, s{sG}, 3")
if OPT.get("noxor", 0): I(f"s_mov_b32 s{sQ}, 0")
I(f"s_lshl_b32 s10, s{sKSTR}, 3")
for b in range(4):
    I(f"s_xor_b32 s9, s{sQ}, {b}"); I(f"s_mul_i32 s{sWB[b]}, s9, s10")
I(f"s_lshl_b32 s{sRING}, s{sW}, 13"); I(f"s_add_u32 s{sRING}, s{sRING}, {RING2}")
def wdma(s):
    if s % 8 == 0: I(f"s_mov_b32 s{sOFF}, s{sWB[s//8]}")
    else: I(f"s_add_u32 s{sOFF}, s{sOFF}, s{sKSTR}")
    I(f"s_add_u32 m0, s{sRING}, {(s % NSLOT)*1024}")
    I(f"buffer_load_dwordx4 v11, {srd(SW)}, s{sOFF} offen lds", tag=f"w_{s}")
L_noearly = newlabel("noearly")
I(f"s_cmp_eq_u32 s{sW}, 7"); I(f"s_cbranch_scc1 {L_noearly}")
I(f"s_cmp_lt_u32 s{sW}, 4"); I(f"s_cbranch_scc1 {L_noearly}")
for s in range(NSLOT): wdma(s)
vm_w = [dict(o) for o in a.vm]
a.label(L_noearly); a.vm = []
mk_srd(SWS, 40, 41, WS_SIZE)
I(f"s_and_b32 s9, s{sC}, 3"); I(f"s_lshl_b32 s10, s{sG}, 2"); I(f"s_add_u32 s{sTB}, s9, s10"); I(f"s_lshr_b32 s{sKIND}, s{sC}, 2")
I(f"s_bfe_u32 s{sFT}, s{sW}, 0x10001"); I(f"s_and_b32 s{sTT}, s{sW}, 1"); I(f"s_lshr_b32 s{sKH}, s{sW}, 2")
I(f"s_and_b32 s{sNT2}, s{sW}, 1"); I(f"s_bfe_u32 s{sTT2}, s{sW}, 0x10001")
I(f"s_lshl_b32 s9, s{sG}, 16"); I(f"s_add_u32 s9, s9, {WS_O}")
I("s_add_u32 s9, s40, s9"); I("s_addc_u32 s10, s41, 0")
mk_srd(SO, 9, 10, 65536)
sOSLOT = 43
I(f"s_lshl_b32 s9, s{sC}, 2"); I(f"s_lshl_b32 s10, s{sFT}, 1"); I("s_add_u32 s9, s9, s10"); I(f"s_add_u32 s9, s9, s{sKH}")
I("s_lshl_b32 s9, s9, 1"); I(f"s_add_u32 s9, s9, s{sTT}"); I(f"s_lshl_b32 s{sOSLOT}, s9, 10")
def early_stamp():
    if OPT["stamps"]:
        I(f"s_lshl_b32 s100, s2, 3"); I(f"s_add_u32 s100, s100, s{sW}"); I("s_lshl_b32 s100, s100, 7")
        I(f"s_add_u32 s100, s100, {WS_DBG + 4*15}")
        I(f"buffer_store_dword v127, off, {srd(SWS)}, s100")
        I(f"buffer_store_dword v126, off, {srd(SWS)}, s100 offset:64")
I(f"s_load_dword s{sTAG}, s[40:41], {WS_EPOCH}")
early_stamp()
stamp(0)
L_kvw = newlabel("kvwave"); L_B = newlabel("barB")
I(f"s_cmp_eq_u32 s{sW}, 7"); I(f"s_cbranch_scc1 {L_kvw}")
I(f"s_cmp_ge_u32 s{sW}, 4"); I(f"s_cbranch_scc1 {L_B}")
st0 = a.save()
a.vm = vm_x

I(f"v_mul_u32_u24 v8, {XCS}, v6")
I("v_lshl_add_u32 v8, v5, 4, v8")
I("v_lshlrev_b32 v9, 2, v6")
I(f"v_add_u32 v9, {RSTD}, v9")
def dpp_allreduce_add(r, t):
    I(f"v_add_f32_dpp v{t}, v{r}, v{r} row_ror:8 row_mask:0xf bank_mask:0xf")
    I(f"v_add_f32_dpp v{r}, v{t}, v{t} row_ror:4 row_mask:0xf bank_mask:0xf")
    I(f"v_add_f32_dpp v{t}, v{r}, v{r} row_ror:2 row_mask:0xf bank_mask:0xf")
    I(f"v_add_f32_dpp v{r}, v{t}, v{t} row_ror:1 row_mask:0xf bank_mask:0xf")
def dpp_allreduce_add2(r, t, r2, t2):
    for ro in (8, 4, 2, 1):
        I(f"v_add_f32_dpp v{t}, v{r}, v{r} row_ror:{ro} row_mask:0xf bank_mask:0xf")
        I(f"v_add_f32_dpp v{t2}, v{r2}, v{r2} row_ror:{ro} row_mask:0xf bank_mask:0xf")
        r, t = t, r; r2, t2 = t2, r2
def ln_sum(k_, a0, a1):
    X = XR + 16*k_
    I(f"v_dot2_f32_bf16 v{a0}, v{X}, s{sONES}, 0")
    I(f"v_dot2_f32_bf16 v{a1}, v{X+1}, s{sONES}, 0")
    for i in range(2, 16):
        r = a0 if i % 2 == 0 else a1
        I(f"v_dot2_f32_bf16 v{r}, v{X+i}, s{sONES}, v{r}")
def ln_centre(k_, mu, ad):
    X = XR + 16*k_
    for q in range(5):
        if q < 4:
            tb = T + 16 + 8*(q % 2)
            for i in range(4):
                I(f"v_dot2_f32_bf16 v{tb+2*i}, v{X+4*q+i}, s{sSELLO}, v{mu}")
                I(f"v_dot2_f32_bf16 v{tb+2*i+1}, v{X+4*q+i}, s{sSELHI}, v{mu}")
        else:
            I(f"v_dot2_f32_bf16 v{T+12}, v{X}, v{X}, 0")
            I(f"v_dot2_f32_bf16 v{T+13}, v{X+1}, v{X+1}, 0")
            I(f"v_dot2_f32_bf16 v{T+12}, v{X+2}, v{X+2}, v{T+12}")
        if q > 0:
            pb = T + 16 + 8*((q-1) % 2)
            for i in range(4):
                I(f"v_cvt_pk_bf16_f32 v{X+4*(q-1)+i}, v{pb+2*i}, v{pb+2*i+1}")
            I(f"ds_write_b128 v{ad}, {vr(X+4*(q-1),4)} offset:{(q-1)*256}")
    for i in range(3, 16):
        r = T+12 if i % 2 == 0 else T+13
        I(f"v_dot2_f32_bf16 v{r}, v{X+i}, v{X+i}, v{r}")
def ln_set(k_, nxt):
    mu, ad, ar = T+2, T+5, T+6
    I(f"s_lshr_b32 s9, s{sBLK[k_]}, 14"); I(f"s_mul_i32 s10, s9, {16*XCS}"); I(f"v_add_u32 v{ad}, s10, v8")
    I(f"s_lshl_b32 s9, s9, 6"); I(f"v_add_u32 v{ar}, s9, v9")
    I(f"v_mul_f32 v{mu}, {fbits(-1.0/512)}, v{T}")
    ln_centre(k_, mu, ad)
    if nxt is not None:
        ln_sum(nxt, T, T+1)
        I(f"v_add_f32 v{T+12}, v{T+12}, v{T+13}")
        I(f"v_add_f32 v{T}, v{T}, v{T+1}")
        dpp_allreduce_add2(T+12, T+13, T, T+1)
    else:
        I(f"v_add_f32 v{T+12}, v{T+12}, v{T+13}")
        dpp_allreduce_add(T+12, T+13)
    I(f"v_mov_b32 v{T+13}, {fbits(1e-5)}")
    I(f"v_fmac_f32 v{T+13}, {fbits(1.0/512)}, v{T+12}")
    I(f"v_rsq_f32 v{T+12}, v{T+13}")
    I(f"ds_write_b32 v{ar}, v{T+12}")
ln_sum(0, T, T+1)
I(f"v_add_f32 v{T}, v{T}, v{T+1}")
dpp_allreduce_add(T, T+1)
ln_set(0, None)
I("v_mov_b32 v12, 1"); I(f"v_mov_b32 v13, {LCNT}")
I("s_mov_b64 exec, 1"); I("ds_add_u32 v13, v12"); I("s_mov_b64 exec, -1")
stamp(1)
ln_sum(1, T, T+1)
I(f"v_add_f32 v{T}, v{T}, v{T+1}")
dpp_allreduce_add(T, T+1)
LNW = OPT.get("lnw", 1)
for k_ in range(1, 4):
    if k_ == LNW:
        for s in range(NSLOT): wdma(s)
    ln_set(k_, k_ + 1 if k_ < 3 else None)
I(f"s_branch {L_B}")

a.label(L_kvw); a.restore(st0)
WR = 128
L_kvV = newlabel("kvV"); L_kvpub = newlabel("kvpub"); L_kp = newlabel("kvpoll"); L_kpd = newlabel("kvpolld")
I(f"s_cmp_eq_u32 s{sKIND}, 0")
I("s_cselect_b32 s9, s20, s22"); I("s_cselect_b32 s10, s21, s23")
mk_srd(SKVW, 9, 10, 16384)
I("v_add_u32 v16, 0x1000, v2"); I("v_add_u32 v17, 0x2000, v2"); I("v_add_u32 v18, 0x3000, v2")
for j in range(4):
    I(f"s_mov_b32 m0, {W2R + j*4096}")
    for i in range(4):
        I(f"buffer_load_dwordx4 {('v2','v16','v17','v18')[j]}, {srd(SKVW)}, 0 offen offset:{i*1024} lds", tag="kvw")
for i in range(4): I(f"v_mov_b32 v{28+i}, -1")
I(f"s_lshl_b32 s9, s{sC}, 13")
for i in range(8):
    I(f"buffer_store_dwordx4 v[28:31], {'v2' if i < 4 else 'v16'}, {srd(SO)}, s9 offen offset:{(i%4)*1024} sc1")
for s in range(NSLOT): wdma(s)
I(f"s_and_b32 s9, s{sC}, 3"); I("s_lshl_b32 s9, s9, 4")
I("v_add_u32 v12, s9, v5")
I(f"v_mul_u32_u24 v13, {XCS}, v12")
I("v_lshl_add_u32 v13, v4, 4, v13")
I("v_lshrrev_b32 v14, 2, v5")
I("v_lshl_add_u32 v14, v4, 3, v14")
I("v_lshlrev_b32 v14, 5, v14")
I("v_and_b32 v15, 3, v1")
I("v_lshl_add_u32 v14, v15, 3, v14")
I(f"v_add_u32 v14, {W2R}, v14")
a.wait_vm_tag("kvw")
for s in range(16):
    I(f"ds_read_b64_tr_b16 {vr(WR+8*s+4,2)}, v14 offset:{s*1024}")
    I(f"ds_read_b64_tr_b16 {vr(WR+8*s+6,2)}, v14 offset:{s*1024+128}")
I(f"v_mov_b32 v19, {LCNT}")
I(f"s_mov_b32 s{sCNT}, 0x100000")
a.label(L_kp)
I("ds_read_b32 v20, v19")
I("v_cmp_gt_u32 vcc, 4, v20")
I("s_nop 4")
I(f"s_cbranch_vccz {L_kpd}")
I(f"s_sub_u32 s{sCNT}, s{sCNT}, 1"); I(f"s_cmp_lg_u32 s{sCNT}, 0"); I(f"s_cbranch_scc1 {L_kp}")
a.label(L_kpd)
stamp(1)
for s in range(16): I(f"ds_read_b128 {vr(WR+8*s,4)}, v13 offset:{s*64}")
KD = 88
def kv_mm(kind):
    for s in range(16):
        b = WR + 8*s
        c_ = "0" if s == 0 else vr(KD, 4)
        if kind == 0: I(f"v_mfma_f32_16x16x32_bf16 {vr(KD,4)}, {vr(b+4,4)}, {vr(b,4)}, {c_}")
        else:         I(f"v_mfma_f32_16x16x32_bf16 {vr(KD,4)}, {vr(b,4)}, {vr(b+4,4)}, {c_}")
I("v_bfe_u32 v20, v1, 4, 1"); I("v_lshrrev_b32 v21, 5, v1")
I(f"s_cmp_lg_u32 s{sKIND}, 0")
I(f"s_cbranch_scc1 {L_kvV}")
st_kv = a.save()
I("v_lshlrev_b32 v16, 2, v12"); I(f"v_add_u32 v16, {RSTD}, v16")
I(f"ds_read_b32 v17, v16")
I(f"s_lshr_b32 s9, s{sTB}, 1"); I("s_lshl_b32 s9, s9, 10"); I(f"s_and_b32 s10, s{sTB}, 1"); I("s_lshl_b32 s10, s10, 8")
I("s_add_u32 s9, s9, s10"); I(f"s_add_u32 s9, s9, {WS_K}")
I("v_lshlrev_b32 v20, 9, v20"); I("v_lshl_add_u32 v20, v5, 4, v20"); I("v_lshl_add_u32 v20, v21, 3, v20")
kv_mm(0)
for r in range(4): I(f"v_mul_f32 v{KD+r}, v{KD+r}, v17")
I(f"v_cvt_pk_bf16_f32 v18, v{KD}, v{KD+1}"); I(f"v_cvt_pk_bf16_f32 v19, v{KD+2}, v{KD+3}")
I(f"buffer_store_dwordx2 v[18:19], v20, {srd(SWS)}, s9 offen sc1", tag="kvst")
I("v_dot2_f32_bf16 v22, v18, v18, 0"); I("v_dot2_f32_bf16 v22, v19, v19, v22")
I("v_mov_b32 v23, v22"); I("v_permlane32_swap_b32 v22, v23"); I("v_add_f32 v22, v22, v23")
I("v_mov_b32 v23, v22"); I("v_permlane16_swap_b32 v22, v23"); I("v_add_f32 v22, v22, v23")
for ro in (8, 4, 2, 1):
    I(f"v_max_f32_dpp v23, v22, v22 row_ror:{ro} row_mask:0xf bank_mask:0xf"); I("v_mov_b32 v22, v23")
I("v_mov_b32 v63, v22")
I(f"s_branch {L_kvpub}")
a.label(L_kvV); a.restore(st_kv)
I(f"s_and_b32 s9, s{sC}, 3"); I("s_lshl_b32 s9, s9, 6"); I(f"s_add_u32 s9, s9, {RSTD}")
I("v_lshl_add_u32 v16, v4, 4, s9")
I(f"ds_read_b128 v[28:31], v16")
I(f"s_lshl_b32 s9, s{sTB}, 9"); I(f"s_add_u32 s9, s9, {WS_V}")
I("v_lshlrev_b32 v20, 8, v20"); I("v_lshl_add_u32 v20, v5, 4, v20"); I("v_lshl_add_u32 v20, v21, 3, v20")
kv_mm(1)
for r in range(4): I(f"v_mul_f32 v{KD+r}, v{KD+r}, v{28+r}")
I(f"v_cvt_pk_bf16_f32 v18, v{KD}, v{KD+1}"); I(f"v_cvt_pk_bf16_f32 v19, v{KD+2}, v{KD+3}")
I(f"buffer_store_dwordx2 v[18:19], v20, {srd(SWS)}, s9 offen sc1", tag="kvst")
I("v_mov_b32 v63, 0")
a.label(L_kvpub); a.flush_state(2)
a.label(L_B); a.flush_state(2); a.lg = []
a.vm = vm_w; a.smem_pending = {f"s{sTAG}"}; a.smem_out = True
stamp(2)
a.barrier()
I(f"s_mul_i32 s{sTAG}, s{sTAG}, 0x9E3779B1")
I(f"s_add_u32 s{sTAG}, s{sTAG}, 0x7F4A7C15")
stamp(3)

ACC = 96
AF = 64; BF = 72
I("v_and_b32 v15, 3, v1"); I("v_lshlrev_b32 v13, 3, v15")
I("v_bfe_u32 v15, v1, 2, 2"); I("v_lshl_add_u32 v13, v15, 6, v13")
I("v_bfe_u32 v15, v1, 4, 1"); I("v_lshl_add_u32 v13, v15, 5, v13")
I("v_mov_b32 v17, v13")
I("v_lshrrev_b32 v16, 5, v1")
I("v_lshl_add_u32 v13, v16, 9, v13"); I(f"v_add_u32 v13, s{sRING}, v13")
I("v_and_b32 v18, 31, v1")
I(f"v_mul_u32_u24 v14, {XCS}, v18"); I("v_lshl_add_u32 v14, v16, 4, v14")
vB = [6, 7, 8, 9]
for b in range(4):
    I(f"s_xor_b32 s9, s{sQ}, {b}"); I("s_lshl_b32 s9, s9, 8"); I(f"v_add_u32 v{vB[b]}, s9, v14")
def p2_read(s):
    ab = AF + 4*(s % 2); bb = BF + 8*(s % 2)
    I(f"ds_read_b128 {vr(bb,4)}, v{vB[s//8]} offset:{(s%8)*32}")
    I(f"ds_read_b128 {vr(bb+4,4)}, v{vB[s//8]} offset:{32*XCS + (s%8)*32}")
    a.wait_vm_tag(f"w_{s}")
    I(f"ds_read_b64_tr_b16 {vr(ab,2)}, v13 offset:{(s%NSLOT)*1024}")
    I(f"ds_read_b64_tr_b16 {vr(ab+2,2)}, v13 offset:{(s%NSLOT)*1024+256}")
def p2_mma(s):
    ab = AF + 4*(s % 2); bb = BF + 8*(s % 2)
    for tt in range(2):
        c_ = "0" if s == 0 else vr(ACC+16*tt, 16)
        I(f"v_mfma_f32_32x32x16_bf16 {vr(ACC+16*tt,16)}, {vr(ab,4)}, {vr(bb+4*tt,4)}, {c_}")

def poll(load_fn, check_fn, name, sleep=2, keep=0):
    L = newlabel(name); Ld = newlabel(name + "ok")
    I(f"s_mov_b32 s{sCNT}, 0x4000")
    a.label(L)
    load_fn()
    a.force_wait(vm=0)
    check_fn()
    I("s_nop 4")
    I(f"s_cbranch_vccz {Ld}")
    if sleep: I(f"s_sleep {sleep}")
    I(f"s_sub_u32 s{sCNT}, s{sCNT}, 1")
    I(f"s_cmp_lg_u32 s{sCNT}, 0")
    I(f"s_cbranch_scc1 {L}")
    a.label(Ld)
KVS = 128
sR = 20
def kv_flag_load():
    I("v_lshlrev_b32 v19, 3, v18")
    I(f"s_lshl_b32 s21, s{sW}, 8"); I(f"s_add_u32 s21, s21, {WS_KVFLAG}")
    I(f"buffer_load_dwordx2 v[60:61], v19, {srd(SWS)}, s21 offen sc1")
def kv_fetch():
    L = newlabel("kvok")
    I(f"v_cmp_ne_u32 vcc, s{sTAG}, v60")
    I("s_nop 4")
    I(f"s_cbranch_vccz {L}")
    st = a.save()
    poll(lambda: I(f"buffer_load_dwordx2 v[60:61], v19, {srd(SWS)}, s21 offen sc1"),
         lambda: I(f"v_cmp_ne_u32 vcc, s{sTAG}, v60"), "pkv")
    a.label(L); a.restore(st)
    I(f"s_add_u32 s{sR}, s{sC}, s{sQ}"); I(f"s_and_b32 s{sR}, s{sR}, 3")
    I(f"s_lshl_b32 s9, s{sW}, 13"); I(f"s_add_u32 s10, s9, {WS_V}"); I(f"s_add_u32 s9, s9, {WS_K}")
    for j in range(4):
        I(f"s_xor_b32 s11, s{sR}, {j}"); I("s_lshl_b32 s11, s11, 11"); I(f"v_add_u32 v{56+j}, s11, v2")
    for j in range(4):
        for i in range(2):
            I(f"buffer_load_dwordx4 {vr(KVS+8*j+4*i,4)}, v{56+j}, {srd(SWS)}, s9 offen offset:{i*1024} sc1")
            I(f"buffer_load_dwordx4 {vr(KVS+32+8*j+4*i,4)}, v{56+j}, {srd(SWS)}, s10 offen offset:{i*1024} sc1")
def kv_publish(nyounger):
    L = newlabel("nopub")
    I(f"s_cmp_lg_u32 s{sW}, 7"); I(f"s_cbranch_scc1 {L}")
    st = a.save()
    a.raw(f"    s_waitcnt vmcnt({nyounger})")
    I(f"v_mov_b32 v62, s{sTAG}")
    I(f"s_lshl_b32 s9, s{sTB}, 1"); I(f"s_add_u32 s9, s9, s{sKIND}"); I("s_lshl_b32 s9, s9, 3"); I(f"s_add_u32 s9, s9, {WS_KVFLAG}")
    I("s_mov_b64 exec, 1")
    I(f"buffer_store_dwordx2 v[62:63], off, {srd(SWS)}, s9 sc1")
    I("s_mov_b64 exec, -1")
    a.label(L); a.restore(st); a.slot += 0
n_after_B = [2 if OPT["stamps"] else 0]
if OPT["stamps"] and not OPT.get("astamps", 0): n_after_B[0] = 4
else: n_after_B[0] = 0
if OPT.get("p2prio", 1):
    L_pp = newlabel("pp")
    I(f"s_and_b32 s9, s{sW}, 6"); I("s_cmp_lg_u32 s9, 4"); I(f"s_cbranch_scc1 {L_pp}"); I("s_setprio 1"); a.label(L_pp)
p2_read(0)
mk_srd(SB1, 30, 31, 2752)
I("v_lshlrev_b32 v19, 2, v18"); I(f"v_add_u32 v19, {RSTD}, v19")
I(f"ds_read_b32 v20, v19"); I(f"ds_read_b32 v22, v19 offset:128")
PUBK = OPT.get("pubk", 1)
for s in range(32):
    if s + 1 < 32: p2_read(s + 1)
    p2_mma(s)
    if s + NSLOT < 32:
        wdma(s + NSLOT); n_after_B[0] += 1
    if s == PUBK: kv_publish(n_after_B[0])
    if s == KVPOLL - 4: kv_flag_load()
    if s == KVPOLL: kv_fetch()
    if s == 27:
        I(f"s_lshl_b32 s9, s{sTILE}, 6")
        I("v_lshl_add_u32 v19, v16, 3, s9")
        for q in range(4):
            I(f"buffer_load_dwordx2 {vr(24+2*q,2)}, v19, {srd(SB1)}, 0 offen offset:{16*q}")
stamp(4)
for ro in (8, 4, 2, 1):
    I(f"v_max_f32_dpp v60, v61, v61 row_ror:{ro} row_mask:0xf bank_mask:0xf"); I("v_mov_b32 v61, v60")
I("v_permlane16_swap_b32 v60, v61"); I("v_max_f32 v61, v60, v61")
I(f"s_lshl_b32 s11, s{sW}, 2"); I(f"s_add_u32 s11, s11, {KMAX}"); I("v_mov_b32 v60, s11")
I(f"ds_write_b32 v60, v61")
I(f"s_mul_i32 s9, s{sG}, {H_STRIDE}"); I(f"s_add_u32 s9, s9, {WS_H}")
I("s_add_u32 s9, s40, s9"); I("s_addc_u32 s10, s41, 0")
mk_srd(SH, 9, 10, 86*2048)
L_epf = newlabel("epffn"); L_epdone = newlabel("epdone")
I(f"s_cmp_ge_u32 s{sW}, 2")
I(f"s_cbranch_scc1 {L_epf}")
st_ep = a.save()
QS = 0.25 * math.log2(math.e)
I(f"v_mul_f32 v20, {fbits(QS)}, v20"); I(f"v_mul_f32 v22, {fbits(QS)}, v22")
I(f"s_lshl_b32 s9, s{sW}, 12"); I(f"s_add_u32 s9, s9, {QX}")
I("v_add_u32 v19, s9, v2")
for tt in range(2):
    rs = 20 + 2*tt
    for p in range(8):
        r = ACC + 16*tt + 2*p
        I(f"v_pk_mul_f32 {vr(r,2)}, {vr(r,2)}, {vr(rs,2)} op_sel_hi:[1,0]")
    for p in range(8):
        r = ACC + 16*tt + 2*p
        I(f"v_cvt_pk_bf16_f32 v{32+8*tt+p}, v{r}, v{r+1}")
    for x in range(2):
        I(f"ds_write_b128 v19, {vr(32+8*tt+4*x,4)} offset:{(tt*2+x)*1024}")
I("s_mov_b32 s9, 0x7fff0000")
for i in range(4): I(f"buffer_store_dwordx4 v[32:35], v2, {srd(SH)}, s9 offen sc1", tag="hst")
vm_q = [dict(o) for o in a.vm]
I(f"s_branch {L_epdone}")
a.label(L_epf); a.restore(st_ep)
C0 = -2.0 * math.sqrt(2.0/math.pi) * math.log2(math.e)
C1 = C0 * 0.044715
I(f"s_mov_b32 s{sC1}, {fbits(C1)}"); I(f"s_mov_b32 s{sC1+1}, {fbits(C1)}")
B1 = 32
for q in range(4):
    for d in range(2):
        I(f"v_lshlrev_b32 v{B1+4*q+2*d}, 16, v{24+2*q+d}")
        I(f"v_and_b32 v{B1+4*q+2*d+1}, 0xffff0000, v{24+2*q+d}")
I(f"v_mov_b32 v48, {fbits(C0)}"); I(f"v_mov_b32 v49, {fbits(C0)}")
I(f"s_lshl_b32 s9, s{sTILE}, 12")
def gelu8(r, rs, b, outr):
    t = 52
    for p in range(4): I(f"v_pk_fma_f32 {vr(r+2*p,2)}, {vr(r+2*p,2)}, {vr(rs,2)}, {vr(b+2*p,2)} op_sel_hi:[1,0,1]")
    for p in range(4): I(f"v_pk_mul_f32 {vr(t+2*p,2)}, {vr(r+2*p,2)}, {vr(r+2*p,2)}")
    for p in range(4): I(f"v_pk_fma_f32 {vr(t+2*p,2)}, {vr(t+2*p,2)}, s[{sC1}:{sC1+1}], v[48:49]")
    for p in range(4): I(f"v_pk_mul_f32 {vr(t+2*p,2)}, {vr(t+2*p,2)}, {vr(r+2*p,2)}")
    for i in range(8): I(f"v_exp_f32 v{t+i}, v{t+i}")
    for p in range(4): I(f"v_pk_add_f32 {vr(t+2*p,2)}, {vr(t+2*p,2)}, 1.0 op_sel_hi:[1,0]")
    for i in range(8): I(f"v_rcp_f32 v{t+i}, v{t+i}")
    for p in range(4): I(f"v_pk_mul_f32 {vr(t+2*p,2)}, {vr(t+2*p,2)}, {vr(r+2*p,2)}")
    for p in range(4): I(f"v_cvt_pk_bf16_f32 v{outr+p}, v{t+2*p}, v{t+2*p+1}")
for tt in range(2):
    for u in range(2):
        o_ = 64 + 4*(2*tt+u)
        gelu8(ACC+16*tt+8*u, 20+2*tt, B1+8*u, o_)
        I(f"buffer_store_dwordx4 {vr(o_,4)}, v2, {srd(SH)}, s9 offen offset:{u*2048 + tt*1024} sc1", tag="hst")
a.label(L_epdone); a.flush_state(2); a.lg = []
a.vm = vm_q
stamp(6)

I(f"s_lshl_b32 s11, s{sW}, 13"); I("v_add_u32 v24, s11, v2")
I(f"s_mul_i32 s11, s{sW}, {16*2*VS}"); I(f"s_add_u32 s11, s11, {VL}")
I(f"v_mul_u32_u24 v25, {VS}, v4"); I("v_lshl_add_u32 v25, v5, 4, v25"); I("v_add_u32 v25, s11, v25")
for j in range(4):
    I(f"s_xor_b32 s9, s{sR}, {j}"); I("s_lshl_b32 s10, s9, 11"); I(f"v_add_u32 v{208+j}, s10, v24")
    I(f"s_mul_i32 s10, s9, {8*VS}"); I(f"v_add_u32 v{212+j}, s10, v25")
I(f"v_mul_u32_u24 v26, {VS}, v18"); I("v_add_u32 v26, s11, v26")
for i in range(4): I(f"v_mov_b32 v{28+i}, s{sONES}")
QA, QB, KF, V1, V2 = 4, 8, 12, 16, 20
CA, CB, SA, SB, OA, OB = 32, 48, 64, 80, 96, 112
ACC2, A2, B2, XRES, BB2 = 192, 128, 136, 160, 164
vKA, vVA, vTR = 24, 25, 26
vLP, vHH, vJJ = 168, 169, 170
I("v_mov_b32 v224, v17"); I("v_mov_b32 v225, v16"); I("v_mov_b32 v226, v18")
I(f"s_and_b32 s11, s{sW}, 3"); I("s_lshl_b32 s11, s11, 11"); I(f"s_add_u32 s11, s11, {QX}")
I("v_add_u32 v229, s11, v2")
I(f"v_mov_b32 v231, {KMAX}")
a.barrier()
I(f"ds_write_b128 v26, v[28:31] offset:256")
I(f"ds_read_b128 {vr(QA,4)}, v229"); I(f"ds_read_b128 {vr(QB,4)}, v229 offset:1024")
I(f"ds_read_b128 v[232:235], v231"); I(f"ds_read_b128 v[236:239], v231 offset:16")
for j in range(4):
    for i in range(2):
        I(f"ds_write_b128 v{208+j}, {vr(KVS+8*j+4*i,4)} offset:{KL + i*1024}")
        I(f"ds_write_b128 v{212+j}, {vr(KVS+32+8*j+4*i,4)} offset:{i*4*VS}")
I("v_max3_f32 v232, v232, v233, v234"); I("v_max3_f32 v236, v236, v237, v238"); I("v_max3_f32 v232, v232, v235, v239")
I("v_max_f32 v232, v232, v236")
for (q, t) in ((QA, 240), (QB, 242)):
    I(f"v_dot2_f32_bf16 v{t}, v{q}, v{q}, 0")
    for i in range(1, 4): I(f"v_dot2_f32_bf16 v{t}, v{q+i}, v{q+i}, v{t}")
for t in (240, 242):
    I(f"v_mov_b32 v{t+1}, v{t}"); I(f"v_permlane32_swap_b32 v{t}, v{t+1}"); I(f"v_add_f32 v{t}, v{t}, v{t+1}")
    I(f"v_mul_f32 v{t}, v{t}, v232"); I(f"v_sqrt_f32 v{t}, v{t}")
I("v_max_f32 v244, v240, v242")
for i in range(16):
    I(f"v_sub_f32 v{CA+i}, 0, v240"); I(f"v_sub_f32 v{CB+i}, 0, v242")
I(f"v_cmp_nge_f32 vcc, {fbits(50.0)}, v244")
I(f"s_lshl_b32 s11, s{sKH}, 15"); I(f"v_add_u32 v227, s11, v2")
I(f"s_mul_i32 s11, s{sKH}, {64*2*VS}"); I(f"s_add_u32 s11, s11, {VL}")
I(f"v_min_u32 v228, 16, v226"); I(f"v_lshlrev_b32 v228, 4, v228")
I(f"v_mul_u32_u24 v247, {VS}, v225"); I(f"v_add3_u32 v228, v228, v247, s11")
if OPT.get("zrows", 1):
    I("v_and_b32 v247, 27, v226"); I("v_cmp_lt_u32 s[20:21], 16, v247")
    I("v_mov_b32 v247, 0x80000"); I("v_cndmask_b32 v228, v228, v247, s[20:21]")
def publish_h():
    L = newlabel("nohf"); L2 = newlabel("noep")
    a.wait_vm_tag("hst")
    vm_keep = [dict(o) for o in a.vm]
    I(f"v_mov_b32 v246, s{sTAG}")
    I("s_mov_b64 exec, 1")
    I(f"s_cmp_lt_u32 s{sW}, 2"); I(f"s_cbranch_scc1 {L}")
    I(f"s_lshl_b32 s9, s{sG}, 8"); I(f"s_lshl_b32 s10, s{sTILE}, 2"); I("s_add_u32 s9, s9, s10"); I(f"s_add_u32 s9, s9, {WS_HFLAG}")
    I(f"buffer_store_dword v246, off, {srd(SWS)}, s9 sc1")
    a.label(L)
    I("s_or_b32 s11, s2, s%d" % sW); I("s_cmp_lg_u32 s11, 0"); I(f"s_cbranch_scc1 {L2}")
    I(f"buffer_store_dword v246, off, {srd(SWS)}, 0 offset:{WS_EPOCH} sc1")
    a.label(L2)
    I("s_mov_b64 exec, -1")
    a.vm = vm_keep
publish_h()
a.barrier()
I(f"v_mov_b32 v{vKA}, v227"); I(f"v_mov_b32 v{vVA}, v228")
I(f"v_mov_b32 v{vLP}, v224"); I(f"v_mov_b32 v{vHH}, v225"); I(f"v_mov_b32 v{vJJ}, v226")
I(f"ds_read_b128 {vr(KF,4)}, v{vKA} offset:{KL}")
L_fast = newlabel("fast"); L_slow = newlabel("slowloop")
I(f"s_cbranch_vccz {L_fast}")
st_f = a.save()
I(f"v_mov_b32 v240, {fbits(-3.0e38)}"); I(f"v_mov_b32 v242, {fbits(-3.0e38)}")
I("v_mov_b32 v246, v2"); I("s_mov_b32 s11, 64")
a.label(L_slow); a.flush_state(16)
I(f"ds_read_b128 {vr(V1,4)}, v246 offset:{KL}")
I(f"v_mfma_f32_32x32x16_bf16 {vr(SA,16)}, {vr(V1,4)}, {vr(QA,4)}, 0")
I(f"v_mfma_f32_32x32x16_bf16 {vr(SB,16)}, {vr(V1,4)}, {vr(QB,4)}, 0")
I("v_add_u32 v246, 1024, v246")
for (S_, t) in ((SA, 240), (SB, 242)):
    for i in range(8): I(f"v_max3_f32 v{t}, v{t}, v{S_+2*i}, v{S_+2*i+1}")
I("s_sub_u32 s11, s11, 1"); I("s_cmp_lg_u32 s11, 0"); I(f"s_cbranch_scc1 {L_slow}")
for t in (240, 242):
    I(f"v_mov_b32 v{t+1}, v{t}"); I(f"v_permlane32_swap_b32 v{t}, v{t+1}"); I(f"v_max_f32 v{t}, v{t}, v{t+1}")
for i in range(16):
    I(f"v_sub_f32 v{CA+i}, 0, v240"); I(f"v_sub_f32 v{CB+i}, 0, v242")
I("s_nop 15")
a.label(L_fast); a.restore(st_f)
stamp(7)

def mm(d, x, y, c):
    cs = "0" if c is None else vr(c, 16)
    return f"v_mfma_f32_32x32x16_bf16 {vr(d,16)}, {vr(x,4)}, {vr(y,4)}, {cs}"
def blk(S_, h):
    b = S_ + 8*h
    return [f"v_exp_f32 v{b+i}, v{b+i}" for i in range(8)] + [f"v_cvt_pk_bf16_f32 v{b+i}, v{b+2*i}, v{b+2*i+1}" for i in range(4)]
def rdK(t): return f"ds_read_b128 {vr(KF,4)}, v{vKA} offset:{KL + t*1024}"
def rdV(reg, u): return f"ds_read_b128 {vr(reg,4)}, v{vVA} offset:{u*2*VS}"
I(rdV(V1, 0))
I(mm(SA, KF, QA, CA))

vWD, vOUT, vW2D, vT = 30, 31, 27, 28
sW2OFF, sHOFF, sWOM, sWOOFF = sT1, sT2, sKSTR, sOFF
WOREG = [0, 32768, VL, VL + 64*2*VS]
NK2 = 22
def setup1():
    I(f"s_lshl_b32 s11, s{sW}, 11"); I(f"s_add_u32 s{sT0}, s11, {W2R}")
    I(f"v_lshl_add_u32 v{vTR}, v{vHH}, 8, v{vLP}"); I(f"v_add_u32 v{vTR}, s{sT0}, v{vTR}")
    I(f"v_lshrrev_b32 v{vW2D}, 2, v1"); I(f"v_lshlrev_b32 v{vW2D}, 10, v{vW2D}")
    I(f"v_and_b32 v{vT}, 3, v1"); I(f"v_lshl_add_u32 v{vW2D}, v{vT}, 4, v{vW2D}")
    I(f"s_lshl_b32 s11, s{sC}, 7"); I(f"s_lshl_b32 s9, s{sNT2}, 6"); I("s_add_u32 s11, s11, s9"); I(f"v_add_u32 v{vW2D}, s11, v{vW2D}")
    mk_srd(SW2, 32, 33, 1376*1024)
    I(f"s_lshr_b32 s9, s{sW}, 1")
    I(f"s_mul_i32 s{sW2OFF}, s9, {NK2*16384}"); I(f"s_mul_i32 s{sHOFF}, s9, {NK2*2048}")
    I(f"v_lshlrev_b32 v{vT}, 10, v1"); I(f"s_lshl_b32 s11, s{sC}, 7"); I(f"v_add_u32 v{vT}, s11, v{vT}")
    I(f"s_mul_i32 s9, s{sNT2}, {176*1024}"); I(f"s_add_u32 s9, s9, s{sW2OFF}")
    for i in range(3):
        I(f"buffer_load_dword v{172+i}, v{vT}, {srd(SW2)}, s9 offen")
        if i < 2: I("s_add_u32 s9, s9, 65536")
def setup2():
    mk_srd(SWO, 24, 25, 512*1024)
    I(f"s_lshl_b32 s{sWOOFF}, s{sW}, 16")
    I(f"buffer_load_dword v175, v{vT}, {srd(SWO)}, s{sWOOFF} offen")
    I(f"v_lshrrev_b32 v{vWD}, 2, v{vJJ}"); I(f"v_lshlrev_b32 v{vWD}, 10, v{vWD}")
    I(f"v_lshl_add_u32 v{vWD}, v{vHH}, 6, v{vWD}"); I(f"v_and_b32 v{vT}, 3, v1"); I(f"v_lshl_add_u32 v{vWD}, v{vT}, 4, v{vWD}")
    I(f"s_lshl_b32 s11, s{sC}, 7"); I(f"v_add_u32 v{vWD}, s11, v{vWD}")
    I(f"s_lshr_b32 s9, s{sW}, 1")
    I(f"s_cmp_eq_u32 s9, 1"); I(f"s_cselect_b32 s{sWOM}, {WOREG[1]}, {WOREG[0]}")
    I(f"s_cmp_eq_u32 s9, 2"); I(f"s_cselect_b32 s{sWOM}, {WOREG[2]}, s{sWOM}")
    I(f"s_cmp_eq_u32 s9, 3"); I(f"s_cselect_b32 s{sWOM}, {WOREG[3]}, s{sWOM}")
    I(f"s_and_b32 s9, s{sW}, 1"); I("s_lshl_b32 s9, s9, 13"); I(f"s_add_u32 s{sWOM}, s{sWOM}, s9")
def setup3():
    mk_srd(SB2, 34, 35, 1024)
    mk_srd(SOUT, 36, 37, 2048*1024)
    I(f"s_lshl_b32 s11, s{sC}, 7"); I(f"s_lshl_b32 s9, s{sNT2}, 6"); I("s_add_u32 s11, s11, s9"); I(f"s_lshl_b32 s9, s{sKH}, 5"); I("s_add_u32 s11, s11, s9")
    I(f"v_lshl_add_u32 v{vT}, v{vHH}, 4, s11")
    I(f"buffer_load_dwordx4 {vr(BB2,4)}, v{vT}, {srd(SB2)}, 0 offen")
    I(f"s_lshl_b32 s9, s{sG}, 6"); I(f"s_lshl_b32 s10, s{sTT2}, 5"); I("s_add_u32 s9, s9, s10")
    I(f"v_add_u32 v{vOUT}, s9, v{vJJ}"); I(f"v_lshl_add_u32 v{vOUT}, v{vOUT}, 10, v{vT}")
    I(f"buffer_load_dwordx4 {vr(XRES,4)}, v{vOUT}, {srd(SX)}, 0 offen")
def w2_dma(n):
    return [("I", f"s_add_u32 m0, s{sT0}, {(n%2)*1024}"),
            ("I", f"buffer_load_dwordx4 v{vW2D}, {srd(SW2)}, s{sW2OFF} offen lds", f"w2_{n}"),
            ("I", f"s_add_u32 s{sW2OFF}, s{sW2OFF}, 16384")]
NB2 = 3
def h_load(n):
    b = B2 + 8*(n % NB2)
    return [("I", f"buffer_load_dwordx4 {vr(b,4)}, v2, {srd(SH)}, s{sHOFF} offen sc1"),
            ("I", f"buffer_load_dwordx4 {vr(b+4,4)}, v2, {srd(SH)}, s{sHOFF} offen offset:1024 sc1"),
            ("I", f"s_add_u32 s{sHOFF}, s{sHOFF}, 2048")]
def w2_tr(n):
    ab = A2 + 4*(n % 2)
    return [("WV", f"w2_{n}"),
            ("I", f"ds_read_b64_tr_b16 {vr(ab,2)}, v{vTR} offset:{(n%2)*1024}", f"tr_{n}"),
            ("I", f"ds_read_b64_tr_b16 {vr(ab+2,2)}, v{vTR} offset:{(n%2)*1024+512}", f"tr_{n}")]
def f2_mm(n, tt):
    d = ACC2 + 16*tt
    return [("I", mm(d, A2+4*(n % 2), B2+8*(n % NB2)+4*tt, None if n == 0 else d))]
def hpoll():
    I(f"s_lshr_b32 s9, s{sW}, 1"); I("s_mul_i32 s9, s9, 11")
    I(f"v_min_u32 v{vT}, 10, v1"); I(f"v_add_u32 v{vT}, s9, v{vT}"); I(f"v_min_u32 v{vT}, 42, v{vT}"); I(f"v_lshlrev_b32 v{vT}, 2, v{vT}")
    I(f"s_lshl_b32 s9, s{sG}, 8"); I(f"s_add_u32 s9, s9, {WS_HFLAG}")
    poll(lambda: I(f"buffer_load_dword v171, v{vT}, {srd(SWS)}, s9 offen sc1"),
         lambda: I(f"v_cmp_ne_u32 vcc, s{sTAG}, v171"), "ph")
def wo_dma(i):
    return [("I", f"s_add_u32 m0, s{sWOM}, {i*1024}"),
            ("I", f"buffer_load_dwordx4 v{vWD}, {srd(SWO)}, s{sWOOFF} offen lds", "wo"),
            ("I", f"s_add_u32 s{sWOOFF}, s{sWOOFF}, 8192")]
NSTEP = 32
extra = {t: {} for t in range(NSTEP + 1)}
def add(t, pos, L): extra[t].setdefault(pos, []).extend(L)
add(0, 20, [("F", setup1)])
add(0, 44, [("F", setup2)])
add(1, 44, [("F", setup3)])
add(T0-3, 20, [("F", hpoll)])
add(T0-3, 21, h_load(0)); add(T0-3, 22, w2_dma(0)); add(T0-2, 21, h_load(1)); add(T0-2, 22, w2_dma(1)); add(T0-1, 21, h_load(2))
add(T0-1, 45, w2_tr(0))
for n in range(NK2):
    t = T0 + n
    add(t, 20, f2_mm(n, 0))
    if n + 2 < NK2: add(t, 21, [("WL", f"tr_{n}")] + w2_dma(n+2))
    add(t, 44, f2_mm(n, 1))
    if n + 1 < NK2: add(t, 45, w2_tr(n+1))
    if n + 3 < NK2: add(t, 46, h_load(n+3))
if OPT.get("nof2", 0):
    for t in range(2, NSTEP): extra[t] = {}
if OPT.get("astamps", 0):
    for k_, t in enumerate((2, 5, 8, 12, 16, 20, 24, 28)): add(t, 0, [("F", (lambda k_=k_: stamp(k_)))])
PW = OPT.get("pw", 2)
if PW:
    for t in range(0, NSTEP, PW):
        add(t, 0, [("I", f"s_setprio {3 - (t // PW) % 4}")])
    for t in range(4*PW - 1, NSTEP - 1, 4*PW):
        add(t, 47, [("B",)])
    TBAR = min(t for t in range(4*PW - 1, NSTEP - 1, 4*PW) if t >= 15)
else:
    add(TBAR, 47, [("B",)])
for i in range(8): add(TBAR + 1 + i//2, 6 if i % 2 == 0 else 30, wo_dma(i)) if TBAR > 20 else add(TBAR + 1 + i, 30, wo_dma(i))

def emit(L):
    for e in L:
        if e[0] == "I": I(e[1], tag=e[2] if len(e) > 2 else None)
        elif e[0] == "WV": a.wait_vm_tag(e[1])
        elif e[0] == "WL": a.wait_lg_tag(e[1])
        elif e[0] == "F": e[1]()
        elif e[0] == "B": a.barrier()
P4FLAG[0] = True
for t in range(NSTEP):
    valu = blk(SA, 0) + blk(SA, 1) + blk(SB, 0) + blk(SB, 1)
    ins = {}
    ins[2] = ([("I", mm(OB, V2, SB+8, OB))] if t > 0 else []) + [("I", rdV(V2, 2*t+1))]
    ins[9] = [("I", mm(SB, KF, QB, CB))] + ([("I", rdK(t+1))] if t+1 < NSTEP else [])
    ins[15] = [("I", mm(OA, V1, SA, OA if t > 0 else None))]
    ins[26] = [("I", mm(OA, V2, SA+8, OA))]
    ins[33] = [("I", mm(SA, KF, QA, CA))] if t+1 < NSTEP else []
    ins[39] = [("I", mm(OB, V1, SB, OB if t > 0 else None))] + ([("I", rdV(V1, 2*t+2))] if t+1 < NSTEP else [])
    for p_, L in extra[t].items():
        ins.setdefault(p_, []); ins[p_] = ins[p_] + L
    for i, v in enumerate(valu):
        if i in ins: emit(ins[i])
        I(v)
I(mm(OB, V2, SB+8, OB))
I("s_setprio 0")

L_k1 = newlabel("k1"); L_kj = newlabel("kj")
I(f"v_add_u32 v24, s{sT0}, v2")
I(f"s_xor_b32 s9, s{sW}, 4"); I("s_lshl_b32 s10, s9, 11"); I(f"s_add_u32 s10, s10, {W2R}"); I("v_add_u32 v25, s10, v2")
I(f"s_lshl_b32 s9, s9, 8"); I(f"s_add_u32 s9, s9, {QX}"); I("v_lshl_add_u32 v29, v1, 2, s9")
I(f"s_lshl_b32 s9, s{sW}, 8"); I(f"s_add_u32 s9, s9, {QX}"); I("v_lshl_add_u32 v28, v1, 2, s9")
a.wait_vm_tag("wo")
stamp(8)
I(f"s_cmp_lg_u32 s{sKH}, 0"); I(f"s_cbranch_scc1 {L_k1}")
hs = a.save()
for q in range(2): I(f"ds_write_b128 v24, {vr(OB+4*q,4)} offset:{q*1024}")
I(f"ds_write_b32 v28, v{OB+8}")
I(f"s_branch {L_kj}")
a.label(L_k1); a.restore(hs)
for q in range(2): I(f"ds_write_b128 v24, {vr(OA+4*q,4)} offset:{q*1024}")
I(f"ds_write_b32 v28, v{OA+8}")
for i in range(9): I(f"v_mov_b32 v{OA+i}, v{OB+i}")
a.label(L_kj); a.flush_state(2)
a.barrier()
for q in range(2): I(f"ds_read_b128 {vr(OB+4*q,4)}, v25 offset:{q*1024}")
I(f"ds_read_b32 v{OB+8}, v29")
FA = 176
def xslot(dst, wexpr):
    I(f"s_lshr_b32 s10, {wexpr}, 2"); I("s_lshl_b32 s10, s10, 15"); I(f"s_and_b32 s11, {wexpr}, 3"); I("s_lshl_b32 s11, s11, 12")
    I("s_add_u32 s10, s10, s11"); I("s_add_u32 s10, s10, 16384"); I(f"v_add_u32 v{dst}, s10, v2")
xslot(24, f"s{sW}")
I(f"s_xor_b32 s9, s{sW}, 2"); xslot(25, "s9")
L_t1 = newlabel("t1"); L_tj = newlabel("tj")
for i in range(9): I(f"v_add_f32 v{OA+i}, v{OA+i}, v{OB+i}")
I(f"v_rcp_f32 v{OA+8}, v{OA+8}")
for p in range(4): I(f"v_pk_mul_f32 {vr(OA+2*p,2)}, {vr(OA+2*p,2)}, {vr(OA+8,2)} op_sel_hi:[1,0]")
for p in range(4): I(f"v_cvt_pk_bf16_f32 v{OB+p}, v{OA+2*p}, v{OA+2*p+1}")
I(f"buffer_store_dwordx4 {vr(OB,4)}, v2, {srd(SO)}, s{sOSLOT} offen sc1")
stamp(9)
I(f"s_cmp_lg_u32 s{sTT2}, 0"); I(f"s_cbranch_scc1 {L_t1}")
hs = a.save()
for q in range(4): I(f"ds_write_b128 v24, {vr(ACC2+16+4*q,4)} offset:{q*1024}")
I(f"s_branch {L_tj}")
a.label(L_t1); a.restore(hs)
for q in range(4): I(f"ds_write_b128 v24, {vr(ACC2+4*q,4)} offset:{q*1024}")
for p in range(8): I(f"v_pk_mov_b32 {vr(ACC2+2*p,2)}, {vr(ACC2+16+2*p,2)}, {vr(ACC2+16+2*p,2)} op_sel:[0,1]")
a.label(L_tj); a.flush_state(2)
WOF = 32
I(f"s_mov_b32 s11, {WOREG[3]}")
I(f"s_cmp_eq_u32 s{sKH}, 0")
I(f"s_cselect_b32 s9, {WOREG[0]}, {WOREG[2]}"); I(f"s_cselect_b32 s10, {WOREG[1]}, s11")
I(f"s_lshl_b32 s11, s{sNT2}, 9"); I("s_add_u32 s9, s9, s11"); I("s_add_u32 s10, s10, s11")
I(f"v_lshl_add_u32 v26, v{vHH}, 8, v{vLP}"); I("v_add_u32 v27, s10, v26"); I("v_add_u32 v26, s9, v26")
for hd in range(16):
    ad = "v26" if hd < 8 else "v27"
    I(f"ds_read_b64_tr_b16 {vr(WOF+4*hd,2)}, {ad} offset:{(hd%8)*2048}")
    I(f"ds_read_b64_tr_b16 {vr(WOF+4*hd+2,2)}, {ad} offset:{(hd%8)*2048+1024}")
a.barrier()
for q in range(4): I(f"ds_read_b128 {vr(FA+4*q,4)}, v25 offset:{q*1024}")
XB = 224
for d in range(4):
    I(f"v_lshlrev_b32 v{XB+2*d}, 16, v{XRES+d}"); I(f"v_and_b32 v{XB+1+2*d}, 0xffff0000, v{XRES+d}")
    I(f"v_lshlrev_b32 v{XB+8+2*d}, 16, v{BB2+d}"); I(f"v_and_b32 v{XB+9+2*d}, 0xffff0000, v{BB2+d}")
for p in range(4): I(f"v_pk_add_f32 {vr(XB+2*p,2)}, {vr(XB+2*p,2)}, {vr(XB+8+2*p,2)}")
for p in range(8): I(f"v_pk_add_f32 {vr(FA+2*p,2)}, {vr(FA+2*p,2)}, {vr(ACC2+2*p,2)}")
stamp(10)
OF = 96
I(f"s_lshl_b32 s9, s{sKH}, 15"); I(f"s_lshl_b32 s10, s{sTT2}, 10"); I("s_add_u32 s9, s9, s10")
for k_ in range(1, 8): I(f"v_add_u32 v{3+k_}, {k_*4096}, v2")
I(f"s_lshl_b32 s10, s{sW}, 11"); I(f"s_add_u32 s10, s10, {QX}"); I("v_add_u32 v24, s10, v2")
I(f"s_xor_b32 s10, s{sW}, 4"); I("s_lshl_b32 s10, s10, 11"); I(f"s_add_u32 s10, s10, {QX}"); I("v_add_u32 v25, s10, v2")
def oload():
    for hd in range(16):
        ad = "v2" if hd < 2 else f"v{3 + hd//2}"
        I(f"buffer_load_dwordx4 {vr(OF+4*hd,4)}, {ad}, {srd(SO)}, s9 offen offset:{(hd%2)*2048} sc1")
def ocheck():
    I(f"v_max3_u32 v12, v{OF}, v{OF+1}, v{OF+2}")
    I(f"v_max3_u32 v13, v{OF+3}, v{OF+4}, v{OF+5}")
    for i in range(6, 62, 4):
        I(f"v_max3_u32 v12, v12, v{OF+i}, v{OF+i+1}")
        I(f"v_max3_u32 v13, v13, v{OF+i+2}, v{OF+i+3}")
    I(f"v_max3_u32 v12, v12, v{OF+62}, v{OF+63}")
    I("v_max_u32 v12, v12, v13")
    I("v_cmp_eq_u32 vcc, -1, v12")
poll(oload, ocheck, "po", sleep=0)
stamp(11)
for hd in range(16):
    I(mm(FA, WOF+4*hd, OF+4*hd, FA))
L_k1 = newlabel("r1"); L_kj = newlabel("rj")
I(f"s_cmp_lg_u32 s{sKH}, 0"); I(f"s_cbranch_scc1 {L_k1}")
hs = a.save()
for q in range(2): I(f"ds_write_b128 v24, {vr(FA+8+4*q,4)} offset:{q*1024}")
I(f"s_branch {L_kj}")
a.label(L_k1); a.restore(hs)
for q in range(2): I(f"ds_write_b128 v24, {vr(FA+4*q,4)} offset:{q*1024}")
for p in range(4): I(f"v_pk_mov_b32 {vr(FA+2*p,2)}, {vr(FA+8+2*p,2)}, {vr(FA+8+2*p,2)} op_sel:[0,1]")
a.label(L_kj); a.flush_state(2)
a.barrier()
for q in range(2): I(f"ds_read_b128 {vr(48+4*q,4)}, v25 offset:{q*1024}")
for p in range(4): I(f"v_pk_add_f32 {vr(FA+2*p,2)}, {vr(FA+2*p,2)}, {vr(48+2*p,2)}")
for i in range(4): I(f"v_permlane32_swap_b32 v{FA+i}, v{FA+4+i}")
for p in range(4): I(f"v_pk_add_f32 {vr(FA+2*p,2)}, {vr(FA+2*p,2)}, {vr(XB+2*p,2)}")
for p in range(4): I(f"v_cvt_pk_bf16_f32 v{56+p}, v{FA+2*p}, v{FA+2*p+1}")
I(f"buffer_store_dwordx4 v[56:59], v{vOUT}, {srd(SOUT)}, 0 offen")
stamp(12)
if OPT["stamps"]: a.waitcnt(vm=0)
stamp(13)
a.raw("L_end:")
a.raw("    s_endpgm")

ref = open(f"cdna_kernels/{NAME}.s.ref").read()
head = ref[:ref.index("; Override launch geometry")]
out = head + f"""; Generated by gen/gen.py (hand-written generator).  One workgroup of 8 waves per CU.
; @launch grid=(256,1,1) block=(512,1,1) lds={LDS_BYTES}
.amdgcn_target "amdgcn-amd-amdhsa--gfx950"
.text
.globl {NAME}_kernel
.p2align 8
.type {NAME}_kernel,@function
{NAME}_kernel:
""" + a.text() + f""".section .rodata,"a"
.p2align 6
.amdhsa_kernel {NAME}_kernel
  .amdhsa_next_free_vgpr 256
  .amdhsa_next_free_sgpr 102
  .amdhsa_accum_offset 256
  .amdhsa_group_segment_fixed_size 0
  .amdhsa_kernarg_size 104
  .amdhsa_user_sgpr_count 2
  .amdhsa_user_sgpr_kernarg_segment_ptr 1
  .amdhsa_system_sgpr_workgroup_id_x 1
.end_amdhsa_kernel
"""
path = OPT_OUT if (OPT_OUT := next((x for x in sys.argv[1:] if x.endswith(".s")), None)) else f"cdna_kernels/{NAME}.s"
open(path, "w").write(out)
print("wrote", path, "lines", len(a.out), "nops", a.nops)
```

```python
import sys, math, struct
sys.path.insert(0, "gen")
from asmlib import Asm

NAME = "parallel_sum__grouped_kv_mqa__dense_activation_gelu__prompt"
OPT = dict(stop=99, stamps=False)
for a_ in sys.argv[1:]:
    if "=" in a_:
        k_, v_ = a_.split("="); OPT[k_] = int(v_)

def fbits(x): return "0x%08x" % struct.unpack("<I", struct.pack("<f", x))[0]

WS_EPOCH = 0
WS_KVFLAG = 0x1000
WS_HFLAG = 0x2000
WS_K = 0x10000
WS_V = 0x20000
WS_H = 0x100000
H_STRIDE = 0x2C000
WS_O = 0x800000
WS_DBG = 0xA00000
WS_SIZE = 0x1000000
XC = 0; XCS = 1040
RING2 = 66560
KL = 0; VL = 65536; VS = 272
QX = 135168
W2R = 143360
MISC = 159744
RSTD = MISC; KMAX = MISC + 256
LDS_BYTES = 163840
SX, SW, SKVW, SWS, SH, SO, SW2, SWO, SB1, SB2, SOUT = 44, 48, 52, 56, 60, 64, 68, 72, 76, 80, 84
def srd(n): return f"s[{n}:{n+3}]"
sW, sG, sC, sTAG, sKSTR, sOFF, sT0, sT1, sT2, sTILE = 3, 4, 5, 6, 7, 8, 16, 17, 18, 12
sONES, sSELLO, sSELHI, sCNT = 13, 14, 15, 42
sC0, sC1 = 88, 90
sTB, sKIND, sFT, sTT, sKH, sNT2, sTT2 = 92, 93, 94, 95, 96, 97, 98
sEX = 100

a = Asm(); I = a.I
def vr(b, n): return f"v[{b}:{b+n-1}]"
lblc = [0]
def newlabel(p):
    lblc[0] += 1
    return f"L_{p}_{lblc[0]}"

P4FLAG = [False]
def stamp(idx):
    if not OPT["stamps"]: return
    if OPT.get("astamps", 0) and idx < 7 and not P4FLAG[0]: return
    a.waitcnt(lg=0)
    for k_, op in enumerate(("s_memtime", "s_memrealtime")):
        I(f"{op} s[100:101]")
        a.waitcnt(lg=0)
        I("v_mov_b32 v3, s100")
        I(f"s_lshl_b32 s100, s2, 3"); I(f"s_add_u32 s100, s100, s{sW}"); I("s_lshl_b32 s100, s100, 7")
        I(f"s_add_u32 s100, s100, {WS_DBG + 4*idx + 64*k_}")
        I(f"buffer_store_dword v3, off, {srd(SWS)}, s100")

def mk_srd(n, lo, hi, nbytes):
    I(f"s_mov_b32 s{n}, s{lo}"); I(f"s_mov_b32 s{n+1}, s{hi}")
    I(f"s_mov_b32 s{n+2}, {nbytes}"); I(f"s_mov_b32 s{n+3}, 0x00020000")


NE_OLD = OPT.get("ne_old", 8)
T0 = OPT.get("t0", 8)
TBAR = OPT.get("tbar", 18)
LCNT = MISC + 512
VG = OPT.get("vg", 0)
NSLOT = 6 if VG else 8
KVPOLL = OPT.get("kvpoll", 22)
I("s_cmp_ge_u32 s2, 256")
I("s_cbranch_scc1 L_end")
if OPT["stamps"]:
    I("s_memrealtime s[26:27]"); I("s_memtime s[38:39]"); a.waitcnt(lg=0); I("s_mov_b32 s19, s26"); I("s_mov_b32 s101, s38")
    I("v_mov_b32 v126, s19"); I("v_mov_b32 v127, s101")
I("s_load_dwordx16 s[16:31], s[0:1], 0")
I("s_load_dwordx8 s[32:39], s[0:1], 64")
I("s_load_dwordx2 s[40:41], s[0:1], 96")
I("v_lshrrev_b32 v3, 6, v0")
I("v_and_b32 v1, 63, v0")
I(f"v_readfirstlane_b32 s{sW}, v3")
I("v_lshlrev_b32 v2, 4, v1")
if OPT.get("map", 1) == 0:
    I("s_and_b32 s9, s2, 7"); I("s_lshl_b32 s9, s9, 2"); I("s_bfe_u32 s10, s2, 0x20003"); I(f"s_or_b32 s{sG}, s9, s10")
    I(f"s_lshr_b32 s{sC}, s2, 5")
else:
    I("s_bfe_u32 s9, s2, 0x20001"); I("s_lshl_b32 s9, s9, 3"); I("s_bfe_u32 s10, s2, 0x30003"); I(f"s_or_b32 s{sG}, s9, s10")
    I("s_and_b32 s9, s2, 1"); I("s_lshl_b32 s9, s9, 2"); I("s_lshr_b32 s10, s2, 6"); I(f"s_or_b32 s{sC}, s9, s10")
I("v_lshrrev_b32 v4, 4, v1")
I("v_and_b32 v5, 15, v1")
XR = 32; T = 96
I(f"s_lshl_b32 s9, s{sW}, 2")
I("v_add_u32 v6, s9, v4")
I(f"s_lshl_b32 s10, s{sG}, 6")
I("v_add_u32 v7, s10, v6")
I("v_lshlrev_b32 v7, 10, v7")
I("v_lshl_add_u32 v7, v5, 4, v7")
sBLK = [88, 89, 90, 91]
for k_ in range(4):
    I(f"s_add_u32 s{sBLK[k_]}, s{sC}, {k_}"); I(f"s_and_b32 s{sBLK[k_]}, s{sBLK[k_]}, 3"); I(f"s_lshl_b32 s{sBLK[k_]}, s{sBLK[k_]}, 14")
L_nox = newlabel("nox")
I("v_mov_b32 v12, 0"); I(f"v_mov_b32 v13, {LCNT}")
I("ds_write_b32 v13, v12")
a.barrier()
I(f"s_mov_b32 s{SX+2}, {2048*1024}"); I(f"s_mov_b32 s{SX+3}, 0x00020000")
I(f"s_cmp_ge_u32 s{sW}, 4")
I(f"s_mov_b32 s{SX}, s16"); I(f"s_mov_b32 s{SX+1}, s17")
I(f"s_cbranch_scc1 {L_nox}")
for k_ in range(4):
    for i in range(4):
        I(f"buffer_load_dwordx4 {vr(XR+16*k_+4*i,4)}, v7, {srd(SX)}, s{sBLK[k_]} offen offset:{i*256}")
vm_x = [dict(o) for o in a.vm]
a.label(L_nox); a.vm = []
L_nokvw = newlabel("nokvw")
I(f"s_cmp_lg_u32 s{sW}, 7"); I(f"s_cbranch_scc1 {L_nokvw}")
I("s_setprio 3")
I(f"s_cmp_lt_u32 s{sC}, 4")
I("s_cselect_b32 s9, s20, s22"); I("s_cselect_b32 s10, s21, s23")
mk_srd(SKVW, 9, 10, 16384)
I("v_add_u32 v16, 0x1000, v2"); I("v_add_u32 v17, 0x2000, v2"); I("v_add_u32 v18, 0x3000, v2")
for j in range(4):
    I(f"s_mov_b32 m0, {W2R + j*4096}")
    for i in range(4):
        I(f"buffer_load_dwordx4 {('v2','v16','v17','v18')[j]}, {srd(SKVW)}, 0 offen offset:{i*1024} lds", tag="kvw")
vm_kvw = [dict(o) for o in a.vm]
a.label(L_nokvw); a.vm = []
I(f"s_mov_b32 s{sONES}, 0x3f803f80"); I(f"s_mov_b32 s{sSELLO}, 0x00003f80"); I(f"s_mov_b32 s{sSELHI}, 0x3f800000")
I(f"s_mul_i32 s9, s{sC}, 5"); I(f"s_min_u32 s10, s{sC}, 3"); I("s_add_u32 s9, s9, s10")
I(f"s_sub_u32 s10, s{sW}, 4"); I(f"s_add_u32 s11, s{sW}, 1")
I(f"s_cmp_ge_u32 s{sW}, 4"); I("s_cselect_b32 s10, s10, s11")
I(f"s_cmp_eq_u32 s{sW}, 7"); I("s_cselect_b32 s10, 5, s10")
I(f"s_add_u32 s{sTILE}, s9, s10")
I(f"s_lshl_b32 s9, s{sC}, 1"); I(f"s_add_u32 s9, s9, s{sW}")
I(f"s_cmp_lt_u32 s{sW}, 2"); I(f"s_cselect_b32 s{sTILE}, s9, s{sTILE}")
I("s_mov_b32 s11, 2752"); I("s_cselect_b32 s11, 1024, s11")
I(f"s_mov_b32 s{SW+2}, {512*2752}"); I(f"s_cselect_b32 s{SW+2}, {512*1024}, s{SW+2}")
I(f"s_cselect_b32 s{SW}, s18, s28"); I(f"s_cselect_b32 s{SW+1}, s19, s29")
I(f"s_mov_b32 s{SW+3}, 0x00020000")
I(f"s_cmp_ge_u32 s{sC}, 3"); I("s_cselect_b32 s9, 1, 0"); I(f"s_cmp_eq_u32 s{sW}, 7"); I("s_cselect_b32 s9, s9, 0")
I("s_cmp_eq_u32 s9, 1"); I(f"s_cselect_b32 s{sTILE}, 63, s{sTILE}"); I(f"s_cselect_b32 s{SW+2}, 0, s{SW+2}")
if OPT.get("now", 0): I(f"s_mov_b32 s{SW+2}, 0")
I(f"s_lshl_b32 s{sKSTR}, s11, 4")
I("v_lshrrev_b32 v11, 2, v1")
I("v_mul_lo_u32 v11, v11, s11")
I("v_and_b32 v15, 3, v1")
I("v_lshl_add_u32 v11, v15, 4, v11")
I(f"s_lshl_b32 s9, s{sTILE}, 6")
I("v_add_u32 v11, s9, v11")
sWB = [26, 27, 38, 39]; sRING = 99; sQ = 19
I("s_mov_b32 s42, s19")
I(f"s_and_b32 s{sQ}, s{sG}, 3")
if OPT.get("noxor", 0): I(f"s_mov_b32 s{sQ}, 0")
I(f"s_lshl_b32 s10, s{sKSTR}, 3")
for b in range(4):
    I(f"s_xor_b32 s9, s{sQ}, {b}"); I(f"s_mul_i32 s{sWB[b]}, s9, s10")
I(f"s_lshl_b32 s{sRING}, s{sW}, 13"); I(f"s_add_u32 s{sRING}, s{sRING}, {RING2}")
WV = 128
def woff(s):
    I(f"s_mul_i32 s{sOFF}, s{sKSTR}, {s % 8}") if s % 8 else None
    I(f"s_add_u32 s{sOFF}, s{sOFF}, s{sWB[s//8]}") if s % 8 else I(f"s_mov_b32 s{sOFF}, s{sWB[s//8]}")
def wslot(s):
    if not VG: return (s % NSLOT)*1024
    return ((s//2) % NSLOT)*1024 if s % 2 == 0 else (NSLOT + (s//2) % 2)*1024
def wdma(s):
    I(f"s_add_u32 m0, s{sRING}, {wslot(s)}")
    if VG: woff(s)
    elif s % 8 == 0: I(f"s_mov_b32 s{sOFF}, s{sWB[s//8]}")
    else: I(f"s_add_u32 s{sOFF}, s{sOFF}, s{sKSTR}")
    I(f"buffer_load_dwordx4 v11, {srd(SW)}, s{sOFF} offen lds", tag=f"w_{s}")
def wvg(s):
    woff(s)
    I(f"buffer_load_dwordx4 {vr(WV+4*(s//2),4)}, v11, {srd(SW)}, s{sOFF} offen")
def w_early_dma():
    for s in (range(0, 2*NSLOT, 2) if VG else range(NSLOT)): wdma(s)
def w_early_vg():
    if VG:
        for s in range(1, 32, 2): wvg(s)
L_noearly = newlabel("noearly")
I(f"s_cmp_eq_u32 s{sW}, 7"); I(f"s_cbranch_scc1 {L_noearly}")
I(f"s_cmp_lt_u32 s{sW}, 4"); I(f"s_cbranch_scc1 {L_noearly}")
if OPT.get("touch", 0):
    L_tq = newlabel("tq"); L_td = newlabel("td")
    NSH = 8 if OPT.get("map", 1) else 4
    I(f"s_and_b32 s9, s{sG}, {NSH-1}"); I(f"s_lshl_b32 s9, s9, {6 if NSH == 8 else 7}"); I("v_add_u32 v20, s9, v1")
    I(f"s_cmp_eq_u32 s{sW}, 6"); I(f"s_cbranch_scc1 {L_tq}")
    I("v_mul_u32_u24 v20, 2752, v20")
    I(f"s_mul_i32 s9, s{sC}, 5"); I(f"s_min_u32 s10, s{sC}, 3"); I("s_add_u32 s9, s9, s10"); I("s_lshl_b32 s9, s9, 6")
    I(f"s_and_b32 s10, s{sW}, 1"); I("s_mul_i32 s10, s10, 252"); I("s_add_u32 s9, s9, s10")
    for r_ in range(8 // NSH):
        I(f"buffer_load_dword v21, v20, {srd(SW)}, s9 offen"); I(f"buffer_load_dword v22, v20, {srd(SW)}, s9 offen offset:128")
        if NSH == 4 and r_ == 0: I(f"s_add_u32 s9, s9, {64*2752}")
    I(f"s_branch {L_td}")
    a.label(L_tq)
    mk_srd(SKVW, 18, 42, 512*1024)
    I("v_lshlrev_b32 v20, 10, v20"); I(f"s_lshl_b32 s9, s{sC}, 7")
    for r_ in range(8 // NSH):
        I(f"buffer_load_dword v21, v20, {srd(SKVW)}, s9 offen")
        if NSH == 4 and r_ == 0: I(f"s_add_u32 s9, s9, {64*1024}")
    a.label(L_td); a.vm = []
w_early_dma()
vm_w = [dict(o) for o in a.vm]
w_early_vg()
a.label(L_noearly); a.vm = []
mk_srd(SWS, 40, 41, WS_SIZE)
I(f"s_and_b32 s9, s{sC}, 3"); I(f"s_lshl_b32 s10, s{sG}, 2"); I(f"s_add_u32 s{sTB}, s9, s10"); I(f"s_lshr_b32 s{sKIND}, s{sC}, 2")
I(f"s_bfe_u32 s{sFT}, s{sW}, 0x10001"); I(f"s_and_b32 s{sTT}, s{sW}, 1"); I(f"s_lshr_b32 s{sKH}, s{sW}, 2")
I(f"s_and_b32 s{sNT2}, s{sW}, 1"); I(f"s_bfe_u32 s{sTT2}, s{sW}, 0x10001")
I(f"s_lshl_b32 s9, s{sG}, 16"); I(f"s_add_u32 s9, s9, {WS_O}")
I("s_add_u32 s9, s40, s9"); I("s_addc_u32 s10, s41, 0")
mk_srd(SO, 9, 10, 65536)
sOSLOT = 43
I(f"s_lshl_b32 s9, s{sC}, 2"); I(f"s_lshl_b32 s10, s{sFT}, 1"); I("s_add_u32 s9, s9, s10"); I(f"s_add_u32 s9, s9, s{sKH}")
I("s_lshl_b32 s9, s9, 1"); I(f"s_add_u32 s9, s9, s{sTT}"); I(f"s_lshl_b32 s{sOSLOT}, s9, 10")
def early_stamp():
    if OPT["stamps"]:
        I(f"s_lshl_b32 s100, s2, 3"); I(f"s_add_u32 s100, s100, s{sW}"); I("s_lshl_b32 s100, s100, 7")
        I(f"s_add_u32 s100, s100, {WS_DBG + 4*15}")
        I(f"buffer_store_dword v127, off, {srd(SWS)}, s100")
        I(f"buffer_store_dword v126, off, {srd(SWS)}, s100 offset:64")
I(f"s_load_dword s{sTAG}, s[40:41], {WS_EPOCH}")
early_stamp()
stamp(0)
L_kvw = newlabel("kvwave"); L_B = newlabel("barB")
I(f"s_cmp_eq_u32 s{sW}, 7"); I(f"s_cbranch_scc1 {L_kvw}")
I(f"s_cmp_ge_u32 s{sW}, 4"); I(f"s_cbranch_scc1 {L_B}")
st0 = a.save()
a.vm = vm_x

I(f"v_mul_u32_u24 v8, {XCS}, v6")
I("v_lshl_add_u32 v8, v5, 4, v8")
I("v_lshlrev_b32 v9, 2, v6")
I(f"v_add_u32 v9, {RSTD}, v9")
def dpp_allreduce_add(r, t):
    I(f"v_add_f32_dpp v{t}, v{r}, v{r} row_ror:8 row_mask:0xf bank_mask:0xf")
    I(f"v_add_f32_dpp v{r}, v{t}, v{t} row_ror:4 row_mask:0xf bank_mask:0xf")
    I(f"v_add_f32_dpp v{t}, v{r}, v{r} row_ror:2 row_mask:0xf bank_mask:0xf")
    I(f"v_add_f32_dpp v{r}, v{t}, v{t} row_ror:1 row_mask:0xf bank_mask:0xf")
def dpp_allreduce_add2(r, t, r2, t2):
    for ro in (8, 4, 2, 1):
        I(f"v_add_f32_dpp v{t}, v{r}, v{r} row_ror:{ro} row_mask:0xf bank_mask:0xf")
        I(f"v_add_f32_dpp v{t2}, v{r2}, v{r2} row_ror:{ro} row_mask:0xf bank_mask:0xf")
        r, t = t, r; r2, t2 = t2, r2
def ln_sum(k_, a0, a1):
    X = XR + 16*k_
    I(f"v_dot2_f32_bf16 v{a0}, v{X}, s{sONES}, 0")
    I(f"v_dot2_f32_bf16 v{a1}, v{X+1}, s{sONES}, 0")
    for i in range(2, 16):
        r = a0 if i % 2 == 0 else a1
        I(f"v_dot2_f32_bf16 v{r}, v{X+i}, s{sONES}, v{r}")
def ln_centre(k_, mu, ad):
    X = XR + 16*k_
    for q in range(5):
        if q < 4:
            tb = T + 16 + 8*(q % 2)
            for i in range(4):
                I(f"v_dot2_f32_bf16 v{tb+2*i}, v{X+4*q+i}, s{sSELLO}, v{mu}")
                I(f"v_dot2_f32_bf16 v{tb+2*i+1}, v{X+4*q+i}, s{sSELHI}, v{mu}")
        else:
            I(f"v_dot2_f32_bf16 v{T+12}, v{X}, v{X}, 0")
            I(f"v_dot2_f32_bf16 v{T+13}, v{X+1}, v{X+1}, 0")
            I(f"v_dot2_f32_bf16 v{T+12}, v{X+2}, v{X+2}, v{T+12}")
        if q > 0:
            pb = T + 16 + 8*((q-1) % 2)
            for i in range(4):
                I(f"v_cvt_pk_bf16_f32 v{X+4*(q-1)+i}, v{pb+2*i}, v{pb+2*i+1}")
            I(f"ds_write_b128 v{ad}, {vr(X+4*(q-1),4)} offset:{(q-1)*256}")
    for i in range(3, 16):
        r = T+12 if i % 2 == 0 else T+13
        I(f"v_dot2_f32_bf16 v{r}, v{X+i}, v{X+i}, v{r}")
def ln_set(k_, nxt):
    mu, ad, ar = T+2, T+5, T+6
    I(f"s_lshr_b32 s9, s{sBLK[k_]}, 14"); I(f"s_mul_i32 s10, s9, {16*XCS}"); I(f"v_add_u32 v{ad}, s10, v8")
    I(f"s_lshl_b32 s9, s9, 6"); I(f"v_add_u32 v{ar}, s9, v9")
    I(f"v_mul_f32 v{mu}, {fbits(-1.0/512)}, v{T}")
    ln_centre(k_, mu, ad)
    if nxt is not None:
        ln_sum(nxt, T, T+1)
        I(f"v_add_f32 v{T+12}, v{T+12}, v{T+13}")
        I(f"v_add_f32 v{T}, v{T}, v{T+1}")
        dpp_allreduce_add2(T+12, T+13, T, T+1)
    else:
        I(f"v_add_f32 v{T+12}, v{T+12}, v{T+13}")
        dpp_allreduce_add(T+12, T+13)
    I(f"v_mov_b32 v{T+13}, {fbits(1e-5)}")
    I(f"v_fmac_f32 v{T+13}, {fbits(1.0/512)}, v{T+12}")
    I(f"v_rsq_f32 v{T+12}, v{T+13}")
    I(f"ds_write_b32 v{ar}, v{T+12}")
ln_sum(0, T, T+1)
I(f"v_add_f32 v{T}, v{T}, v{T+1}")
dpp_allreduce_add(T, T+1)
ln_set(0, None)
I("v_mov_b32 v12, 1"); I(f"v_mov_b32 v13, {LCNT}")
I("s_mov_b64 exec, 1"); I("ds_add_u32 v13, v12"); I("s_mov_b64 exec, -1")
stamp(1)
ln_sum(1, T, T+1)
I(f"v_add_f32 v{T}, v{T}, v{T+1}")
dpp_allreduce_add(T, T+1)
LNW = OPT.get("lnw", 3)
for k_ in range(1, 4):
    if k_ == LNW: w_early_dma()
    ln_set(k_, k_ + 1 if k_ < 3 else None)
I(f"s_branch {L_B}")

a.label(L_kvw); a.restore(st0)
WR = 128
L_kvV = newlabel("kvV"); L_kvpub = newlabel("kvpub"); L_kp = newlabel("kvpoll"); L_kpd = newlabel("kvpolld")
a.vm = vm_kvw
for i in range(4): I(f"v_mov_b32 v{28+i}, -1")
I("v_add_u32 v16, 0x1000, v2")
I(f"s_lshl_b32 s9, s{sC}, 13")
for i in range(8):
    I(f"buffer_store_dwordx4 v[28:31], {'v2' if i < 4 else 'v16'}, {srd(SO)}, s9 offen offset:{(i%4)*1024} sc1")
w_early_dma()
I(f"s_and_b32 s9, s{sC}, 3"); I("s_lshl_b32 s9, s9, 4")
I("v_add_u32 v12, s9, v5")
I(f"v_mul_u32_u24 v13, {XCS}, v12")
I("v_lshl_add_u32 v13, v4, 4, v13")
I("v_lshrrev_b32 v14, 2, v5")
I("v_lshl_add_u32 v14, v4, 3, v14")
I("v_lshlrev_b32 v14, 5, v14")
I("v_and_b32 v15, 3, v1")
I("v_lshl_add_u32 v14, v15, 3, v14")
I(f"v_add_u32 v14, {W2R}, v14")
a.wait_vm_tag("kvw")
for s in range(16):
    I(f"ds_read_b64_tr_b16 {vr(WR+8*s+4,2)}, v14 offset:{s*1024}")
    I(f"ds_read_b64_tr_b16 {vr(WR+8*s+6,2)}, v14 offset:{s*1024+128}")
I(f"v_mov_b32 v19, {LCNT}")
I(f"s_mov_b32 s{sCNT}, 0x100000")
a.label(L_kp)
I("ds_read_b32 v20, v19")
I("v_cmp_gt_u32 vcc, 4, v20")
I("s_nop 4")
I(f"s_cbranch_vccz {L_kpd}")
I(f"s_sub_u32 s{sCNT}, s{sCNT}, 1"); I(f"s_cmp_lg_u32 s{sCNT}, 0"); I(f"s_cbranch_scc1 {L_kp}")
a.label(L_kpd)
stamp(1)
for s in range(16): I(f"ds_read_b128 {vr(WR+8*s,4)}, v13 offset:{s*64}")
KD = 88
def kv_mm(kind):
    for s in range(16):
        b = WR + 8*s
        c_ = "0" if s == 0 else vr(KD, 4)
        if kind == 0: I(f"v_mfma_f32_16x16x32_bf16 {vr(KD,4)}, {vr(b+4,4)}, {vr(b,4)}, {c_}")
        else:         I(f"v_mfma_f32_16x16x32_bf16 {vr(KD,4)}, {vr(b,4)}, {vr(b+4,4)}, {c_}")
I("v_bfe_u32 v20, v1, 4, 1"); I("v_lshrrev_b32 v21, 5, v1")
I(f"s_cmp_lg_u32 s{sKIND}, 0")
I(f"s_cbranch_scc1 {L_kvV}")
st_kv = a.save()
I("v_lshlrev_b32 v16, 2, v12"); I(f"v_add_u32 v16, {RSTD}, v16")
I(f"ds_read_b32 v17, v16")
I(f"s_lshr_b32 s9, s{sTB}, 1"); I("s_lshl_b32 s9, s9, 10"); I(f"s_and_b32 s10, s{sTB}, 1"); I("s_lshl_b32 s10, s10, 8")
I("s_add_u32 s9, s9, s10"); I(f"s_add_u32 s9, s9, {WS_K}")
I("v_lshlrev_b32 v20, 9, v20"); I("v_lshl_add_u32 v20, v5, 4, v20"); I("v_lshl_add_u32 v20, v21, 3, v20")
kv_mm(0)
for r in range(4): I(f"v_mul_f32 v{KD+r}, v{KD+r}, v17")
I(f"v_cvt_pk_bf16_f32 v18, v{KD}, v{KD+1}"); I(f"v_cvt_pk_bf16_f32 v19, v{KD+2}, v{KD+3}")
I(f"buffer_store_dwordx2 v[18:19], v20, {srd(SWS)}, s9 offen sc1", tag="kvst")
I("v_dot2_f32_bf16 v22, v18, v18, 0"); I("v_dot2_f32_bf16 v22, v19, v19, v22")
I("v_mov_b32 v23, v22"); I("v_permlane32_swap_b32 v22, v23"); I("v_add_f32 v22, v22, v23")
I("v_mov_b32 v23, v22"); I("v_permlane16_swap_b32 v22, v23"); I("v_add_f32 v22, v22, v23")
for ro in (8, 4, 2, 1):
    I(f"v_max_f32_dpp v23, v22, v22 row_ror:{ro} row_mask:0xf bank_mask:0xf"); I("v_mov_b32 v22, v23")
I("v_mov_b32 v63, v22")
I(f"s_branch {L_kvpub}")
a.label(L_kvV); a.restore(st_kv)
I(f"s_and_b32 s9, s{sC}, 3"); I("s_lshl_b32 s9, s9, 6"); I(f"s_add_u32 s9, s9, {RSTD}")
I("v_lshl_add_u32 v16, v4, 4, s9")
I(f"ds_read_b128 v[28:31], v16")
I(f"s_lshl_b32 s9, s{sTB}, 9"); I(f"s_add_u32 s9, s9, {WS_V}")
I("v_lshlrev_b32 v20, 8, v20"); I("v_lshl_add_u32 v20, v5, 4, v20"); I("v_lshl_add_u32 v20, v21, 3, v20")
kv_mm(1)
for r in range(4): I(f"v_mul_f32 v{KD+r}, v{KD+r}, v{28+r}")
I(f"v_cvt_pk_bf16_f32 v18, v{KD}, v{KD+1}"); I(f"v_cvt_pk_bf16_f32 v19, v{KD+2}, v{KD+3}")
I(f"buffer_store_dwordx2 v[18:19], v20, {srd(SWS)}, s9 offen sc1", tag="kvst")
I("v_mov_b32 v63, 0")
a.label(L_kvpub); a.flush_state(2)
a.label(L_B); a.flush_state(2); a.lg = []
a.vm = vm_w; a.smem_pending = {f"s{sTAG}"}; a.smem_out = True
stamp(2)
a.barrier()
I(f"s_mul_i32 s{sTAG}, s{sTAG}, 0x9E3779B1")
I(f"s_add_u32 s{sTAG}, s{sTAG}, 0x7F4A7C15")
stamp(3)
L_np = newlabel("nopub")
I(f"s_cmp_lg_u32 s{sW}, 7"); I(f"s_cbranch_scc1 {L_np}")
st = a.save()
a.force_wait(vm=0)
I(f"v_mov_b32 v62, s{sTAG}")
I(f"s_lshl_b32 s9, s{sTB}, 1"); I(f"s_add_u32 s9, s9, s{sKIND}"); I("s_lshl_b32 s9, s9, 3"); I(f"s_add_u32 s9, s9, {WS_KVFLAG}")
I("s_mov_b64 exec, 1")
I(f"buffer_store_dwordx2 v[62:63], off, {srd(SWS)}, s9 sc1")
I("s_mov_b64 exec, -1")
I("s_setprio 0")
a.label(L_np); a.restore(st)
stamp(5)
L_vgdone = newlabel("vgdone")
I(f"s_sub_u32 s9, s{sW}, 4"); I("s_cmp_lt_u32 s9, 3"); I(f"s_cbranch_scc1 {L_vgdone}")
w_early_vg()
a.label(L_vgdone)

ACC = 96
I("v_and_b32 v15, 3, v1"); I("v_lshlrev_b32 v13, 3, v15")
I("v_bfe_u32 v15, v1, 2, 2"); I("v_lshl_add_u32 v13, v15, 6, v13")
I("v_bfe_u32 v15, v1, 4, 1"); I("v_lshl_add_u32 v13, v15, 5, v13")
I("v_mov_b32 v17, v13")
I("v_lshrrev_b32 v16, 5, v1")
I("v_lshl_add_u32 v13, v16, 9, v13"); I(f"v_add_u32 v13, s{sRING}, v13")
I("v_and_b32 v18, 31, v1")
I(f"v_mul_u32_u24 v14, {XCS}, v18"); I("v_lshl_add_u32 v14, v16, 4, v14")
vB = [6, 7, 8, 9]
for b in range(4):
    I(f"s_xor_b32 s9, s{sQ}, {b}"); I("s_lshl_b32 s9, s9, 8"); I(f"v_add_u32 v{vB[b]}, s9, v14")
I(f"v_add_u32 v12, s{sRING}, v2")
def p2_stage(s):
    I(f"ds_write_b128 v12, {vr(WV+4*(s//2),4)} offset:{wslot(s)}")
NBUF = 3
AF = 128; BF = 140
def p2_readB(s):
    bb = BF + 8*(s % NBUF)
    I(f"ds_read_b128 {vr(bb,4)}, v{vB[s//8]} offset:{(s%8)*32}")
    I(f"ds_read_b128 {vr(bb+4,4)}, v{vB[s//8]} offset:{32*XCS + (s%8)*32}")
def p2_readA(s):
    ab = AF + 4*(s % NBUF)
    a.wait_vm_tag(f"w_{s}")
    I(f"ds_read_b64_tr_b16 {vr(ab,2)}, v13 offset:{wslot(s)}")
    I(f"ds_read_b64_tr_b16 {vr(ab+2,2)}, v13 offset:{wslot(s)+256}")
def p2_mma(s, tt):
    ab = AF + 4*(s % NBUF); bb = BF + 8*(s % NBUF)
    c_ = "0" if s == 0 else vr(ACC+16*tt, 16)
    I(f"v_mfma_f32_32x32x16_bf16 {vr(ACC+16*tt,16)}, {vr(ab,4)}, {vr(bb+4*tt,4)}, {c_}")

def poll(load_fn, check_fn, name, sleep=2, keep=0):
    L = newlabel(name); Ld = newlabel(name + "ok")
    I(f"s_mov_b32 s{sCNT}, 0x4000")
    a.label(L)
    load_fn()
    a.force_wait(vm=0)
    check_fn()
    I("s_nop 4")
    I(f"s_cbranch_vccz {Ld}")
    if sleep: I(f"s_sleep {sleep}")
    I(f"s_sub_u32 s{sCNT}, s{sCNT}, 1")
    I(f"s_cmp_lg_u32 s{sCNT}, 0")
    I(f"s_cbranch_scc1 {L}")
    a.label(Ld)
KVS = 192
sR = 20
def kv_flag_load():
    I(f"s_add_u32 s{sR}, s{sC}, s{sG}"); I(f"s_and_b32 s{sR}, s{sR}, 7"); I(f"s_xor_b32 s{sR}, s{sR}, s{sW}")
    I("v_bfe_u32 v19, v1, 2, 1"); I("v_lshlrev_b32 v19, 10, v19")
    I("v_bfe_u32 v56, v1, 3, 2"); I("v_lshl_add_u32 v19, v56, 8, v19")
    I("v_and_b32 v56, 3, v1"); I("v_lshl_add_u32 v19, v56, 3, v19")
    I(f"s_lshl_b32 s21, s{sR}, 5"); I(f"s_add_u32 s21, s21, {WS_KVFLAG}")
    I(f"buffer_load_dwordx2 v[60:61], v19, {srd(SWS)}, s21 offen sc1")
def kv_fetch():
    L = newlabel("kvok")
    I(f"v_cmp_ne_u32 vcc, s{sTAG}, v60")
    I("s_nop 4")
    I(f"s_cbranch_vccz {L}")
    st = a.save()
    poll(lambda: I(f"buffer_load_dwordx2 v[60:61], v19, {srd(SWS)}, s21 offen sc1"),
         lambda: I(f"v_cmp_ne_u32 vcc, s{sTAG}, v60"), "pkv")
    a.label(L); a.restore(st)
    I(f"s_lshl_b32 s9, s{sR}, 10"); I(f"s_add_u32 s23, s9, {WS_V}"); I(f"s_add_u32 s22, s9, {WS_K}")
    I("v_add_u32 v56, 0x8000, v2")
def kv_load(i, which):
    so = "s22" if which == 0 else "s23"
    I(f"buffer_load_dwordx4 {vr(KVS+8*i+4*which,4)}, {'v2' if i % 2 == 0 else 'v56'}, {srd(SWS)}, {so} offen sc1")
    if i % 2 == 1: I(f"s_add_u32 {so}, {so}, 8192")
def kv_publish(nyounger):
    L = newlabel("nopub")
    I(f"s_cmp_lg_u32 s{sW}, 7"); I(f"s_cbranch_scc1 {L}")
    st = a.save()
    a.raw(f"    s_waitcnt vmcnt({nyounger})")
    I(f"v_mov_b32 v62, s{sTAG}")
    I(f"s_lshl_b32 s9, s{sTB}, 1"); I(f"s_add_u32 s9, s9, s{sKIND}"); I("s_lshl_b32 s9, s9, 3"); I(f"s_add_u32 s9, s9, {WS_KVFLAG}")
    I("s_mov_b64 exec, 1")
    I(f"buffer_store_dwordx2 v[62:63], off, {srd(SWS)}, s9 sc1")
    I("s_mov_b64 exec, -1")
    a.label(L); a.restore(st); a.slot += 0
n_after_B = [2 if OPT["stamps"] else 0]
if OPT["stamps"] and not OPT.get("astamps", 0): n_after_B[0] = 4 + 16
else: n_after_B[0] = 16
if OPT.get("p2prio", 0):
    L_pp = newlabel("pp")
    I(f"s_and_b32 s9, s{sW}, 6"); I("s_cmp_lg_u32 s9, 4"); I(f"s_cbranch_scc1 {L_pp}"); I("s_setprio 1"); a.label(L_pp)
p2_readB(0); p2_readA(0); p2_readB(1); p2_readA(1)
mk_srd(SB1, 30, 31, 2752)
I("v_lshlrev_b32 v19, 2, v18"); I(f"v_add_u32 v19, {RSTD}, v19")
I(f"ds_read_b32 v20, v19"); I(f"ds_read_b32 v22, v19 offset:128")
for s in range(32):
    p2_mma(s, 0)
    if s + NSLOT < 32: wdma(s + NSLOT)
    if KVPOLL < s <= KVPOLL + 8: kv_load(s - KVPOLL - 1, 0)
    if s + 2 < 32: p2_readB(s + 2)
    p2_mma(s, 1)
    if s + 2 < 32: p2_readA(s + 2)
    if KVPOLL < s <= KVPOLL + 8: kv_load(s - KVPOLL - 1, 1)
    if s == KVPOLL - 4: kv_flag_load()
    if s == KVPOLL: kv_fetch()
    if s == 16:
        I(f"s_lshl_b32 s9, s{sTILE}, 6")
        I("v_lshl_add_u32 v10, v16, 3, s9")
        for q in range(4):
            I(f"buffer_load_dwordx2 {vr(24+2*q,2)}, v10, {srd(SB1)}, 0 offen offset:{16*q}")
stamp(4)
for ro in (8, 4, 2, 1):
    I(f"v_max_f32_dpp v60, v61, v61 row_ror:{ro} row_mask:0xf bank_mask:0xf"); I("v_mov_b32 v61, v60")
I("v_permlane16_swap_b32 v60, v61"); I("v_max_f32 v61, v60, v61")
I(f"s_lshl_b32 s11, s{sW}, 2"); I(f"s_add_u32 s11, s11, {KMAX}"); I("v_mov_b32 v60, s11")
I(f"ds_write_b32 v60, v61")
I(f"s_mul_i32 s9, s{sG}, {H_STRIDE}"); I(f"s_add_u32 s9, s9, {WS_H}")
I("s_add_u32 s9, s40, s9"); I("s_addc_u32 s10, s41, 0")
mk_srd(SH, 9, 10, 86*2048)
L_epf = newlabel("epffn"); L_epdone = newlabel("epdone")
I(f"s_cmp_ge_u32 s{sW}, 2")
I(f"s_cbranch_scc1 {L_epf}")
st_ep = a.save()
QS = 0.25 * math.log2(math.e)
I(f"v_mul_f32 v20, {fbits(QS)}, v20"); I(f"v_mul_f32 v22, {fbits(QS)}, v22")
I(f"s_lshl_b32 s9, s{sW}, 12"); I(f"s_add_u32 s9, s9, {QX}")
I("v_add_u32 v19, s9, v2")
for tt in range(2):
    rs = 20 + 2*tt
    for p in range(8):
        r = ACC + 16*tt + 2*p
        I(f"v_pk_mul_f32 {vr(r,2)}, {vr(r,2)}, {vr(rs,2)} op_sel_hi:[1,0]")
    for p in range(8):
        r = ACC + 16*tt + 2*p
        I(f"v_cvt_pk_bf16_f32 v{32+8*tt+p}, v{r}, v{r+1}")
    for x in range(2):
        I(f"ds_write_b128 v19, {vr(32+8*tt+4*x,4)} offset:{(tt*2+x)*1024}")
I("s_mov_b32 s9, 0x7fff0000")
for i in range(4): I(f"buffer_store_dwordx4 v[32:35], v2, {srd(SH)}, s9 offen sc1", tag="hst")
vm_q = [dict(o) for o in a.vm]
I(f"s_branch {L_epdone}")
a.label(L_epf); a.restore(st_ep)
C0 = -2.0 * math.sqrt(2.0/math.pi) * math.log2(math.e)
C1 = C0 * 0.044715
I(f"s_mov_b32 s{sC1}, {fbits(C1)}"); I(f"s_mov_b32 s{sC1+1}, {fbits(C1)}")
B1 = 32
for q in range(4):
    for d in range(2):
        I(f"v_lshlrev_b32 v{B1+4*q+2*d}, 16, v{24+2*q+d}")
        I(f"v_and_b32 v{B1+4*q+2*d+1}, 0xffff0000, v{24+2*q+d}")
I(f"v_mov_b32 v48, {fbits(C0)}"); I(f"v_mov_b32 v49, {fbits(C0)}")
I(f"s_lshl_b32 s9, s{sTILE}, 12")
def gelu8(r, rs, b, outr):
    t = 52
    for p in range(4): I(f"v_pk_fma_f32 {vr(r+2*p,2)}, {vr(r+2*p,2)}, {vr(rs,2)}, {vr(b+2*p,2)} op_sel_hi:[1,0,1]")
    for p in range(4): I(f"v_pk_mul_f32 {vr(t+2*p,2)}, {vr(r+2*p,2)}, {vr(r+2*p,2)}")
    for p in range(4): I(f"v_pk_fma_f32 {vr(t+2*p,2)}, {vr(t+2*p,2)}, s[{sC1}:{sC1+1}], v[48:49]")
    for p in range(4): I(f"v_pk_mul_f32 {vr(t+2*p,2)}, {vr(t+2*p,2)}, {vr(r+2*p,2)}")
    for i in range(8): I(f"v_exp_f32 v{t+i}, v{t+i}")
    for p in range(4): I(f"v_pk_add_f32 {vr(t+2*p,2)}, {vr(t+2*p,2)}, 1.0 op_sel_hi:[1,0]")
    for i in range(8): I(f"v_rcp_f32 v{t+i}, v{t+i}")
    for p in range(4): I(f"v_pk_mul_f32 {vr(t+2*p,2)}, {vr(t+2*p,2)}, {vr(r+2*p,2)}")
    for p in range(4): I(f"v_cvt_pk_bf16_f32 v{outr+p}, v{t+2*p}, v{t+2*p+1}")
for tt in range(2):
    for u in range(2):
        o_ = 64 + 4*(2*tt+u)
        gelu8(ACC+16*tt+8*u, 20+2*tt, B1+8*u, o_)
        I(f"buffer_store_dwordx4 {vr(o_,4)}, v2, {srd(SH)}, s9 offen offset:{u*2048 + tt*1024} sc1", tag="hst")
a.label(L_epdone); a.flush_state(2); a.lg = []
a.vm = vm_q
stamp(6)

vSK, vSV = 184, 186
I(f"s_lshl_b32 s11, s{sR}, 10"); I(f"v_add_u32 v{vSK}, s11, v2"); I(f"v_add_u32 v{vSK+1}, 0x8000, v{vSK}")
I(f"s_mul_i32 s11, s{sR}, {4*VS}"); I(f"s_add_u32 s11, s11, {VL}")
I(f"v_mul_u32_u24 v25, {VS}, v4"); I("v_lshl_add_u32 v25, v5, 4, v25"); I(f"v_add_u32 v{vSV}, s11, v25"); I(f"v_add_u32 v{vSV+1}, {32*4*VS}, v{vSV}")
def kv_stage(i, which):
    if which == 0: return f"ds_write_b128 v{vSK + i % 2}, {vr(KVS+8*i,4)} offset:{(i//2)*8192}"
    return f"ds_write_b128 v{vSV + i % 2}, {vr(KVS+8*i+4,4)} offset:{(i//2)*8*4*VS}"
I(f"s_mul_i32 s11, s{sW}, {16*2*VS}"); I(f"s_add_u32 s11, s11, {VL}")
I(f"v_mul_u32_u24 v26, {VS}, v18"); I("v_add_u32 v26, s11, v26")
for i in range(4): I(f"v_mov_b32 v{28+i}, s{sONES}")
QA, QB, KF, V1, V2 = 4, 8, 12, 16, 20
CA, CB, SA, SB, OA, OB = 32, 48, 64, 80, 96, 112
ACC2, A2, B2, XRES, BB2 = 192, 128, 136, 160, 164
vKA, vVA, vTR = 24, 25, 26
vLP, vHH, vJJ = 188, 189, 190
I("v_mov_b32 v160, v17"); I("v_mov_b32 v161, v16"); I("v_mov_b32 v162, v18")
I(f"s_and_b32 s11, s{sW}, 3"); I("s_lshl_b32 s11, s11, 11"); I(f"s_add_u32 s11, s11, {QX}")
I("v_add_u32 v165, s11, v2")
I(f"v_mov_b32 v167, {KMAX}")
a.barrier()
I(f"ds_write_b128 v26, v[28:31] offset:256")
I(f"ds_read_b128 {vr(QA,4)}, v165"); I(f"ds_read_b128 {vr(QB,4)}, v165 offset:1024")
I(f"ds_read_b128 v[168:171], v167"); I(f"ds_read_b128 v[172:175], v167 offset:16")
for i in range(2):
    for wh in range(2): I(kv_stage(i, wh))
I("v_max3_f32 v168, v168, v169, v170"); I("v_max3_f32 v172, v172, v173, v174"); I("v_max3_f32 v168, v168, v171, v175")
I("v_max_f32 v168, v168, v172")
for (q, t) in ((QA, 176), (QB, 178)):
    I(f"v_dot2_f32_bf16 v{t}, v{q}, v{q}, 0")
    for i in range(1, 4): I(f"v_dot2_f32_bf16 v{t}, v{q+i}, v{q+i}, v{t}")
for t in (176, 178):
    I(f"v_mov_b32 v{t+1}, v{t}"); I(f"v_permlane32_swap_b32 v{t}, v{t+1}"); I(f"v_add_f32 v{t}, v{t}, v{t+1}")
    I(f"v_mul_f32 v{t}, v{t}, v168"); I(f"v_sqrt_f32 v{t}, v{t}")
I("v_max_f32 v180, v176, v178")
for i in range(16):
    I(f"v_sub_f32 v{CA+i}, 0, v176"); I(f"v_sub_f32 v{CB+i}, 0, v178")
I(f"v_cmp_nge_f32 vcc, {fbits(50.0)}, v180")
I(f"s_lshl_b32 s11, s{sKH}, 15"); I(f"v_add_u32 v163, s11, v2")
I(f"s_mul_i32 s11, s{sKH}, {64*2*VS}"); I(f"s_add_u32 s11, s11, {VL}")
I(f"v_min_u32 v164, 16, v162"); I(f"v_lshlrev_b32 v164, 4, v164")
I(f"v_mul_u32_u24 v183, {VS}, v161"); I(f"v_add3_u32 v164, v164, v183, s11")
if OPT.get("zrows", 1):
    I("v_and_b32 v183, 27, v162"); I("v_cmp_lt_u32 s[20:21], 16, v183")
    I("v_mov_b32 v183, 0x80000"); I("v_cndmask_b32 v164, v164, v183, s[20:21]")
def publish_h():
    L = newlabel("nohf"); L2 = newlabel("noep")
    a.wait_vm_tag("hst")
    vm_keep = [dict(o) for o in a.vm]
    I(f"v_mov_b32 v171, s{sTAG}")
    I("s_mov_b64 exec, 1")
    I(f"s_cmp_lt_u32 s{sW}, 2"); I(f"s_cbranch_scc1 {L}")
    I(f"s_lshl_b32 s9, s{sG}, 8"); I(f"s_lshl_b32 s10, s{sTILE}, 2"); I("s_add_u32 s9, s9, s10"); I(f"s_add_u32 s9, s9, {WS_HFLAG}")
    I(f"buffer_store_dword v171, off, {srd(SWS)}, s9 sc1")
    a.label(L)
    I("s_or_b32 s11, s2, s%d" % sW); I("s_cmp_lg_u32 s11, 0"); I(f"s_cbranch_scc1 {L2}")
    I(f"buffer_store_dword v171, off, {srd(SWS)}, 0 offset:{WS_EPOCH} sc1")
    a.label(L2)
    I("s_mov_b64 exec, -1")
    a.vm = vm_keep
a.barrier()
I(f"v_mov_b32 v{vKA}, v163"); I(f"v_mov_b32 v{vVA}, v164")
I(f"v_mov_b32 v{vLP}, v160"); I(f"v_mov_b32 v{vHH}, v161"); I(f"v_mov_b32 v{vJJ}, v162")
I(f"ds_read_b128 {vr(KF,4)}, v{vKA} offset:{KL}")
L_fast = newlabel("fast"); L_slow = newlabel("slowloop")
I(f"s_cbranch_vccz {L_fast}")
st_f = a.save()
I(f"v_mov_b32 v176, {fbits(-3.0e38)}"); I(f"v_mov_b32 v178, {fbits(-3.0e38)}")
I(f"s_mov_b32 s10, {WS_K}"); I("s_mov_b32 s11, 64")
a.label(L_slow); a.flush_state(16)
I(f"buffer_load_dwordx4 {vr(V1,4)}, v2, {srd(SWS)}, s10 offen sc1")
a.force_wait(vm=0)
I(f"v_mfma_f32_32x32x16_bf16 {vr(SA,16)}, {vr(V1,4)}, {vr(QA,4)}, 0")
I(f"v_mfma_f32_32x32x16_bf16 {vr(SB,16)}, {vr(V1,4)}, {vr(QB,4)}, 0")
I("s_add_u32 s10, s10, 1024")
for (S_, t) in ((SA, 176), (SB, 178)):
    for i in range(8): I(f"v_max3_f32 v{t}, v{t}, v{S_+2*i}, v{S_+2*i+1}")
I("s_sub_u32 s11, s11, 1"); I("s_cmp_lg_u32 s11, 0"); I(f"s_cbranch_scc1 {L_slow}")
for t in (176, 178):
    I(f"v_mov_b32 v{t+1}, v{t}"); I(f"v_permlane32_swap_b32 v{t}, v{t+1}"); I(f"v_max_f32 v{t}, v{t}, v{t+1}")
for i in range(16):
    I(f"v_sub_f32 v{CA+i}, 0, v176"); I(f"v_sub_f32 v{CB+i}, 0, v178")
I("s_nop 15")
a.label(L_fast); a.restore(st_f)
stamp(7)

def mm(d, x, y, c):
    cs = "0" if c is None else vr(c, 16)
    return f"v_mfma_f32_32x32x16_bf16 {vr(d,16)}, {vr(x,4)}, {vr(y,4)}, {cs}"
def blk(S_, h):
    b = S_ + 8*h
    return [f"v_exp_f32 v{b+i}, v{b+i}" for i in range(8)] + [f"v_cvt_pk_bf16_f32 v{b+i}, v{b+2*i}, v{b+2*i+1}" for i in range(4)]
def rdK(t): return f"ds_read_b128 {vr(KF,4)}, v{vKA} offset:{KL + t*1024}"
def rdV(reg, u): return f"ds_read_b128 {vr(reg,4)}, v{vVA} offset:{u*2*VS}"
I(rdV(V1, 0))
I(mm(SA, KF, QA, CA))

vWD, vOUT, vTR2, vT = 30, 31, 27, 28
sW2OFF, sHOFF, sWOM, sWOOFF, sRB = sT1, sT2, sKSTR, sOFF, 21
sKQ = sNT2
RINGREG = [0, 32768, VL, VL + 64*2*VS]
WOREG = [8192, 32768 + 8192, VL + 16*2*VS, VL + 80*2*VS]
NK2 = 22
def sel4(dst, idx, tab):
    I(f"s_mov_b32 s{dst}, {tab[0]}")
    for k_ in range(1, 4):
        I(f"s_cmp_eq_u32 s{idx}, {k_}"); I(f"s_cselect_b32 s{dst}, {tab[k_]}, s{dst}")
def setup1():
    I(f"s_lshr_b32 s{sKQ}, s{sW}, 1")
    I(f"s_lshl_b32 s11, s{sW}, 11"); I(f"s_add_u32 s{sT0}, s11, {W2R}")
    sel4(sRB, sKQ, RINGREG); I(f"s_lshl_b32 s9, s{sTT}, 12"); I(f"s_add_u32 s{sRB}, s{sRB}, s9")
    I(f"v_lshl_add_u32 v{vT}, v{vHH}, 8, v{vLP}"); I(f"v_add_u32 v{vTR}, s{sT0}, v{vT}"); I(f"v_add_u32 v{vTR2}, s{sRB}, v{vT}")
    I(f"v_lshrrev_b32 v{vWD}, 2, v{vJJ}"); I(f"v_lshlrev_b32 v{vWD}, 10, v{vWD}")
    I(f"v_lshl_add_u32 v{vWD}, v{vHH}, 6, v{vWD}"); I(f"v_and_b32 v{vT}, 3, v1"); I(f"v_lshl_add_u32 v{vWD}, v{vT}, 4, v{vWD}")
    I(f"s_lshl_b32 s11, s{sC}, 7"); I(f"v_add_u32 v{vWD}, s11, v{vWD}")
    mk_srd(SW2, 32, 33, 1376*1024)
    I(f"s_mul_i32 s{sW2OFF}, s{sKQ}, {NK2*16384}"); I(f"s_mul_i32 s{sHOFF}, s{sKQ}, {NK2*2048}")
    I(f"s_lshl_b32 s9, s{sTT}, 10"); I(f"s_add_u32 s{sHOFF}, s{sHOFF}, s9")
    I(f"v_lshlrev_b32 v{vT}, 10, v1"); I(f"v_add_u32 v{vT}, s11, v{vT}")
    I(f"s_mul_i32 s9, s{sTT}, {176*1024}"); I(f"s_add_u32 s9, s9, s{sW2OFF}")
    for i in range(3 if OPT.get("touchw", 0) else 0):
        I(f"buffer_load_dword v{172+i}, v{vT}, {srd(SW2)}, s9 offen")
        if i < 2: I("s_add_u32 s9, s9, 65536")
def setup2():
    mk_srd(SWO, 24, 25, 512*1024)
    I(f"s_lshl_b32 s{sWOOFF}, s{sW}, 16")
    if OPT.get("touchw", 0): I(f"buffer_load_dword v175, v{vT}, {srd(SWO)}, s{sWOOFF} offen")
    sel4(sWOM, sKQ, WOREG)
    I(f"s_lshl_b32 s9, s{sTT}, 13"); I(f"s_add_u32 s{sWOM}, s{sWOM}, s9")
def setup3():
    mk_srd(SB2, 34, 35, 1024)
    mk_srd(SOUT, 36, 37, 2048*1024)
    I(f"s_lshl_b32 s11, s{sC}, 7"); I(f"s_lshl_b32 s9, s{sKQ}, 5"); I("s_add_u32 s11, s11, s9")
    I(f"v_lshl_add_u32 v{vT}, v{vHH}, 4, s11")
    I(f"buffer_load_dwordx4 {vr(BB2,4)}, v{vT}, {srd(SB2)}, 0 offen")
    I(f"s_lshl_b32 s9, s{sG}, 6"); I(f"s_lshl_b32 s10, s{sTT}, 5"); I("s_add_u32 s9, s9, s10")
    I(f"v_add_u32 v{vOUT}, s9, v{vJJ}"); I(f"v_lshl_add_u32 v{vOUT}, v{vOUT}, 10, v{vT}")
    I(f"buffer_load_dwordx4 {vr(XRES,4)}, v{vOUT}, {srd(SX)}, 0 offen")
    if OPT.get("touchout", 0): I(f"buffer_load_dword v174, v{vOUT}, {srd(SOUT)}, 0 offen")
def slot_base(n): return (f"s{sT0}", 0) if n % 3 == 0 else (f"s{sRB}", (n % 3 - 1)*2048)
def w2_dma(n, hf):
    b, o = slot_base(n)
    return [("I", f"s_add_u32 m0, {b}, {o + hf*1024}"),
            ("I", f"s_add_u32 s{sW2OFF}, s{sW2OFF}, 8192") if (n, hf) != (0, 0) else ("I", "s_nop 0"),
            ("I", f"buffer_load_dwordx4 v{vWD}, {srd(SW2)}, s{sW2OFF} offen lds", f"w2_{n}")]
NB2 = 4
def h_load(n):
    b = B2 + 4*(n % NB2)
    L = [("I", f"buffer_load_dwordx4 {vr(b,4)}, v2, {srd(SH)}, s{sHOFF} offen offset:{(n % 2)*2048} sc1")]
    if n % 2: L.append(("I", f"s_add_u32 s{sHOFF}, s{sHOFF}, 4096"))
    return L
A2 = 128; B2 = 144
def w2_tr(n, nt):
    ab = A2 + 8*(n % 2) + 4*nt
    ad = vTR if n % 3 == 0 else vTR2
    o = slot_base(n)[1] + nt*512
    return [("WV", f"w2_{n}"),
            ("I", f"ds_read_b64_tr_b16 {vr(ab,2)}, v{ad} offset:{o}", f"tr_{n}"),
            ("I", f"ds_read_b64_tr_b16 {vr(ab+2,2)}, v{ad} offset:{o+1024}", f"tr_{n}")]
def f2_mm(n, nt):
    d = ACC2 + 16*nt
    return [("I", mm(d, A2+8*(n % 2)+4*nt, B2+4*(n % NB2), None if n == 0 else d))]
def hpoll():
    I(f"s_mul_i32 s9, s{sKQ}, 11")
    I(f"v_min_u32 v{vT}, 10, v1"); I(f"v_add_u32 v{vT}, s9, v{vT}"); I(f"v_min_u32 v{vT}, 42, v{vT}"); I(f"v_lshlrev_b32 v{vT}, 2, v{vT}")
    I(f"s_lshl_b32 s22, s{sG}, 8"); I(f"s_add_u32 s22, s22, {WS_HFLAG}")
    I(f"buffer_load_dword v171, v{vT}, {srd(SWS)}, s22 offen sc1")
def hcheck():
    L = newlabel("hok")
    I(f"v_cmp_ne_u32 vcc, s{sTAG}, v171")
    I("s_nop 4")
    I(f"s_cbranch_vccz {L}")
    st = a.save()
    poll(lambda: I(f"buffer_load_dword v171, v{vT}, {srd(SWS)}, s22 offen sc1"),
         lambda: I(f"v_cmp_ne_u32 vcc, s{sTAG}, v171"), "ph")
    a.label(L); a.restore(st)
def wo_dma(i):
    return [("I", f"s_add_u32 m0, s{sWOM}, {i*1024}"),
            ("I", f"s_add_u32 s{sWOOFF}, s{sWOOFF}, 8192") if i else ("I", "s_nop 0"),
            ("I", f"buffer_load_dwordx4 v{vWD}, {srd(SWO)}, s{sWOOFF} offen lds", "wo")]
NSTEP = 32
extra = {t: {} for t in range(NSTEP + 1)}
def add(t, pos, L): extra[t].setdefault(pos, []).extend(L)
add(0, 30, [("F", publish_h)])
add(1, 20, [("F", setup1)])
add(1, 44, [("F", setup2)])
add(2, 44, [("F", setup3)])
for n_ in range(12):
    add(n_ // 2, 21 if n_ % 2 == 0 else 45, [("I", kv_stage(2 + n_ // 2, n_ % 2))])
T0 = 8
add(4, 30, [("F", hpoll)])
add(5, 6, w2_dma(0, 0)); add(5, 30, w2_dma(0, 1))
add(6, 6, [("F", hcheck)])
add(6, 7, h_load(0)); add(6, 30, h_load(1)); add(7, 6, h_load(2))
add(7, 21, w2_tr(0, 0)); add(7, 40, w2_tr(0, 1))
add(7, 10, w2_dma(1, 0)); add(7, 16, w2_dma(1, 1)); add(7, 27, w2_dma(2, 0)); add(7, 34, w2_dma(2, 1))
for n in range(NK2):
    t = T0 + n
    add(t, 20, f2_mm(n, 0))
    if n + 1 < NK2: add(t, 34, w2_tr(n+1, 0))
    add(t, 44, f2_mm(n, 1))
    if n + 1 < NK2: add(t, 45, w2_tr(n+1, 1))
    if n + 3 < NK2:
        add(t, 46, h_load(n+3))
        add(t, 27, [("WL", f"tr_{n}")] + w2_dma(n+3, 0)); add(t+1, 3, w2_dma(n+3, 1))
if OPT.get("nof2", 0):
    for t in range(6, NSTEP): extra[t] = {}
if OPT.get("astamps", 0):
    for k_, t in enumerate((1, 2, 3, 4, 5, 6, 7, 8) if OPT.get("astamps") == 2 else (2, 5, 8, 12, 16, 20, 24, 28)): add(t, 0, [("F", (lambda k_=k_: stamp(k_)))])
PW = 2
for t in range(0, NSTEP, PW):
    if OPT.get("prio", 1): add(t, 1, [("I", f"s_setprio {3 - (t // PW) % 4}")])
for t in (7, 15, 23): add(t, 8, [("B",)])
for i in range(8): add(23 + (i+1)//2, 30 if i % 2 == 0 else 10, wo_dma(i))

def emit(L):
    for e in L:
        if e[0] == "I": I(e[1], tag=e[2] if len(e) > 2 else None)
        elif e[0] == "WV": a.wait_vm_tag(e[1])
        elif e[0] == "WL": a.wait_lg_tag(e[1])
        elif e[0] == "F": e[1]()
        elif e[0] == "B": a.barrier()
P4FLAG[0] = True
for t in range(NSTEP):
    valu = blk(SA, 0) + blk(SA, 1) + blk(SB, 0) + blk(SB, 1)
    ins = {}
    ins[2] = ([("I", mm(OB, V2, SB+8, OB))] if t > 0 else []) + [("I", rdV(V2, 2*t+1))]
    ins[9] = [("I", mm(SB, KF, QB, CB))] + ([("I", rdK(t+1))] if t+1 < NSTEP else [])
    ins[15] = [("I", mm(OA, V1, SA, OA if t > 0 else None))]
    ins[26] = [("I", mm(OA, V2, SA+8, OA))]
    ins[33] = [("I", mm(SA, KF, QA, CA))] if t+1 < NSTEP else []
    ins[39] = [("I", mm(OB, V1, SB, OB if t > 0 else None))] + ([("I", rdV(V1, 2*t+2))] if t+1 < NSTEP else [])
    for p_, L in extra[t].items():
        ins.setdefault(p_, []); ins[p_] = ins[p_] + L
    for i, v in enumerate(valu):
        if i in ins: emit(ins[i])
        I(v)
I(mm(OB, V2, SB+8, OB))
I("s_setprio 0")

L_k1 = newlabel("k1"); L_kj = newlabel("kj")
I(f"v_add_u32 v24, s{sT0}, v2")
I(f"s_xor_b32 s9, s{sW}, 4"); I("s_lshl_b32 s10, s9, 11"); I(f"s_add_u32 s10, s10, {W2R}"); I("v_add_u32 v25, s10, v2")
I(f"s_lshl_b32 s9, s9, 8"); I(f"s_add_u32 s9, s9, {QX}"); I("v_lshl_add_u32 v29, v1, 2, s9")
I(f"s_lshl_b32 s9, s{sW}, 8"); I(f"s_add_u32 s9, s9, {QX}"); I("v_lshl_add_u32 v28, v1, 2, s9")
a.wait_vm_tag("wo")
stamp(8)
I(f"s_cmp_lg_u32 s{sKH}, 0"); I(f"s_cbranch_scc1 {L_k1}")
hs = a.save()
for q in range(2): I(f"ds_write_b128 v24, {vr(OB+4*q,4)} offset:{q*1024}")
I(f"ds_write_b32 v28, v{OB+8}")
I(f"s_branch {L_kj}")
a.label(L_k1); a.restore(hs)
for q in range(2): I(f"ds_write_b128 v24, {vr(OA+4*q,4)} offset:{q*1024}")
I(f"ds_write_b32 v28, v{OA+8}")
for i in range(9): I(f"v_mov_b32 v{OA+i}, v{OB+i}")
a.label(L_kj); a.flush_state(2)
a.barrier()
for q in range(2): I(f"ds_read_b128 {vr(OB+4*q,4)}, v25 offset:{q*1024}")
I(f"ds_read_b32 v{OB+8}, v29")
WOF = 32
sel4(9, sKQ, WOREG)
I(f"v_lshl_add_u32 v26, v{vHH}, 8, v{vLP}"); I("v_add_u32 v26, s9, v26")
for i in range(9): I(f"v_add_f32 v{OA+i}, v{OA+i}, v{OB+i}")
I(f"v_rcp_f32 v{OA+8}, v{OA+8}")
for p in range(4): I(f"v_pk_mul_f32 {vr(OA+2*p,2)}, {vr(OA+2*p,2)}, {vr(OA+8,2)} op_sel_hi:[1,0]")
for p in range(4): I(f"v_cvt_pk_bf16_f32 v{OB+p}, v{OA+2*p}, v{OA+2*p+1}")
I(f"buffer_store_dwordx4 {vr(OB,4)}, v2, {srd(SO)}, s{sOSLOT} offen sc1")
stamp(9)
for hd in range(8):
    for nt in range(2):
        I(f"ds_read_b64_tr_b16 {vr(WOF+8*hd+4*nt,2)}, v26 offset:{hd*2048 + nt*512}")
        I(f"ds_read_b64_tr_b16 {vr(WOF+8*hd+4*nt+2,2)}, v26 offset:{hd*2048 + nt*512 + 1024}")
XB = 240
for d in range(4):
    I(f"v_lshlrev_b32 v{XB+2*d}, 16, v{XRES+d}"); I(f"v_and_b32 v{XB+1+2*d}, 0xffff0000, v{XRES+d}")
    I(f"v_lshlrev_b32 v{XB+8+2*d}, 16, v{BB2+d}"); I(f"v_and_b32 v{XB+9+2*d}, 0xffff0000, v{BB2+d}")
for p in range(4): I(f"v_pk_add_f32 {vr(XB+2*p,2)}, {vr(XB+2*p,2)}, {vr(XB+8+2*p,2)}")
AREA = [24576, VL + 48*2*VS, None]
def area_addr(dst, j, wreg):
    I(f"s_lshl_b32 s10, {wreg}, 11")
    if j < 2: I(f"s_add_u32 s10, s10, {AREA[j]}")
    else:
        I(f"s_cmp_ge_u32 {wreg}, 4"); I("s_cselect_b32 s11, 49152, 0"); I("s_add_u32 s10, s10, s11")
    I(f"v_add_u32 v{dst}, s10, v2")
for dl in range(1, 4):
    I(f"s_add_u32 s9, s{sW}, {2*dl}"); I("s_and_b32 s9, s9, 7"); area_addr(12 + dl, dl - 1, "s9")
    area_addr(16 + dl, dl - 1, f"s{sW}")
OF = 96
I(f"s_lshl_b32 s26, s{sKQ}, 14"); I(f"s_lshl_b32 s10, s{sTT}, 10"); I("s_add_u32 s26, s26, s10")
for k_ in range(1, 4): I(f"v_add_u32 v{3+k_}, {k_*4096}, v2")
def oload():
    for hd in range(8):
        ad = "v2" if hd < 2 else f"v{3 + hd//2}"
        I(f"buffer_load_dwordx4 {vr(OF+4*hd,4)}, {ad}, {srd(SO)}, s26 offen offset:{(hd%2)*2048} sc1")
stamp(10)
L_orep = newlabel("orep"); L_ook = newlabel("ook")
FB = 128
I(f"s_mov_b32 s{sCNT}, 0x4000")
a.label(L_orep); a.vm = []
oload()
for hd in range(8):
    o_ = OF + 4*hd
    for nt in range(2):
        I(mm(FB+16*nt, WOF+8*hd+4*nt, o_, ACC2+16*nt if hd == 0 else FB+16*nt))
    if hd == 0:
        I(f"v_max3_u32 v8, v{o_}, v{o_+1}, v{o_+2}"); I(f"v_mov_b32 v9, v{o_+3}")
    else:
        I(f"v_max3_u32 v8, v8, v{o_}, v{o_+1}"); I(f"v_max3_u32 v9, v9, v{o_+2}, v{o_+3}")
I("v_max_u32 v8, v8, v9")
I("v_cmp_eq_u32 vcc, -1, v8")
I("s_nop 4")
I(f"s_cbranch_vccz {L_ook}")
I("s_nop 15")
I(f"s_sub_u32 s{sCNT}, s{sCNT}, 1"); I(f"s_cmp_lg_u32 s{sCNT}, 0"); I(f"s_cbranch_scc1 {L_orep}")
a.label(L_ook)
stamp(11)
FA = 160
L_j = newlabel("rsj"); Ls = [newlabel(f"rs{k_}") for k_ in range(4)]
for k_ in range(1, 4):
    I(f"s_cmp_eq_u32 s{sKQ}, {k_}"); I(f"s_cbranch_scc1 {Ls[k_]}")
hs = a.save()
for k_ in range(4):
    a.label(Ls[k_]); a.restore(hs)
    for dl in range(1, 4):
        ch = (k_ + dl) % 4
        for q in range(2): I(f"ds_write_b128 v{12+dl}, {vr(FB+8*ch+4*q,4)} offset:{q*1024}")
    for p in range(4): I(f"v_pk_mov_b32 {vr(FA+2*p,2)}, {vr(FB+8*k_+2*p,2)}, {vr(FB+8*k_+2*p,2)} op_sel:[0,1]")
    if k_ < 3: I(f"s_branch {L_j}")
a.label(L_j); a.flush_state(2)
a.barrier()
for dl in range(1, 4):
    for q in range(2): I(f"ds_read_b128 {vr(32+8*(dl-1)+4*q,4)}, v{16+dl} offset:{q*1024}")
for p in range(4): I(f"v_pk_add_f32 {vr(FA+2*p,2)}, {vr(FA+2*p,2)}, {vr(32+2*p,2)}")
for p in range(4): I(f"v_pk_add_f32 {vr(40+2*p,2)}, {vr(40+2*p,2)}, {vr(48+2*p,2)}")
for p in range(4): I(f"v_pk_add_f32 {vr(FA+2*p,2)}, {vr(FA+2*p,2)}, {vr(40+2*p,2)}")
for i in range(4): I(f"v_permlane32_swap_b32 v{FA+i}, v{FA+4+i}")
for p in range(4): I(f"v_pk_add_f32 {vr(FA+2*p,2)}, {vr(FA+2*p,2)}, {vr(XB+2*p,2)}")
for p in range(4): I(f"v_cvt_pk_bf16_f32 v{56+p}, v{FA+2*p}, v{FA+2*p+1}")
I(f"buffer_store_dwordx4 v[56:59], v{vOUT}, {srd(SOUT)}, 0 offen")
stamp(12)
if OPT["stamps"]: a.waitcnt(vm=0)
stamp(13)
a.raw("L_end:")
a.raw("    s_endpgm")

ref = open(f"cdna_kernels/{NAME}.s.ref").read()
head = ref[:ref.index("; Override launch geometry")]
out = head + f"""; Generated by gen/gen.py (hand-written generator).  One workgroup of 8 waves per CU.
; @launch grid=(256,1,1) block=(512,1,1) lds={LDS_BYTES}
.amdgcn_target "amdgcn-amd-amdhsa--gfx950"
.text
.globl {NAME}_kernel
.p2align 8
.type {NAME}_kernel,@function
{NAME}_kernel:
""" + a.text() + f""".section .rodata,"a"
.p2align 6
.amdhsa_kernel {NAME}_kernel
  .amdhsa_next_free_vgpr 256
  .amdhsa_next_free_sgpr 102
  .amdhsa_accum_offset 256
  .amdhsa_group_segment_fixed_size 0
  .amdhsa_kernarg_size 104
  .amdhsa_user_sgpr_count 2
  .amdhsa_user_sgpr_kernarg_segment_ptr 1
  .amdhsa_system_sgpr_workgroup_id_x 1
.end_amdhsa_kernel
"""
path = OPT_OUT if (OPT_OUT := next((x for x in sys.argv[1:] if x.endswith(".s")), None)) else f"cdna_kernels/{NAME}.s"
open(path, "w").write(out)
print("wrote", path, "lines", len(a.out), "nops", a.nops)
```

```python
import sys, math, struct
sys.path.insert(0, "gen")
from asmlib import Asm

NAME = "parallel_sum__grouped_kv_mqa__dense_activation_gelu__prompt"
OPT = dict(stop=99, stamps=False)
for a_ in sys.argv[1:]:
    if "=" in a_:
        k_, v_ = a_.split("="); OPT[k_] = int(v_)

def fbits(x): return "0x%08x" % struct.unpack("<I", struct.pack("<f", x))[0]

WS_EPOCH = 0
WS_KVFLAG = 0x1000
WS_HFLAG = 0x2000
WS_K = 0x10000
WS_V = 0x20000
WS_H = 0x100000
H_STRIDE = 0x2C000
WS_O = 0x800000
WS_DBG = 0xA00000
WS_SIZE = 0x1000000
XC = 0; XCS = 1040
RING2 = 66560
KL = 0; VL = 65536; VS = 272
QX = 135168
W2R = 143360
MISC = 159744
RSTD = MISC; KMAX = MISC + 256
LDS_BYTES = 163840
SX, SW, SKVW, SWS, SH, SO, SW2, SWO, SB1, SB2, SOUT = 44, 48, 52, 56, 60, 64, 68, 72, 76, 80, 84
SB2 = SB1
def srd(n): return f"s[{n}:{n+3}]"
sW, sG, sC, sTAG, sKSTR, sOFF, sT0, sT1, sT2, sTILE = 3, 4, 5, 6, 7, 8, 16, 17, 18, 12
sONES, sSELLO, sSELHI, sCNT = 13, 14, 15, 42
sC0, sC1 = 88, 90
sTB, sKIND, sFT, sTT, sKH, sNT2, sTT2 = 92, 93, 94, 95, 96, 97, 98
sEX = 100

a = Asm(); I = a.I
def vr(b, n): return f"v[{b}:{b+n-1}]"
lblc = [0]
def newlabel(p):
    lblc[0] += 1
    return f"L_{p}_{lblc[0]}"

P4FLAG = [False]
DBGMAP = {3: 1, 7: 2, 8: 3, 9: 4, 11: 5, 13: 6, 0: 7}
def dbgstamp(slot):
    a.waitcnt(lg=0)
    I("s_memrealtime s[100:101]"); a.waitcnt(lg=0)
    I("v_mov_b32 v3, s100")
    I("s_mov_b32 s100, exec_lo"); I("s_mov_b32 s101, exec_hi"); I("s_mov_b64 exec, 1")
    I(f"buffer_atomic_umax v3, off, s[{SDBG}:{SDBG+3}], 0 offset:{4*slot}")
    I("v_not_b32 v3, v3")
    I(f"buffer_atomic_umax v3, off, s[{SDBG}:{SDBG+3}], 0 offset:{4*slot + 32}")
    I("s_mov_b64 exec, s[100:101]")
SDBG = 80
def stamp(idx):
    if OPT.get("dbg", 0):
        if idx in DBGMAP and DBGREADY[0]: dbgstamp(DBGMAP[idx])
        return
    if not OPT["stamps"]: return
    if OPT.get("astamps", 0) and idx < 7 and not P4FLAG[0]: return
    a.waitcnt(lg=0)
    for k_, op in enumerate(("s_memtime", "s_memrealtime")):
        I(f"{op} s[100:101]")
        a.waitcnt(lg=0)
        I("v_mov_b32 v3, s100")
        I(f"s_lshl_b32 s100, s2, 3"); I(f"s_add_u32 s100, s100, s{sW}"); I("s_lshl_b32 s100, s100, 7")
        I(f"s_add_u32 s100, s100, {WS_DBG + 4*idx + 64*k_}")
        I(f"buffer_store_dword v3, off, {srd(SWS)}, s100")

DBGREADY = [False]
def mk_srd(n, lo, hi, nbytes):
    I(f"s_mov_b32 s{n}, s{lo}"); I(f"s_mov_b32 s{n+1}, s{hi}")
    I(f"s_mov_b32 s{n+2}, {nbytes}"); I(f"s_mov_b32 s{n+3}, 0x00020000")


NE_OLD = OPT.get("ne_old", 8)
T0 = OPT.get("t0", 8)
TBAR = OPT.get("tbar", 18)
LCNT = MISC + 512
VG = OPT.get("vg", 0)
NSLOT = 6 if VG else 8
KVPOLL = OPT.get("kvpoll", 22)
I("s_cmp_ge_u32 s2, 256")
I("s_cbranch_scc1 L_end")
if OPT["stamps"]:
    I("s_memrealtime s[26:27]"); I("s_memtime s[38:39]"); a.waitcnt(lg=0); I("s_mov_b32 s19, s26"); I("s_mov_b32 s101, s38")
    I("v_mov_b32 v126, s19"); I("v_mov_b32 v127, s101")
if OPT.get("dbg", 0):
    I("s_memrealtime s[26:27]"); a.waitcnt(lg=0); I("v_mov_b32 v126, s26")
I("s_load_dwordx16 s[16:31], s[0:1], 0")
I("s_load_dwordx8 s[32:39], s[0:1], 64")
I("s_load_dwordx2 s[40:41], s[0:1], 96")
I("v_lshrrev_b32 v3, 6, v0")
I("v_and_b32 v1, 63, v0")
I(f"v_readfirstlane_b32 s{sW}, v3")
I("v_lshlrev_b32 v2, 4, v1")
if OPT.get("map", 1) == 0:
    I("s_and_b32 s9, s2, 7"); I("s_lshl_b32 s9, s9, 2"); I("s_bfe_u32 s10, s2, 0x20003"); I(f"s_or_b32 s{sG}, s9, s10")
    I(f"s_lshr_b32 s{sC}, s2, 5")
else:
    I("s_bfe_u32 s9, s2, 0x20001"); I("s_lshl_b32 s9, s9, 3"); I("s_bfe_u32 s10, s2, 0x30003"); I(f"s_or_b32 s{sG}, s9, s10")
    I("s_and_b32 s9, s2, 1"); I("s_lshl_b32 s9, s9, 2"); I("s_lshr_b32 s10, s2, 6"); I(f"s_or_b32 s{sC}, s9, s10")
I("v_lshrrev_b32 v4, 4, v1")
I("v_and_b32 v5, 15, v1")
XR = 32; T = 96
I(f"s_lshl_b32 s9, s{sW}, 2")
I("v_add_u32 v6, s9, v4")
I(f"s_lshl_b32 s10, s{sG}, 6")
I("v_add_u32 v7, s10, v6")
I("v_lshlrev_b32 v7, 10, v7")
I("v_lshl_add_u32 v7, v5, 4, v7")
sBLK = [88, 89, 90, 91]
for k_ in range(4):
    I(f"s_add_u32 s{sBLK[k_]}, s{sC}, {k_}"); I(f"s_and_b32 s{sBLK[k_]}, s{sBLK[k_]}, 3"); I(f"s_lshl_b32 s{sBLK[k_]}, s{sBLK[k_]}, 14")
L_nox = newlabel("nox")
I("v_mov_b32 v12, 0"); I(f"v_mov_b32 v13, {LCNT}")
I("ds_write_b32 v13, v12")
a.barrier()
I(f"s_mov_b32 s{SX+2}, {2048*1024}"); I(f"s_mov_b32 s{SX+3}, 0x00020000")
I(f"s_cmp_ge_u32 s{sW}, 4")
I(f"s_mov_b32 s{SX}, s16"); I(f"s_mov_b32 s{SX+1}, s17")
I(f"s_cbranch_scc1 {L_nox}")
for k_ in range(4):
    for i in range(4):
        I(f"buffer_load_dwordx4 {vr(XR+16*k_+4*i,4)}, v7, {srd(SX)}, s{sBLK[k_]} offen offset:{i*256}")
vm_x = [dict(o) for o in a.vm]
a.label(L_nox); a.vm = []
L_nokvw = newlabel("nokvw")
I(f"s_cmp_lg_u32 s{sW}, 7"); I(f"s_cbranch_scc1 {L_nokvw}")
I("s_setprio 3")
I(f"s_cmp_lt_u32 s{sC}, 4")
I("s_cselect_b32 s9, s20, s22"); I("s_cselect_b32 s10, s21, s23")
mk_srd(SKVW, 9, 10, 16384)
I("v_add_u32 v16, 0x1000, v2"); I("v_add_u32 v17, 0x2000, v2"); I("v_add_u32 v18, 0x3000, v2")
for j in range(4):
    I(f"s_mov_b32 m0, {W2R + j*4096}")
    for i in range(4):
        I(f"buffer_load_dwordx4 {('v2','v16','v17','v18')[j]}, {srd(SKVW)}, 0 offen offset:{i*1024} lds", tag="kvw")
vm_kvw = [dict(o) for o in a.vm]
a.label(L_nokvw); a.vm = []
I(f"s_mov_b32 s{sONES}, 0x3f803f80"); I(f"s_mov_b32 s{sSELLO}, 0x00003f80"); I(f"s_mov_b32 s{sSELHI}, 0x3f800000")
I(f"s_mul_i32 s9, s{sC}, 5"); I(f"s_min_u32 s10, s{sC}, 3"); I("s_add_u32 s9, s9, s10")
I(f"s_sub_u32 s10, s{sW}, 4"); I(f"s_add_u32 s11, s{sW}, 1")
I(f"s_cmp_ge_u32 s{sW}, 4"); I("s_cselect_b32 s10, s10, s11")
I(f"s_cmp_eq_u32 s{sW}, 7"); I("s_cselect_b32 s10, 5, s10")
I(f"s_add_u32 s{sTILE}, s9, s10")
I(f"s_lshl_b32 s9, s{sC}, 1"); I(f"s_add_u32 s9, s9, s{sW}")
I(f"s_cmp_lt_u32 s{sW}, 2"); I(f"s_cselect_b32 s{sTILE}, s9, s{sTILE}")
I("s_mov_b32 s11, 2752"); I("s_cselect_b32 s11, 1024, s11")
I(f"s_mov_b32 s{SW+2}, {512*2752}"); I(f"s_cselect_b32 s{SW+2}, {512*1024}, s{SW+2}")
I(f"s_cselect_b32 s{SW}, s18, s28"); I(f"s_cselect_b32 s{SW+1}, s19, s29")
I(f"s_mov_b32 s{SW+3}, 0x00020000")
I(f"s_cmp_ge_u32 s{sC}, 3"); I("s_cselect_b32 s9, 1, 0"); I(f"s_cmp_eq_u32 s{sW}, 7"); I("s_cselect_b32 s9, s9, 0")
I("s_cmp_eq_u32 s9, 1"); I(f"s_cselect_b32 s{sTILE}, 63, s{sTILE}"); I(f"s_cselect_b32 s{SW+2}, 0, s{SW+2}")
if OPT.get("now", 0): I(f"s_mov_b32 s{SW+2}, 0")
I(f"s_lshl_b32 s{sKSTR}, s11, 4")
I("v_lshrrev_b32 v11, 2, v1")
I("v_mul_lo_u32 v11, v11, s11")
I("v_and_b32 v15, 3, v1")
I("v_lshl_add_u32 v11, v15, 4, v11")
I(f"s_lshl_b32 s9, s{sTILE}, 6")
I("v_add_u32 v11, s9, v11")
sWB = [26, 27, 38, 39]; sRING = 99; sQ = 19
if OPT.get("dbg", 0):
    mk_srd(SDBG, 38, 39, 256); DBGREADY[0] = True
    I("s_mov_b64 exec, 1")
    I(f"buffer_atomic_umax v126, off, s[{SDBG}:{SDBG+3}], 0 offset:0")
    I("v_not_b32 v126, v126")
    I(f"buffer_atomic_umax v126, off, s[{SDBG}:{SDBG+3}], 0 offset:32")
    I("s_mov_b64 exec, -1"); a.vm = []
I("s_mov_b32 s42, s19")
I(f"s_and_b32 s{sQ}, s{sG}, 3")
if OPT.get("noxor", 0): I(f"s_mov_b32 s{sQ}, 0")
I(f"s_lshl_b32 s10, s{sKSTR}, 3")
for b in range(4):
    I(f"s_xor_b32 s9, s{sQ}, {b}"); I(f"s_mul_i32 s{sWB[b]}, s9, s10")
I(f"s_lshl_b32 s{sRING}, s{sW}, 13"); I(f"s_add_u32 s{sRING}, s{sRING}, {RING2}")
WV = 128
def woff(s):
    I(f"s_mul_i32 s{sOFF}, s{sKSTR}, {s % 8}") if s % 8 else None
    I(f"s_add_u32 s{sOFF}, s{sOFF}, s{sWB[s//8]}") if s % 8 else I(f"s_mov_b32 s{sOFF}, s{sWB[s//8]}")
def wslot(s):
    if not VG: return (s % NSLOT)*1024
    return ((s//2) % NSLOT)*1024 if s % 2 == 0 else (NSLOT + (s//2) % 2)*1024
def wdma(s):
    I(f"s_add_u32 m0, s{sRING}, {wslot(s)}")
    if VG: woff(s)
    elif s % 8 == 0: I(f"s_mov_b32 s{sOFF}, s{sWB[s//8]}")
    else: I(f"s_add_u32 s{sOFF}, s{sOFF}, s{sKSTR}")
    I(f"buffer_load_dwordx4 v11, {srd(SW)}, s{sOFF} offen lds", tag=f"w_{s}")
def wvg(s):
    woff(s)
    I(f"buffer_load_dwordx4 {vr(WV+4*(s//2),4)}, v11, {srd(SW)}, s{sOFF} offen")
def w_early_dma():
    for s in (range(0, 2*NSLOT, 2) if VG else range(NSLOT)): wdma(s)
def w_early_vg():
    if VG:
        for s in range(1, 32, 2): wvg(s)
L_noearly = newlabel("noearly")
I(f"s_cmp_eq_u32 s{sW}, 7"); I(f"s_cbranch_scc1 {L_noearly}")
I(f"s_cmp_lt_u32 s{sW}, 4"); I(f"s_cbranch_scc1 {L_noearly}")
if OPT.get("touch", 0):
    L_tq = newlabel("tq"); L_td = newlabel("td")
    NSH = 8 if OPT.get("map", 1) else 4
    I(f"s_and_b32 s9, s{sG}, {NSH-1}"); I(f"s_lshl_b32 s9, s9, {6 if NSH == 8 else 7}"); I("v_add_u32 v20, s9, v1")
    I(f"s_cmp_eq_u32 s{sW}, 6"); I(f"s_cbranch_scc1 {L_tq}")
    I("v_mul_u32_u24 v20, 2752, v20")
    I(f"s_mul_i32 s9, s{sC}, 5"); I(f"s_min_u32 s10, s{sC}, 3"); I("s_add_u32 s9, s9, s10"); I("s_lshl_b32 s9, s9, 6")
    I(f"s_and_b32 s10, s{sW}, 1"); I("s_mul_i32 s10, s10, 252"); I("s_add_u32 s9, s9, s10")
    for r_ in range(8 // NSH):
        I(f"buffer_load_dword v21, v20, {srd(SW)}, s9 offen"); I(f"buffer_load_dword v22, v20, {srd(SW)}, s9 offen offset:128")
        if NSH == 4 and r_ == 0: I(f"s_add_u32 s9, s9, {64*2752}")
    I(f"s_branch {L_td}")
    a.label(L_tq)
    mk_srd(SKVW, 18, 42, 512*1024)
    I("v_lshlrev_b32 v20, 10, v20"); I(f"s_lshl_b32 s9, s{sC}, 7")
    for r_ in range(8 // NSH):
        I(f"buffer_load_dword v21, v20, {srd(SKVW)}, s9 offen")
        if NSH == 4 and r_ == 0: I(f"s_add_u32 s9, s9, {64*1024}")
    a.label(L_td); a.vm = []
w_early_dma()
vm_w = [dict(o) for o in a.vm]
w_early_vg()
a.label(L_noearly); a.vm = []
mk_srd(SWS, 40, 41, WS_SIZE)
I(f"s_and_b32 s9, s{sC}, 3"); I(f"s_lshl_b32 s10, s{sG}, 2"); I(f"s_add_u32 s{sTB}, s9, s10"); I(f"s_lshr_b32 s{sKIND}, s{sC}, 2")
I(f"s_bfe_u32 s{sFT}, s{sW}, 0x10001"); I(f"s_and_b32 s{sTT}, s{sW}, 1"); I(f"s_lshr_b32 s{sKH}, s{sW}, 2")
I(f"s_and_b32 s{sNT2}, s{sW}, 1"); I(f"s_bfe_u32 s{sTT2}, s{sW}, 0x10001")
I(f"s_lshl_b32 s9, s{sG}, 16"); I(f"s_add_u32 s9, s9, {WS_O}")
I("s_add_u32 s9, s40, s9"); I("s_addc_u32 s10, s41, 0")
mk_srd(SO, 9, 10, 65536)
sOSLOT = 43
I(f"s_lshl_b32 s9, s{sC}, 2"); I(f"s_lshl_b32 s10, s{sFT}, 1"); I("s_add_u32 s9, s9, s10"); I(f"s_add_u32 s9, s9, s{sKH}")
I("s_lshl_b32 s9, s9, 1"); I(f"s_add_u32 s9, s9, s{sTT}"); I(f"s_lshl_b32 s{sOSLOT}, s9, 10")
def early_stamp():
    if OPT["stamps"]:
        I(f"s_lshl_b32 s100, s2, 3"); I(f"s_add_u32 s100, s100, s{sW}"); I("s_lshl_b32 s100, s100, 7")
        I(f"s_add_u32 s100, s100, {WS_DBG + 4*15}")
        I(f"buffer_store_dword v127, off, {srd(SWS)}, s100")
        I(f"buffer_store_dword v126, off, {srd(SWS)}, s100 offset:64")
I(f"s_load_dword s{sTAG}, s[40:41], {WS_EPOCH}")
early_stamp()
stamp(0)
L_kvw = newlabel("kvwave"); L_B = newlabel("barB")
I(f"s_cmp_eq_u32 s{sW}, 7"); I(f"s_cbranch_scc1 {L_kvw}")
I(f"s_cmp_ge_u32 s{sW}, 4"); I(f"s_cbranch_scc1 {L_B}")
st0 = a.save()
a.vm = vm_x

I(f"v_mul_u32_u24 v8, {XCS}, v6")
I("v_lshl_add_u32 v8, v5, 4, v8")
I("v_lshlrev_b32 v9, 2, v6")
I(f"v_add_u32 v9, {RSTD}, v9")
def dpp_allreduce_add(r, t):
    I(f"v_add_f32_dpp v{t}, v{r}, v{r} row_ror:8 row_mask:0xf bank_mask:0xf")
    I(f"v_add_f32_dpp v{r}, v{t}, v{t} row_ror:4 row_mask:0xf bank_mask:0xf")
    I(f"v_add_f32_dpp v{t}, v{r}, v{r} row_ror:2 row_mask:0xf bank_mask:0xf")
    I(f"v_add_f32_dpp v{r}, v{t}, v{t} row_ror:1 row_mask:0xf bank_mask:0xf")
def dpp_allreduce_add2(r, t, r2, t2):
    for ro in (8, 4, 2, 1):
        I(f"v_add_f32_dpp v{t}, v{r}, v{r} row_ror:{ro} row_mask:0xf bank_mask:0xf")
        I(f"v_add_f32_dpp v{t2}, v{r2}, v{r2} row_ror:{ro} row_mask:0xf bank_mask:0xf")
        r, t = t, r; r2, t2 = t2, r2
def ln_sum(k_, a0, a1):
    X = XR + 16*k_
    I(f"v_dot2_f32_bf16 v{a0}, v{X}, s{sONES}, 0")
    I(f"v_dot2_f32_bf16 v{a1}, v{X+1}, s{sONES}, 0")
    for i in range(2, 16):
        r = a0 if i % 2 == 0 else a1
        I(f"v_dot2_f32_bf16 v{r}, v{X+i}, s{sONES}, v{r}")
def ln_centre(k_, mu, ad):
    X = XR + 16*k_
    for q in range(5):
        if q < 4:
            tb = T + 16 + 8*(q % 2)
            for i in range(4):
                I(f"v_dot2_f32_bf16 v{tb+2*i}, v{X+4*q+i}, s{sSELLO}, v{mu}")
                I(f"v_dot2_f32_bf16 v{tb+2*i+1}, v{X+4*q+i}, s{sSELHI}, v{mu}")
        else:
            I(f"v_dot2_f32_bf16 v{T+12}, v{X}, v{X}, 0")
            I(f"v_dot2_f32_bf16 v{T+13}, v{X+1}, v{X+1}, 0")
            I(f"v_dot2_f32_bf16 v{T+12}, v{X+2}, v{X+2}, v{T+12}")
        if q > 0:
            pb = T + 16 + 8*((q-1) % 2)
            for i in range(4):
                I(f"v_cvt_pk_bf16_f32 v{X+4*(q-1)+i}, v{pb+2*i}, v{pb+2*i+1}")
            I(f"ds_write_b128 v{ad}, {vr(X+4*(q-1),4)} offset:{(q-1)*256}")
    for i in range(3, 16):
        r = T+12 if i % 2 == 0 else T+13
        I(f"v_dot2_f32_bf16 v{r}, v{X+i}, v{X+i}, v{r}")
def ln_set(k_, nxt):
    mu, ad, ar = T+2, T+5, T+6
    I(f"s_lshr_b32 s9, s{sBLK[k_]}, 14"); I(f"s_mul_i32 s10, s9, {16*XCS}"); I(f"v_add_u32 v{ad}, s10, v8")
    I(f"s_lshl_b32 s9, s9, 6"); I(f"v_add_u32 v{ar}, s9, v9")
    I(f"v_mul_f32 v{mu}, {fbits(-1.0/512)}, v{T}")
    ln_centre(k_, mu, ad)
    if nxt is not None:
        ln_sum(nxt, T, T+1)
        I(f"v_add_f32 v{T+12}, v{T+12}, v{T+13}")
        I(f"v_add_f32 v{T}, v{T}, v{T+1}")
        dpp_allreduce_add2(T+12, T+13, T, T+1)
    else:
        I(f"v_add_f32 v{T+12}, v{T+12}, v{T+13}")
        dpp_allreduce_add(T+12, T+13)
    I(f"v_mov_b32 v{T+13}, {fbits(1e-5)}")
    I(f"v_fmac_f32 v{T+13}, {fbits(1.0/512)}, v{T+12}")
    I(f"v_rsq_f32 v{T+12}, v{T+13}")
    I(f"ds_write_b32 v{ar}, v{T+12}")
ln_sum(0, T, T+1)
I(f"v_add_f32 v{T}, v{T}, v{T+1}")
dpp_allreduce_add(T, T+1)
ln_set(0, None)
I("v_mov_b32 v12, 1"); I(f"v_mov_b32 v13, {LCNT}")
I("s_mov_b64 exec, 1"); I("ds_add_u32 v13, v12"); I("s_mov_b64 exec, -1")
stamp(1)
ln_sum(1, T, T+1)
I(f"v_add_f32 v{T}, v{T}, v{T+1}")
dpp_allreduce_add(T, T+1)
LNW = OPT.get("lnw", 3)
for k_ in range(1, 4):
    if k_ == LNW: w_early_dma()
    ln_set(k_, k_ + 1 if k_ < 3 else None)
I(f"s_branch {L_B}")

a.label(L_kvw); a.restore(st0)
WR = 128
L_kvV = newlabel("kvV"); L_kvpub = newlabel("kvpub"); L_kp = newlabel("kvpoll"); L_kpd = newlabel("kvpolld")
a.vm = vm_kvw
for i in range(4): I(f"v_mov_b32 v{28+i}, -1")
I("v_add_u32 v16, 0x1000, v2")
I(f"s_lshl_b32 s9, s{sC}, 13")
for i in range(8):
    I(f"buffer_store_dwordx4 v[28:31], {'v2' if i < 4 else 'v16'}, {srd(SO)}, s9 offen offset:{(i%4)*1024} sc1")
w_early_dma()
I(f"s_and_b32 s9, s{sC}, 3"); I("s_lshl_b32 s9, s9, 4")
I("v_add_u32 v12, s9, v5")
I(f"v_mul_u32_u24 v13, {XCS}, v12")
I("v_lshl_add_u32 v13, v4, 4, v13")
I("v_lshrrev_b32 v14, 2, v5")
I("v_lshl_add_u32 v14, v4, 3, v14")
I("v_lshlrev_b32 v14, 5, v14")
I("v_and_b32 v15, 3, v1")
I("v_lshl_add_u32 v14, v15, 3, v14")
I(f"v_add_u32 v14, {W2R}, v14")
a.wait_vm_tag("kvw")
for s in range(16):
    I(f"ds_read_b64_tr_b16 {vr(WR+8*s+4,2)}, v14 offset:{s*1024}")
    I(f"ds_read_b64_tr_b16 {vr(WR+8*s+6,2)}, v14 offset:{s*1024+128}")
I(f"v_mov_b32 v19, {LCNT}")
I(f"s_mov_b32 s{sCNT}, 0x100000")
a.label(L_kp)
I("ds_read_b32 v20, v19")
I("v_cmp_gt_u32 vcc, 4, v20")
I("s_nop 4")
I(f"s_cbranch_vccz {L_kpd}")
I(f"s_sub_u32 s{sCNT}, s{sCNT}, 1"); I(f"s_cmp_lg_u32 s{sCNT}, 0"); I(f"s_cbranch_scc1 {L_kp}")
a.label(L_kpd)
stamp(1)
for s in range(16): I(f"ds_read_b128 {vr(WR+8*s,4)}, v13 offset:{s*64}")
KD = 88
def kv_mm(kind):
    for s in range(16):
        b = WR + 8*s
        c_ = "0" if s == 0 else vr(KD, 4)
        if kind == 0: I(f"v_mfma_f32_16x16x32_bf16 {vr(KD,4)}, {vr(b+4,4)}, {vr(b,4)}, {c_}")
        else:         I(f"v_mfma_f32_16x16x32_bf16 {vr(KD,4)}, {vr(b,4)}, {vr(b+4,4)}, {c_}")
I("v_bfe_u32 v20, v1, 4, 1"); I("v_lshrrev_b32 v21, 5, v1")
I(f"s_cmp_lg_u32 s{sKIND}, 0")
I(f"s_cbranch_scc1 {L_kvV}")
st_kv = a.save()
I("v_lshlrev_b32 v16, 2, v12"); I(f"v_add_u32 v16, {RSTD}, v16")
I(f"ds_read_b32 v17, v16")
I(f"s_lshr_b32 s9, s{sTB}, 1"); I("s_lshl_b32 s9, s9, 10"); I(f"s_and_b32 s10, s{sTB}, 1"); I("s_lshl_b32 s10, s10, 8")
I("s_add_u32 s9, s9, s10"); I(f"s_add_u32 s9, s9, {WS_K}")
I("v_lshlrev_b32 v20, 9, v20"); I("v_lshl_add_u32 v20, v5, 4, v20"); I("v_lshl_add_u32 v20, v21, 3, v20")
kv_mm(0)
for r in range(4): I(f"v_mul_f32 v{KD+r}, v{KD+r}, v17")
I(f"v_cvt_pk_bf16_f32 v18, v{KD}, v{KD+1}"); I(f"v_cvt_pk_bf16_f32 v19, v{KD+2}, v{KD+3}")
I(f"buffer_store_dwordx2 v[18:19], v20, {srd(SWS)}, s9 offen sc1", tag="kvst")
I("v_dot2_f32_bf16 v22, v18, v18, 0"); I("v_dot2_f32_bf16 v22, v19, v19, v22")
I("v_mov_b32 v23, v22"); I("v_permlane32_swap_b32 v22, v23"); I("v_add_f32 v22, v22, v23")
I("v_mov_b32 v23, v22"); I("v_permlane16_swap_b32 v22, v23"); I("v_add_f32 v22, v22, v23")
for ro in (8, 4, 2, 1):
    I(f"v_max_f32_dpp v23, v22, v22 row_ror:{ro} row_mask:0xf bank_mask:0xf"); I("v_mov_b32 v22, v23")
I("v_mov_b32 v63, v22")
I(f"s_branch {L_kvpub}")
a.label(L_kvV); a.restore(st_kv)
I(f"s_and_b32 s9, s{sC}, 3"); I("s_lshl_b32 s9, s9, 6"); I(f"s_add_u32 s9, s9, {RSTD}")
I("v_lshl_add_u32 v16, v4, 4, s9")
I(f"ds_read_b128 v[28:31], v16")
I(f"s_lshl_b32 s9, s{sTB}, 9"); I(f"s_add_u32 s9, s9, {WS_V}")
I("v_lshlrev_b32 v20, 8, v20"); I("v_lshl_add_u32 v20, v5, 4, v20"); I("v_lshl_add_u32 v20, v21, 3, v20")
kv_mm(1)
for r in range(4): I(f"v_mul_f32 v{KD+r}, v{KD+r}, v{28+r}")
I(f"v_cvt_pk_bf16_f32 v18, v{KD}, v{KD+1}"); I(f"v_cvt_pk_bf16_f32 v19, v{KD+2}, v{KD+3}")
I(f"buffer_store_dwordx2 v[18:19], v20, {srd(SWS)}, s9 offen sc1", tag="kvst")
I("v_mov_b32 v63, 0")
a.label(L_kvpub); a.flush_state(2)
a.label(L_B); a.flush_state(2); a.lg = []
a.vm = vm_w; a.smem_pending = {f"s{sTAG}"}; a.smem_out = True
stamp(2)
a.barrier()
I(f"s_mul_i32 s{sTAG}, s{sTAG}, 0x9E3779B1")
I(f"s_add_u32 s{sTAG}, s{sTAG}, 0x7F4A7C15")
stamp(3)
L_np = newlabel("nopub")
I(f"s_cmp_lg_u32 s{sW}, 7"); I(f"s_cbranch_scc1 {L_np}")
st = a.save()
a.force_wait(vm=0)
I(f"v_mov_b32 v62, s{sTAG}")
I(f"s_lshl_b32 s9, s{sTB}, 1"); I(f"s_add_u32 s9, s9, s{sKIND}"); I("s_lshl_b32 s9, s9, 3"); I(f"s_add_u32 s9, s9, {WS_KVFLAG}")
I("s_mov_b64 exec, 1")
I(f"buffer_store_dwordx2 v[62:63], off, {srd(SWS)}, s9 sc1")
I("s_mov_b64 exec, -1")
I("s_setprio 0")
a.label(L_np); a.restore(st)
stamp(5)
L_vgdone = newlabel("vgdone")
I(f"s_sub_u32 s9, s{sW}, 4"); I("s_cmp_lt_u32 s9, 3"); I(f"s_cbranch_scc1 {L_vgdone}")
w_early_vg()
a.label(L_vgdone)

ACC = 96
I("v_and_b32 v15, 3, v1"); I("v_lshlrev_b32 v13, 3, v15")
I("v_bfe_u32 v15, v1, 2, 2"); I("v_lshl_add_u32 v13, v15, 6, v13")
I("v_bfe_u32 v15, v1, 4, 1"); I("v_lshl_add_u32 v13, v15, 5, v13")
I("v_mov_b32 v17, v13")
I("v_lshrrev_b32 v16, 5, v1")
I("v_lshl_add_u32 v13, v16, 9, v13"); I(f"v_add_u32 v13, s{sRING}, v13")
I("v_and_b32 v18, 31, v1")
I(f"v_mul_u32_u24 v14, {XCS}, v18"); I("v_lshl_add_u32 v14, v16, 4, v14")
vB = [6, 7, 8, 9]
for b in range(4):
    I(f"s_xor_b32 s9, s{sQ}, {b}"); I("s_lshl_b32 s9, s9, 8"); I(f"v_add_u32 v{vB[b]}, s9, v14")
I(f"v_add_u32 v12, s{sRING}, v2")
def p2_stage(s):
    I(f"ds_write_b128 v12, {vr(WV+4*(s//2),4)} offset:{wslot(s)}")
NBUF = 3
AF = 128; BF = 140
def p2_readB(s):
    bb = BF + 8*(s % NBUF)
    I(f"ds_read_b128 {vr(bb,4)}, v{vB[s//8]} offset:{(s%8)*32}")
    I(f"ds_read_b128 {vr(bb+4,4)}, v{vB[s//8]} offset:{32*XCS + (s%8)*32}")
def p2_readA(s):
    ab = AF + 4*(s % NBUF)
    a.wait_vm_tag(f"w_{s}")
    I(f"ds_read_b64_tr_b16 {vr(ab,2)}, v13 offset:{wslot(s)}")
    I(f"ds_read_b64_tr_b16 {vr(ab+2,2)}, v13 offset:{wslot(s)+256}")
def p2_mma(s, tt):
    ab = AF + 4*(s % NBUF); bb = BF + 8*(s % NBUF)
    c_ = "0" if s == 0 else vr(ACC+16*tt, 16)
    I(f"v_mfma_f32_32x32x16_bf16 {vr(ACC+16*tt,16)}, {vr(ab,4)}, {vr(bb+4*tt,4)}, {c_}")

def poll(load_fn, check_fn, name, sleep=2, keep=0):
    L = newlabel(name); Ld = newlabel(name + "ok")
    I(f"s_mov_b32 s{sCNT}, 0x4000")
    a.label(L)
    load_fn()
    a.force_wait(vm=0)
    check_fn()
    I("s_nop 4")
    I(f"s_cbranch_vccz {Ld}")
    if sleep: I(f"s_sleep {sleep}")
    I(f"s_sub_u32 s{sCNT}, s{sCNT}, 1")
    I(f"s_cmp_lg_u32 s{sCNT}, 0")
    I(f"s_cbranch_scc1 {L}")
    a.label(Ld)
KVS = 192
sR = 20
def kv_flag_load():
    I(f"s_add_u32 s{sR}, s{sC}, s{sG}"); I(f"s_and_b32 s{sR}, s{sR}, 7"); I(f"s_xor_b32 s{sR}, s{sR}, s{sW}")
    I("v_bfe_u32 v19, v1, 2, 1"); I("v_lshlrev_b32 v19, 10, v19")
    I("v_bfe_u32 v56, v1, 3, 2"); I("v_lshl_add_u32 v19, v56, 8, v19")
    I("v_and_b32 v56, 3, v1"); I("v_lshl_add_u32 v19, v56, 3, v19")
    I(f"s_lshl_b32 s21, s{sR}, 5"); I(f"s_add_u32 s21, s21, {WS_KVFLAG}")
    I(f"buffer_load_dwordx2 v[60:61], v19, {srd(SWS)}, s21 offen sc1")
def kv_fetch():
    L = newlabel("kvok")
    I(f"v_cmp_ne_u32 vcc, s{sTAG}, v60")
    I("s_nop 4")
    I(f"s_cbranch_vccz {L}")
    st = a.save()
    poll(lambda: I(f"buffer_load_dwordx2 v[60:61], v19, {srd(SWS)}, s21 offen sc1"),
         lambda: I(f"v_cmp_ne_u32 vcc, s{sTAG}, v60"), "pkv")
    a.label(L); a.restore(st)
    I(f"s_lshl_b32 s9, s{sR}, 10"); I(f"s_add_u32 s23, s9, {WS_V}"); I(f"s_add_u32 s22, s9, {WS_K}")
    I("v_add_u32 v56, 0x8000, v2")
def kv_load(i, which):
    so = "s22" if which == 0 else "s23"
    I(f"buffer_load_dwordx4 {vr(KVS+8*i+4*which,4)}, {'v2' if i % 2 == 0 else 'v56'}, {srd(SWS)}, {so} offen sc1")
    if i % 2 == 1: I(f"s_add_u32 {so}, {so}, 8192")
def kv_publish(nyounger):
    L = newlabel("nopub")
    I(f"s_cmp_lg_u32 s{sW}, 7"); I(f"s_cbranch_scc1 {L}")
    st = a.save()
    a.raw(f"    s_waitcnt vmcnt({nyounger})")
    I(f"v_mov_b32 v62, s{sTAG}")
    I(f"s_lshl_b32 s9, s{sTB}, 1"); I(f"s_add_u32 s9, s9, s{sKIND}"); I("s_lshl_b32 s9, s9, 3"); I(f"s_add_u32 s9, s9, {WS_KVFLAG}")
    I("s_mov_b64 exec, 1")
    I(f"buffer_store_dwordx2 v[62:63], off, {srd(SWS)}, s9 sc1")
    I("s_mov_b64 exec, -1")
    a.label(L); a.restore(st); a.slot += 0
n_after_B = [2 if OPT["stamps"] else 0]
if OPT["stamps"] and not OPT.get("astamps", 0): n_after_B[0] = 4 + 16
else: n_after_B[0] = 16
if OPT.get("p2prio", 0):
    L_pp = newlabel("pp")
    I(f"s_and_b32 s9, s{sW}, 6"); I("s_cmp_lg_u32 s9, 4"); I(f"s_cbranch_scc1 {L_pp}"); I("s_setprio 1"); a.label(L_pp)
p2_readB(0); p2_readA(0); p2_readB(1); p2_readA(1)
mk_srd(SB1, 30, 31, 2752)
I("v_lshlrev_b32 v19, 2, v18"); I(f"v_add_u32 v19, {RSTD}, v19")
I(f"ds_read_b32 v20, v19"); I(f"ds_read_b32 v22, v19 offset:128")
for s in range(32):
    p2_mma(s, 0)
    if s + NSLOT < 32: wdma(s + NSLOT)
    if KVPOLL < s <= KVPOLL + 8: kv_load(s - KVPOLL - 1, 0)
    if s + 2 < 32: p2_readB(s + 2)
    p2_mma(s, 1)
    if s + 2 < 32: p2_readA(s + 2)
    if KVPOLL < s <= KVPOLL + 8: kv_load(s - KVPOLL - 1, 1)
    if s == KVPOLL - 4: kv_flag_load()
    if s == KVPOLL: kv_fetch()
    if s == 16:
        I(f"s_lshl_b32 s9, s{sTILE}, 6")
        I("v_lshl_add_u32 v10, v16, 3, s9")
        for q in range(4):
            I(f"buffer_load_dwordx2 {vr(24+2*q,2)}, v10, {srd(SB1)}, 0 offen offset:{16*q}")
stamp(4)
for ro in (8, 4, 2, 1):
    I(f"v_max_f32_dpp v60, v61, v61 row_ror:{ro} row_mask:0xf bank_mask:0xf"); I("v_mov_b32 v61, v60")
I("v_permlane16_swap_b32 v60, v61"); I("v_max_f32 v61, v60, v61")
I(f"s_lshl_b32 s11, s{sW}, 2"); I(f"s_add_u32 s11, s11, {KMAX}"); I("v_mov_b32 v60, s11")
I(f"ds_write_b32 v60, v61")
I(f"s_mul_i32 s9, s{sG}, {H_STRIDE}"); I(f"s_add_u32 s9, s9, {WS_H}")
I("s_add_u32 s9, s40, s9"); I("s_addc_u32 s10, s41, 0")
mk_srd(SH, 9, 10, 86*2048)
L_epf = newlabel("epffn"); L_epdone = newlabel("epdone")
I(f"s_cmp_ge_u32 s{sW}, 2")
I(f"s_cbranch_scc1 {L_epf}")
st_ep = a.save()
QS = 0.25 * math.log2(math.e)
I(f"v_mul_f32 v20, {fbits(QS)}, v20"); I(f"v_mul_f32 v22, {fbits(QS)}, v22")
I(f"s_lshl_b32 s9, s{sW}, 12"); I(f"s_add_u32 s9, s9, {QX}")
I("v_add_u32 v19, s9, v2")
for tt in range(2):
    rs = 20 + 2*tt
    for p in range(8):
        r = ACC + 16*tt + 2*p
        I(f"v_pk_mul_f32 {vr(r,2)}, {vr(r,2)}, {vr(rs,2)} op_sel_hi:[1,0]")
    for p in range(8):
        r = ACC + 16*tt + 2*p
        I(f"v_cvt_pk_bf16_f32 v{32+8*tt+p}, v{r}, v{r+1}")
    for x in range(2):
        I(f"ds_write_b128 v19, {vr(32+8*tt+4*x,4)} offset:{(tt*2+x)*1024}")
I("s_mov_b32 s9, 0x7fff0000")
for i in range(4): I(f"buffer_store_dwordx4 v[32:35], v2, {srd(SH)}, s9 offen sc1", tag="hst")
vm_q = [dict(o) for o in a.vm]
I(f"s_branch {L_epdone}")
a.label(L_epf); a.restore(st_ep)
C0 = -2.0 * math.sqrt(2.0/math.pi) * math.log2(math.e)
C1 = C0 * 0.044715
I(f"s_mov_b32 s{sC1}, {fbits(C1)}"); I(f"s_mov_b32 s{sC1+1}, {fbits(C1)}")
B1 = 32
for q in range(4):
    for d in range(2):
        I(f"v_lshlrev_b32 v{B1+4*q+2*d}, 16, v{24+2*q+d}")
        I(f"v_and_b32 v{B1+4*q+2*d+1}, 0xffff0000, v{24+2*q+d}")
I(f"v_mov_b32 v48, {fbits(C0)}"); I(f"v_mov_b32 v49, {fbits(C0)}")
I(f"s_lshl_b32 s9, s{sTILE}, 12")
def gelu8(r, rs, b, outr):
    t = 52
    for p in range(4): I(f"v_pk_fma_f32 {vr(r+2*p,2)}, {vr(r+2*p,2)}, {vr(rs,2)}, {vr(b+2*p,2)} op_sel_hi:[1,0,1]")
    for p in range(4): I(f"v_pk_mul_f32 {vr(t+2*p,2)}, {vr(r+2*p,2)}, {vr(r+2*p,2)}")
    for p in range(4): I(f"v_pk_fma_f32 {vr(t+2*p,2)}, {vr(t+2*p,2)}, s[{sC1}:{sC1+1}], v[48:49]")
    for p in range(4): I(f"v_pk_mul_f32 {vr(t+2*p,2)}, {vr(t+2*p,2)}, {vr(r+2*p,2)}")
    for i in range(8): I(f"v_exp_f32 v{t+i}, v{t+i}")
    for p in range(4): I(f"v_pk_add_f32 {vr(t+2*p,2)}, {vr(t+2*p,2)}, 1.0 op_sel_hi:[1,0]")
    for i in range(8): I(f"v_rcp_f32 v{t+i}, v{t+i}")
    for p in range(4): I(f"v_pk_mul_f32 {vr(t+2*p,2)}, {vr(t+2*p,2)}, {vr(r+2*p,2)}")
    for p in range(4): I(f"v_cvt_pk_bf16_f32 v{outr+p}, v{t+2*p}, v{t+2*p+1}")
for tt in range(2):
    for u in range(2):
        o_ = 64 + 4*(2*tt+u)
        gelu8(ACC+16*tt+8*u, 20+2*tt, B1+8*u, o_)
        I(f"buffer_store_dwordx4 {vr(o_,4)}, v2, {srd(SH)}, s9 offen offset:{u*2048 + tt*1024} sc1", tag="hst")
a.label(L_epdone); a.flush_state(2); a.lg = []
a.vm = vm_q
stamp(6)

vSK, vSV = 184, 186
I(f"s_lshl_b32 s11, s{sR}, 10"); I(f"v_add_u32 v{vSK}, s11, v2"); I(f"v_add_u32 v{vSK+1}, 0x8000, v{vSK}")
I(f"s_mul_i32 s11, s{sR}, {4*VS}"); I(f"s_add_u32 s11, s11, {VL}")
I(f"v_mul_u32_u24 v25, {VS}, v4"); I("v_lshl_add_u32 v25, v5, 4, v25"); I(f"v_add_u32 v{vSV}, s11, v25"); I(f"v_add_u32 v{vSV+1}, {32*4*VS}, v{vSV}")
def kv_stage(i, which):
    if which == 0: return f"ds_write_b128 v{vSK + i % 2}, {vr(KVS+8*i,4)} offset:{(i//2)*8192}"
    return f"ds_write_b128 v{vSV + i % 2}, {vr(KVS+8*i+4,4)} offset:{(i//2)*8*4*VS}"
I(f"s_mul_i32 s11, s{sW}, {16*2*VS}"); I(f"s_add_u32 s11, s11, {VL}")
I(f"v_mul_u32_u24 v26, {VS}, v18"); I("v_add_u32 v26, s11, v26")
for i in range(4): I(f"v_mov_b32 v{28+i}, s{sONES}")
QA, QB, KF, V1, V2 = 4, 8, 12, 16, 20
CA, CB, SA, SB, OA, OB = 32, 48, 64, 80, 96, 112
ACC2, A2, B2, XRES, BB2 = 192, 128, 136, 160, 164
vKA, vVA, vTR = 24, 25, 26
vLP, vHH, vJJ = 188, 189, 190
I("v_mov_b32 v160, v17"); I("v_mov_b32 v161, v16"); I("v_mov_b32 v162, v18")
I(f"s_and_b32 s11, s{sW}, 3"); I("s_lshl_b32 s11, s11, 11"); I(f"s_add_u32 s11, s11, {QX}")
I("v_add_u32 v165, s11, v2")
I(f"v_mov_b32 v167, {KMAX}")
a.barrier()
I(f"ds_write_b128 v26, v[28:31] offset:256")
I(f"ds_read_b128 {vr(QA,4)}, v165"); I(f"ds_read_b128 {vr(QB,4)}, v165 offset:1024")
I(f"ds_read_b128 v[168:171], v167"); I(f"ds_read_b128 v[172:175], v167 offset:16")
for i in range(2):
    for wh in range(2): I(kv_stage(i, wh))
I("v_max3_f32 v168, v168, v169, v170"); I("v_max3_f32 v172, v172, v173, v174"); I("v_max3_f32 v168, v168, v171, v175")
I("v_max_f32 v168, v168, v172")
for (q, t) in ((QA, 176), (QB, 178)):
    I(f"v_dot2_f32_bf16 v{t}, v{q}, v{q}, 0")
    for i in range(1, 4): I(f"v_dot2_f32_bf16 v{t}, v{q+i}, v{q+i}, v{t}")
for t in (176, 178):
    I(f"v_mov_b32 v{t+1}, v{t}"); I(f"v_permlane32_swap_b32 v{t}, v{t+1}"); I(f"v_add_f32 v{t}, v{t}, v{t+1}")
    I(f"v_mul_f32 v{t}, v{t}, v168"); I(f"v_sqrt_f32 v{t}, v{t}")
I("v_max_f32 v180, v176, v178")
for i in range(16):
    I(f"v_sub_f32 v{CA+i}, 0, v176"); I(f"v_sub_f32 v{CB+i}, 0, v178")
I(f"v_cmp_nge_f32 vcc, {fbits(50.0)}, v180")
I(f"s_lshl_b32 s11, s{sKH}, 15"); I(f"v_add_u32 v163, s11, v2")
I(f"s_mul_i32 s11, s{sKH}, {64*2*VS}"); I(f"s_add_u32 s11, s11, {VL}")
I(f"v_min_u32 v164, 16, v162"); I(f"v_lshlrev_b32 v164, 4, v164")
I(f"v_mul_u32_u24 v183, {VS}, v161"); I(f"v_add3_u32 v164, v164, v183, s11")
if OPT.get("zrows", 1):
    I("v_and_b32 v183, 27, v162"); I("v_cmp_lt_u32 s[20:21], 16, v183")
    I("v_mov_b32 v183, 0x80000"); I("v_cndmask_b32 v164, v164, v183, s[20:21]")
def publish_h():
    L = newlabel("nohf"); L2 = newlabel("noep")
    a.wait_vm_tag("hst")
    vm_keep = [dict(o) for o in a.vm]
    I(f"v_mov_b32 v171, s{sTAG}")
    I("s_mov_b64 exec, 1")
    I(f"s_cmp_lt_u32 s{sW}, 2"); I(f"s_cbranch_scc1 {L}")
    I(f"s_lshl_b32 s9, s{sG}, 8"); I(f"s_lshl_b32 s10, s{sTILE}, 2"); I("s_add_u32 s9, s9, s10"); I(f"s_add_u32 s9, s9, {WS_HFLAG}")
    I(f"buffer_store_dword v171, off, {srd(SWS)}, s9 sc1")
    a.label(L)
    I("s_or_b32 s11, s2, s%d" % sW); I("s_cmp_lg_u32 s11, 0"); I(f"s_cbranch_scc1 {L2}")
    I(f"buffer_store_dword v171, off, {srd(SWS)}, 0 offset:{WS_EPOCH} sc1")
    a.label(L2)
    I("s_mov_b64 exec, -1")
    a.vm = vm_keep
a.barrier()
I(f"v_mov_b32 v{vKA}, v163"); I(f"v_mov_b32 v{vVA}, v164")
I(f"v_mov_b32 v{vLP}, v160"); I(f"v_mov_b32 v{vHH}, v161"); I(f"v_mov_b32 v{vJJ}, v162")
I(f"ds_read_b128 {vr(KF,4)}, v{vKA} offset:{KL}")
L_fast = newlabel("fast"); L_slow = newlabel("slowloop")
I(f"s_cbranch_vccz {L_fast}")
st_f = a.save()
I(f"v_mov_b32 v176, {fbits(-3.0e38)}"); I(f"v_mov_b32 v178, {fbits(-3.0e38)}")
I(f"s_mov_b32 s10, {WS_K}"); I("s_mov_b32 s11, 64")
a.label(L_slow); a.flush_state(16)
I(f"buffer_load_dwordx4 {vr(V1,4)}, v2, {srd(SWS)}, s10 offen sc1")
a.force_wait(vm=0)
I(f"v_mfma_f32_32x32x16_bf16 {vr(SA,16)}, {vr(V1,4)}, {vr(QA,4)}, 0")
I(f"v_mfma_f32_32x32x16_bf16 {vr(SB,16)}, {vr(V1,4)}, {vr(QB,4)}, 0")
I("s_add_u32 s10, s10, 1024")
for (S_, t) in ((SA, 176), (SB, 178)):
    for i in range(8): I(f"v_max3_f32 v{t}, v{t}, v{S_+2*i}, v{S_+2*i+1}")
I("s_sub_u32 s11, s11, 1"); I("s_cmp_lg_u32 s11, 0"); I(f"s_cbranch_scc1 {L_slow}")
for t in (176, 178):
    I(f"v_mov_b32 v{t+1}, v{t}"); I(f"v_permlane32_swap_b32 v{t}, v{t+1}"); I(f"v_max_f32 v{t}, v{t}, v{t+1}")
for i in range(16):
    I(f"v_sub_f32 v{CA+i}, 0, v176"); I(f"v_sub_f32 v{CB+i}, 0, v178")
I("s_nop 15")
a.label(L_fast); a.restore(st_f)
stamp(7)

def mm(d, x, y, c):
    cs = "0" if c is None else vr(c, 16)
    return f"v_mfma_f32_32x32x16_bf16 {vr(d,16)}, {vr(x,4)}, {vr(y,4)}, {cs}"
def blk(S_, h):
    b = S_ + 8*h
    return [f"v_exp_f32 v{b+i}, v{b+i}" for i in range(8)] + [f"v_cvt_pk_bf16_f32 v{b+i}, v{b+2*i}, v{b+2*i+1}" for i in range(4)]
def rdK(t): return f"ds_read_b128 {vr(KF,4)}, v{vKA} offset:{KL + t*1024}"
def rdV(reg, u): return f"ds_read_b128 {vr(reg,4)}, v{vVA} offset:{u*2*VS}"
I(rdV(V1, 0))
I(mm(SA, KF, QA, CA))

vWD, vOUT, vTR2, vT = 30, 31, 27, 28
sW2OFF, sHOFF, sWOM, sWOOFF, sRB = sT1, sT2, sKSTR, sOFF, 21
sKQ = sNT2
RINGREG = [0, 32768, VL, VL + 64*2*VS]
WOREG = [8192, 32768 + 8192, VL + 16*2*VS, VL + 80*2*VS]
NK2 = 22
def sel4(dst, idx, tab):
    I(f"s_mov_b32 s{dst}, {tab[0]}")
    for k_ in range(1, 4):
        I(f"s_cmp_eq_u32 s{idx}, {k_}"); I(f"s_cselect_b32 s{dst}, {tab[k_]}, s{dst}")
def setup1():
    I(f"s_lshr_b32 s{sKQ}, s{sW}, 1")
    I(f"s_lshl_b32 s11, s{sW}, 11"); I(f"s_add_u32 s{sT0}, s11, {W2R}")
    sel4(sRB, sKQ, RINGREG); I(f"s_lshl_b32 s9, s{sTT}, 12"); I(f"s_add_u32 s{sRB}, s{sRB}, s9")
    I(f"v_lshl_add_u32 v{vT}, v{vHH}, 8, v{vLP}"); I(f"v_add_u32 v{vTR}, s{sT0}, v{vT}"); I(f"v_add_u32 v{vTR2}, s{sRB}, v{vT}")
    I(f"v_lshrrev_b32 v{vWD}, 2, v{vJJ}"); I(f"v_lshlrev_b32 v{vWD}, 10, v{vWD}")
    I(f"v_lshl_add_u32 v{vWD}, v{vHH}, 6, v{vWD}"); I(f"v_and_b32 v{vT}, 3, v1"); I(f"v_lshl_add_u32 v{vWD}, v{vT}, 4, v{vWD}")
    I(f"s_lshl_b32 s11, s{sC}, 7"); I(f"v_add_u32 v{vWD}, s11, v{vWD}")
    mk_srd(SW2, 32, 33, 1376*1024)
    I(f"s_mul_i32 s{sW2OFF}, s{sKQ}, {NK2*16384}"); I(f"s_mul_i32 s{sHOFF}, s{sKQ}, {NK2*2048}")
    I(f"s_lshl_b32 s9, s{sTT}, 10"); I(f"s_add_u32 s{sHOFF}, s{sHOFF}, s9")
    I(f"v_lshlrev_b32 v{vT}, 10, v1"); I(f"v_add_u32 v{vT}, s11, v{vT}")
    I(f"s_mul_i32 s9, s{sTT}, {176*1024}"); I(f"s_add_u32 s9, s9, s{sW2OFF}")
    for i in range(3 if OPT.get("touchw", 0) else 0):
        I(f"buffer_load_dword v{172+i}, v{vT}, {srd(SW2)}, s9 offen")
        if i < 2: I("s_add_u32 s9, s9, 65536")
def setup2():
    mk_srd(SWO, 24, 25, 512*1024)
    I(f"s_lshl_b32 s{sWOOFF}, s{sW}, 16")
    if OPT.get("touchw", 0): I(f"buffer_load_dword v175, v{vT}, {srd(SWO)}, s{sWOOFF} offen")
    sel4(sWOM, sKQ, WOREG)
    I(f"s_lshl_b32 s9, s{sTT}, 13"); I(f"s_add_u32 s{sWOM}, s{sWOM}, s9")
def setup3():
    mk_srd(SB2, 34, 35, 1024)
    mk_srd(SOUT, 36, 37, 2048*1024)
    I(f"s_lshl_b32 s11, s{sC}, 7"); I(f"s_lshl_b32 s9, s{sKQ}, 5"); I("s_add_u32 s11, s11, s9")
    I(f"v_lshl_add_u32 v{vT}, v{vHH}, 4, s11")
    I(f"buffer_load_dwordx4 {vr(BB2,4)}, v{vT}, {srd(SB2)}, 0 offen")
    I(f"s_lshl_b32 s9, s{sG}, 6"); I(f"s_lshl_b32 s10, s{sTT}, 5"); I("s_add_u32 s9, s9, s10")
    I(f"v_add_u32 v{vOUT}, s9, v{vJJ}"); I(f"v_lshl_add_u32 v{vOUT}, v{vOUT}, 10, v{vT}")
    I(f"buffer_load_dwordx4 {vr(XRES,4)}, v{vOUT}, {srd(SX)}, 0 offen")
    if OPT.get("touchout", 0): I(f"buffer_load_dword v174, v{vOUT}, {srd(SOUT)}, 0 offen")
def slot_base(n): return (f"s{sT0}", 0) if n % 3 == 0 else (f"s{sRB}", (n % 3 - 1)*2048)
def w2_dma(n, hf):
    b, o = slot_base(n)
    return [("I", f"s_add_u32 m0, {b}, {o + hf*1024}"),
            ("I", f"s_add_u32 s{sW2OFF}, s{sW2OFF}, 8192") if (n, hf) != (0, 0) else ("I", "s_nop 0"),
            ("I", f"buffer_load_dwordx4 v{vWD}, {srd(SW2)}, s{sW2OFF} offen lds", f"w2_{n}")]
NB2 = 4
def h_load(n):
    b = B2 + 4*(n % NB2)
    L = [("I", f"buffer_load_dwordx4 {vr(b,4)}, v2, {srd(SH)}, s{sHOFF} offen offset:{(n % 2)*2048} sc1")]
    if n % 2: L.append(("I", f"s_add_u32 s{sHOFF}, s{sHOFF}, 4096"))
    return L
A2 = 128; B2 = 144
def w2_tr(n, nt):
    ab = A2 + 8*(n % 2) + 4*nt
    ad = vTR if n % 3 == 0 else vTR2
    o = slot_base(n)[1] + nt*512
    return [("WV", f"w2_{n}"),
            ("I", f"ds_read_b64_tr_b16 {vr(ab,2)}, v{ad} offset:{o}", f"tr_{n}"),
            ("I", f"ds_read_b64_tr_b16 {vr(ab+2,2)}, v{ad} offset:{o+1024}", f"tr_{n}")]
def f2_mm(n, nt):
    d = ACC2 + 16*nt
    return [("I", mm(d, A2+8*(n % 2)+4*nt, B2+4*(n % NB2), None if n == 0 else d))]
def hpoll():
    I(f"s_mul_i32 s9, s{sKQ}, 11")
    I(f"v_min_u32 v{vT}, 10, v1"); I(f"v_add_u32 v{vT}, s9, v{vT}"); I(f"v_min_u32 v{vT}, 42, v{vT}"); I(f"v_lshlrev_b32 v{vT}, 2, v{vT}")
    I(f"s_lshl_b32 s22, s{sG}, 8"); I(f"s_add_u32 s22, s22, {WS_HFLAG}")
    I(f"buffer_load_dword v171, v{vT}, {srd(SWS)}, s22 offen sc1")
def hcheck():
    L = newlabel("hok")
    I(f"v_cmp_ne_u32 vcc, s{sTAG}, v171")
    I("s_nop 4")
    I(f"s_cbranch_vccz {L}")
    st = a.save()
    poll(lambda: I(f"buffer_load_dword v171, v{vT}, {srd(SWS)}, s22 offen sc1"),
         lambda: I(f"v_cmp_ne_u32 vcc, s{sTAG}, v171"), "ph")
    a.label(L); a.restore(st)
def wo_dma(i):
    return [("I", f"s_add_u32 m0, s{sWOM}, {i*1024}"),
            ("I", f"s_add_u32 s{sWOOFF}, s{sWOOFF}, 8192") if i else ("I", "s_nop 0"),
            ("I", f"buffer_load_dwordx4 v{vWD}, {srd(SWO)}, s{sWOOFF} offen lds", "wo")]
NSTEP = 32
extra = {t: {} for t in range(NSTEP + 1)}
def add(t, pos, L): extra[t].setdefault(pos, []).extend(L)
add(0, 30, [("F", publish_h)])
add(1, 20, [("F", setup1)])
add(1, 44, [("F", setup2)])
add(2, 44, [("F", setup3)])
for n_ in range(12):
    add(n_ // 2, 21 if n_ % 2 == 0 else 45, [("I", kv_stage(2 + n_ // 2, n_ % 2))])
T0 = 8
add(4, 30, [("F", hpoll)])
add(5, 6, w2_dma(0, 0)); add(5, 30, w2_dma(0, 1))
add(6, 6, [("F", hcheck)])
add(6, 7, h_load(0)); add(6, 30, h_load(1)); add(7, 6, h_load(2))
add(7, 21, w2_tr(0, 0)); add(7, 40, w2_tr(0, 1))
add(7, 10, w2_dma(1, 0)); add(7, 16, w2_dma(1, 1)); add(7, 27, w2_dma(2, 0)); add(7, 34, w2_dma(2, 1))
for n in range(NK2):
    t = T0 + n
    add(t, 20, f2_mm(n, 0))
    if n + 1 < NK2: add(t, 34, w2_tr(n+1, 0))
    add(t, 44, f2_mm(n, 1))
    if n + 1 < NK2: add(t, 45, w2_tr(n+1, 1))
    if n + 3 < NK2:
        add(t, 46, h_load(n+3))
        add(t, 27, [("WL", f"tr_{n}")] + w2_dma(n+3, 0)); add(t+1, 3, w2_dma(n+3, 1))
if OPT.get("nof2", 0):
    for t in range(6, NSTEP): extra[t] = {}
if OPT.get("astamps", 0):
    for k_, t in enumerate((1, 2, 3, 4, 5, 6, 7, 8) if OPT.get("astamps") == 2 else (2, 5, 8, 12, 16, 20, 24, 28)): add(t, 0, [("F", (lambda k_=k_: stamp(k_)))])
PW = 2
for t in range(0, NSTEP, PW):
    if OPT.get("prio", 1): add(t, 1, [("I", f"s_setprio {3 - (t // PW) % 4}")])
for t in (7, 15, 23): add(t, 8, [("B",)])
for i in range(8): add(23 + (i+1)//2, 30 if i % 2 == 0 else 10, wo_dma(i))

def emit(L):
    for e in L:
        if e[0] == "I": I(e[1], tag=e[2] if len(e) > 2 else None)
        elif e[0] == "WV": a.wait_vm_tag(e[1])
        elif e[0] == "WL": a.wait_lg_tag(e[1])
        elif e[0] == "F": e[1]()
        elif e[0] == "B": a.barrier()
P4FLAG[0] = True
for t in range(NSTEP):
    valu = blk(SA, 0) + blk(SA, 1) + blk(SB, 0) + blk(SB, 1)
    ins = {}
    ins[2] = ([("I", mm(OB, V2, SB+8, OB))] if t > 0 else []) + [("I", rdV(V2, 2*t+1))]
    ins[9] = [("I", mm(SB, KF, QB, CB))] + ([("I", rdK(t+1))] if t+1 < NSTEP else [])
    ins[15] = [("I", mm(OA, V1, SA, OA if t > 0 else None))]
    ins[26] = [("I", mm(OA, V2, SA+8, OA))]
    ins[33] = [("I", mm(SA, KF, QA, CA))] if t+1 < NSTEP else []
    ins[39] = [("I", mm(OB, V1, SB, OB if t > 0 else None))] + ([("I", rdV(V1, 2*t+2))] if t+1 < NSTEP else [])
    for p_, L in extra[t].items():
        ins.setdefault(p_, []); ins[p_] = ins[p_] + L
    for i, v in enumerate(valu):
        if i in ins: emit(ins[i])
        I(v)
I(mm(OB, V2, SB+8, OB))
I("s_setprio 0")

L_k1 = newlabel("k1"); L_kj = newlabel("kj")
I(f"v_add_u32 v24, s{sT0}, v2")
I(f"s_xor_b32 s9, s{sW}, 4"); I("s_lshl_b32 s10, s9, 11"); I(f"s_add_u32 s10, s10, {W2R}"); I("v_add_u32 v25, s10, v2")
I(f"s_lshl_b32 s9, s9, 8"); I(f"s_add_u32 s9, s9, {QX}"); I("v_lshl_add_u32 v29, v1, 2, s9")
I(f"s_lshl_b32 s9, s{sW}, 8"); I(f"s_add_u32 s9, s9, {QX}"); I("v_lshl_add_u32 v28, v1, 2, s9")
a.wait_vm_tag("wo")
stamp(8)
I(f"s_cmp_lg_u32 s{sKH}, 0"); I(f"s_cbranch_scc1 {L_k1}")
hs = a.save()
for q in range(2): I(f"ds_write_b128 v24, {vr(OB+4*q,4)} offset:{q*1024}")
I(f"ds_write_b32 v28, v{OB+8}")
I(f"s_branch {L_kj}")
a.label(L_k1); a.restore(hs)
for q in range(2): I(f"ds_write_b128 v24, {vr(OA+4*q,4)} offset:{q*1024}")
I(f"ds_write_b32 v28, v{OA+8}")
for i in range(9): I(f"v_mov_b32 v{OA+i}, v{OB+i}")
a.label(L_kj); a.flush_state(2)
a.barrier()
for q in range(2): I(f"ds_read_b128 {vr(OB+4*q,4)}, v25 offset:{q*1024}")
I(f"ds_read_b32 v{OB+8}, v29")
WOF = 32
sel4(9, sKQ, WOREG)
I(f"v_lshl_add_u32 v26, v{vHH}, 8, v{vLP}"); I("v_add_u32 v26, s9, v26")
for i in range(9): I(f"v_add_f32 v{OA+i}, v{OA+i}, v{OB+i}")
I(f"v_rcp_f32 v{OA+8}, v{OA+8}")
for p in range(4): I(f"v_pk_mul_f32 {vr(OA+2*p,2)}, {vr(OA+2*p,2)}, {vr(OA+8,2)} op_sel_hi:[1,0]")
for p in range(4): I(f"v_cvt_pk_bf16_f32 v{OB+p}, v{OA+2*p}, v{OA+2*p+1}")
I(f"buffer_store_dwordx4 {vr(OB,4)}, v2, {srd(SO)}, s{sOSLOT} offen sc1")
stamp(9)
for hd in range(8):
    for nt in range(2):
        I(f"ds_read_b64_tr_b16 {vr(WOF+8*hd+4*nt,2)}, v26 offset:{hd*2048 + nt*512}")
        I(f"ds_read_b64_tr_b16 {vr(WOF+8*hd+4*nt+2,2)}, v26 offset:{hd*2048 + nt*512 + 1024}")
XB = 240
for d in range(4):
    I(f"v_lshlrev_b32 v{XB+2*d}, 16, v{XRES+d}"); I(f"v_and_b32 v{XB+1+2*d}, 0xffff0000, v{XRES+d}")
    I(f"v_lshlrev_b32 v{XB+8+2*d}, 16, v{BB2+d}"); I(f"v_and_b32 v{XB+9+2*d}, 0xffff0000, v{BB2+d}")
for p in range(4): I(f"v_pk_add_f32 {vr(XB+2*p,2)}, {vr(XB+2*p,2)}, {vr(XB+8+2*p,2)}")
AREA = [24576, VL + 48*2*VS, None]
def area_addr(dst, j, wreg):
    I(f"s_lshl_b32 s10, {wreg}, 11")
    if j < 2: I(f"s_add_u32 s10, s10, {AREA[j]}")
    else:
        I(f"s_cmp_ge_u32 {wreg}, 4"); I("s_cselect_b32 s11, 49152, 0"); I("s_add_u32 s10, s10, s11")
    I(f"v_add_u32 v{dst}, s10, v2")
for dl in range(1, 4):
    I(f"s_add_u32 s9, s{sW}, {2*dl}"); I("s_and_b32 s9, s9, 7"); area_addr(12 + dl, dl - 1, "s9")
    area_addr(16 + dl, dl - 1, f"s{sW}")
OF = 96
I(f"s_lshl_b32 s26, s{sKQ}, 14"); I(f"s_lshl_b32 s10, s{sTT}, 10"); I("s_add_u32 s26, s26, s10")
for k_ in range(1, 4): I(f"v_add_u32 v{3+k_}, {k_*4096}, v2")
def oload():
    for hd in range(8):
        ad = "v2" if hd < 2 else f"v{3 + hd//2}"
        I(f"buffer_load_dwordx4 {vr(OF+4*hd,4)}, {ad}, {srd(SO)}, s26 offen offset:{(hd%2)*2048} sc1")
stamp(10)
L_orep = newlabel("orep"); L_ook = newlabel("ook")
FB = 128
I(f"s_mov_b32 s{sCNT}, 0x4000")
a.label(L_orep); a.vm = []
oload()
for hd in range(8):
    o_ = OF + 4*hd
    for nt in range(2):
        I(mm(FB+16*nt, WOF+8*hd+4*nt, o_, ACC2+16*nt if hd == 0 else FB+16*nt))
    if hd == 0:
        I(f"v_max3_u32 v8, v{o_}, v{o_+1}, v{o_+2}"); I(f"v_mov_b32 v9, v{o_+3}")
    else:
        I(f"v_max3_u32 v8, v8, v{o_}, v{o_+1}"); I(f"v_max3_u32 v9, v9, v{o_+2}, v{o_+3}")
I("v_max_u32 v8, v8, v9")
I("v_cmp_eq_u32 vcc, -1, v8")
I("s_nop 4")
I(f"s_cbranch_vccz {L_ook}")
I("s_nop 15")
I(f"s_sub_u32 s{sCNT}, s{sCNT}, 1"); I(f"s_cmp_lg_u32 s{sCNT}, 0"); I(f"s_cbranch_scc1 {L_orep}")
a.label(L_ook)
stamp(11)
FA = 160
L_j = newlabel("rsj"); Ls = [newlabel(f"rs{k_}") for k_ in range(4)]
for k_ in range(1, 4):
    I(f"s_cmp_eq_u32 s{sKQ}, {k_}"); I(f"s_cbranch_scc1 {Ls[k_]}")
hs = a.save()
for k_ in range(4):
    a.label(Ls[k_]); a.restore(hs)
    for dl in range(1, 4):
        ch = (k_ + dl) % 4
        for q in range(2): I(f"ds_write_b128 v{12+dl}, {vr(FB+8*ch+4*q,4)} offset:{q*1024}")
    for p in range(4): I(f"v_pk_mov_b32 {vr(FA+2*p,2)}, {vr(FB+8*k_+2*p,2)}, {vr(FB+8*k_+2*p,2)} op_sel:[0,1]")
    if k_ < 3: I(f"s_branch {L_j}")
a.label(L_j); a.flush_state(2)
a.barrier()
for dl in range(1, 4):
    for q in range(2): I(f"ds_read_b128 {vr(32+8*(dl-1)+4*q,4)}, v{16+dl} offset:{q*1024}")
for p in range(4): I(f"v_pk_add_f32 {vr(FA+2*p,2)}, {vr(FA+2*p,2)}, {vr(32+2*p,2)}")
for p in range(4): I(f"v_pk_add_f32 {vr(40+2*p,2)}, {vr(40+2*p,2)}, {vr(48+2*p,2)}")
for p in range(4): I(f"v_pk_add_f32 {vr(FA+2*p,2)}, {vr(FA+2*p,2)}, {vr(40+2*p,2)}")
for i in range(4): I(f"v_permlane32_swap_b32 v{FA+i}, v{FA+4+i}")
for p in range(4): I(f"v_pk_add_f32 {vr(FA+2*p,2)}, {vr(FA+2*p,2)}, {vr(XB+2*p,2)}")
for p in range(4): I(f"v_cvt_pk_bf16_f32 v{56+p}, v{FA+2*p}, v{FA+2*p+1}")
I(f"buffer_store_dwordx4 v[56:59], v{vOUT}, {srd(SOUT)}, 0 offen")
stamp(12)
if OPT["stamps"] or OPT.get("dbg", 0): a.waitcnt(vm=0)
stamp(13)
a.raw("L_end:")
a.raw("    s_endpgm")

ref = open(f"cdna_kernels/{NAME}.s.ref").read()
head = ref[:ref.index("; Override launch geometry")]
out = head + f"""; Generated by gen/gen.py (hand-written generator).  One workgroup of 8 waves per CU.
; @launch grid=(256,1,1) block=(512,1,1) lds={LDS_BYTES}
.amdgcn_target "amdgcn-amd-amdhsa--gfx950"
.text
.globl {NAME}_kernel
.p2align 8
.type {NAME}_kernel,@function
{NAME}_kernel:
""" + a.text() + f""".section .rodata,"a"
.p2align 6
.amdhsa_kernel {NAME}_kernel
  .amdhsa_next_free_vgpr 256
  .amdhsa_next_free_sgpr 102
  .amdhsa_accum_offset 256
  .amdhsa_group_segment_fixed_size 0
  .amdhsa_kernarg_size 104
  .amdhsa_user_sgpr_count 2
  .amdhsa_user_sgpr_kernarg_segment_ptr 1
  .amdhsa_system_sgpr_workgroup_id_x 1
.end_amdhsa_kernel
"""
path = OPT_OUT if (OPT_OUT := next((x for x in sys.argv[1:] if x.endswith(".s")), None)) else f"cdna_kernels/{NAME}.s"
open(path, "w").write(out)
print("wrote", path, "lines", len(a.out), "nops", a.nops)
```

```python
import sys, math, struct
sys.path.insert(0, "gen")
from asmlib import Asm

NAME = "parallel_sum__grouped_kv_mqa__dense_activation_gelu__prompt"
OPT = dict(stop=99, stamps=False)
for a_ in sys.argv[1:]:
    if "=" in a_:
        k_, v_ = a_.split("="); OPT[k_] = int(v_)

def fbits(x): return "0x%08x" % struct.unpack("<I", struct.pack("<f", x))[0]

WS_EPOCH = 0
WS_KVFLAG = 0x1000
WS_HFLAG = 0x2000
WS_K = 0x10000
WS_V = 0x20000
WS_H = 0x100000
H_STRIDE = 0x2C000
WS_O = 0x800000
WS_DBG = 0xA00000
WS_SIZE = 0x1000000
XC = 0; XCS = 1040
RING2 = 66560
KL = 0; VL = 65536; VS = 272
QX = 135168
W2R = 143360
MISC = 159744
RSTD = MISC; KMAX = MISC + 256
LDS_BYTES = 163840
SX, SW, SKVW, SWS, SH, SO, SW2, SWO, SB1, SB2, SOUT = 44, 48, 52, 56, 60, 64, 68, 72, 76, 80, 84
SB2 = SB1
def srd(n): return f"s[{n}:{n+3}]"
sW, sG, sC, sTAG, sKSTR, sOFF, sT0, sT1, sT2, sTILE = 3, 4, 5, 6, 7, 8, 16, 17, 18, 12
sONES, sSELLO, sSELHI, sCNT = 13, 14, 15, 42
sC0, sC1 = 88, 90
sTB, sKIND, sFT, sTT, sKH, sNT2, sTT2 = 92, 93, 94, 95, 96, 97, 98
sEX = 100

a = Asm(); I = a.I
def vr(b, n): return f"v[{b}:{b+n-1}]"
lblc = [0]
def newlabel(p):
    lblc[0] += 1
    return f"L_{p}_{lblc[0]}"

P4FLAG = [False]
DBGMAP = {3: 1, 7: 2, 8: 3, 9: 4, 11: 5, 13: 6, 0: 7}
def dbgstamp(slot, src=None):
    L = newlabel("dbg")
    a.waitcnt(lg=0)
    I(f"s_cmp_gt_u32 s{SDBG+2}, 0"); I(f"s_cbranch_scc0 {L}")
    st = a.save()
    if src is None:
        I("s_memrealtime s[100:101]"); a.waitcnt(lg=0)
        I("v_mov_b32 v3, s100")
    I(f"buffer_store_dword {src or 'v3'}, off, s[{SDBG}:{SDBG+3}], s42 offset:{4*slot}".replace("s42", "0"))
    a.label(L); a.restore(st)
SDBG = 80
def stamp(idx):
    if OPT.get("dbg", 0):
        if idx in DBGMAP and DBGREADY[0]: dbgstamp(DBGMAP[idx])
        return
    if not OPT["stamps"]: return
    if OPT.get("astamps", 0) and idx < 7 and not P4FLAG[0]: return
    a.waitcnt(lg=0)
    for k_, op in enumerate(("s_memtime", "s_memrealtime")):
        I(f"{op} s[100:101]")
        a.waitcnt(lg=0)
        I("v_mov_b32 v3, s100")
        I(f"s_lshl_b32 s100, s2, 3"); I(f"s_add_u32 s100, s100, s{sW}"); I("s_lshl_b32 s100, s100, 7")
        I(f"s_add_u32 s100, s100, {WS_DBG + 4*idx + 64*k_}")
        I(f"buffer_store_dword v3, off, {srd(SWS)}, s100")

DBGREADY = [False]
def mk_srd(n, lo, hi, nbytes):
    I(f"s_mov_b32 s{n}, s{lo}"); I(f"s_mov_b32 s{n+1}, s{hi}")
    I(f"s_mov_b32 s{n+2}, {nbytes}"); I(f"s_mov_b32 s{n+3}, 0x00020000")


NE_OLD = OPT.get("ne_old", 8)
T0 = OPT.get("t0", 8)
TBAR = OPT.get("tbar", 18)
LCNT = MISC + 512
VG = OPT.get("vg", 0)
NSLOT = 6 if VG else 8
KVPOLL = OPT.get("kvpoll", 22)
I("s_cmp_ge_u32 s2, 256")
I("s_cbranch_scc1 L_end")
if OPT["stamps"]:
    I("s_memrealtime s[26:27]"); I("s_memtime s[38:39]"); a.waitcnt(lg=0); I("s_mov_b32 s19, s26"); I("s_mov_b32 s101, s38")
    I("v_mov_b32 v126, s19"); I("v_mov_b32 v127, s101")
if OPT.get("dbg", 0):
    I("s_memrealtime s[26:27]"); a.waitcnt(lg=0); I("v_mov_b32 v126, s26")
I("s_load_dwordx16 s[16:31], s[0:1], 0")
I("s_load_dwordx8 s[32:39], s[0:1], 64")
I("s_load_dwordx2 s[40:41], s[0:1], 96")
I("v_lshrrev_b32 v3, 6, v0")
I("v_and_b32 v1, 63, v0")
I(f"v_readfirstlane_b32 s{sW}, v3")
I("v_lshlrev_b32 v2, 4, v1")
if OPT.get("map", 1) == 0:
    I("s_and_b32 s9, s2, 7"); I("s_lshl_b32 s9, s9, 2"); I("s_bfe_u32 s10, s2, 0x20003"); I(f"s_or_b32 s{sG}, s9, s10")
    I(f"s_lshr_b32 s{sC}, s2, 5")
else:
    I("s_bfe_u32 s9, s2, 0x20001"); I("s_lshl_b32 s9, s9, 3"); I("s_bfe_u32 s10, s2, 0x30003"); I(f"s_or_b32 s{sG}, s9, s10")
    I("s_and_b32 s9, s2, 1"); I("s_lshl_b32 s9, s9, 2"); I("s_lshr_b32 s10, s2, 6"); I(f"s_or_b32 s{sC}, s9, s10")
I("v_lshrrev_b32 v4, 4, v1")
I("v_and_b32 v5, 15, v1")
XR = 32; T = 96
I(f"s_lshl_b32 s9, s{sW}, 2")
I("v_add_u32 v6, s9, v4")
I(f"s_lshl_b32 s10, s{sG}, 6")
I("v_add_u32 v7, s10, v6")
I("v_lshlrev_b32 v7, 10, v7")
I("v_lshl_add_u32 v7, v5, 4, v7")
sBLK = [88, 89, 90, 91]
for k_ in range(4):
    I(f"s_add_u32 s{sBLK[k_]}, s{sC}, {k_}"); I(f"s_and_b32 s{sBLK[k_]}, s{sBLK[k_]}, 3"); I(f"s_lshl_b32 s{sBLK[k_]}, s{sBLK[k_]}, 14")
L_nox = newlabel("nox")
I("v_mov_b32 v12, 0"); I(f"v_mov_b32 v13, {LCNT}")
I("ds_write_b32 v13, v12")
a.barrier()
I(f"s_mov_b32 s{SX+2}, {2048*1024}"); I(f"s_mov_b32 s{SX+3}, 0x00020000")
I(f"s_cmp_ge_u32 s{sW}, 4")
I(f"s_mov_b32 s{SX}, s16"); I(f"s_mov_b32 s{SX+1}, s17")
I(f"s_cbranch_scc1 {L_nox}")
for k_ in range(4):
    for i in range(4):
        I(f"buffer_load_dwordx4 {vr(XR+16*k_+4*i,4)}, v7, {srd(SX)}, s{sBLK[k_]} offen offset:{i*256}")
vm_x = [dict(o) for o in a.vm]
a.label(L_nox); a.vm = []
L_nokvw = newlabel("nokvw")
I(f"s_cmp_lg_u32 s{sW}, 7"); I(f"s_cbranch_scc1 {L_nokvw}")
I("s_setprio 3")
I(f"s_cmp_lt_u32 s{sC}, 4")
I("s_cselect_b32 s9, s20, s22"); I("s_cselect_b32 s10, s21, s23")
mk_srd(SKVW, 9, 10, 16384)
I("v_add_u32 v16, 0x1000, v2"); I("v_add_u32 v17, 0x2000, v2"); I("v_add_u32 v18, 0x3000, v2")
for j in range(4):
    I(f"s_mov_b32 m0, {W2R + j*4096}")
    for i in range(4):
        I(f"buffer_load_dwordx4 {('v2','v16','v17','v18')[j]}, {srd(SKVW)}, 0 offen offset:{i*1024} lds", tag="kvw")
vm_kvw = [dict(o) for o in a.vm]
a.label(L_nokvw); a.vm = []
I(f"s_mov_b32 s{sONES}, 0x3f803f80"); I(f"s_mov_b32 s{sSELLO}, 0x00003f80"); I(f"s_mov_b32 s{sSELHI}, 0x3f800000")
I(f"s_mul_i32 s9, s{sC}, 5"); I(f"s_min_u32 s10, s{sC}, 3"); I("s_add_u32 s9, s9, s10")
I(f"s_sub_u32 s10, s{sW}, 4"); I(f"s_add_u32 s11, s{sW}, 1")
I(f"s_cmp_ge_u32 s{sW}, 4"); I("s_cselect_b32 s10, s10, s11")
I(f"s_cmp_eq_u32 s{sW}, 7"); I("s_cselect_b32 s10, 5, s10")
I(f"s_add_u32 s{sTILE}, s9, s10")
I(f"s_lshl_b32 s9, s{sC}, 1"); I(f"s_add_u32 s9, s9, s{sW}")
I(f"s_cmp_lt_u32 s{sW}, 2"); I(f"s_cselect_b32 s{sTILE}, s9, s{sTILE}")
I("s_mov_b32 s11, 2752"); I("s_cselect_b32 s11, 1024, s11")
I(f"s_mov_b32 s{SW+2}, {512*2752}"); I(f"s_cselect_b32 s{SW+2}, {512*1024}, s{SW+2}")
I(f"s_cselect_b32 s{SW}, s18, s28"); I(f"s_cselect_b32 s{SW+1}, s19, s29")
I(f"s_mov_b32 s{SW+3}, 0x00020000")
I(f"s_cmp_ge_u32 s{sC}, 3"); I("s_cselect_b32 s9, 1, 0"); I(f"s_cmp_eq_u32 s{sW}, 7"); I("s_cselect_b32 s9, s9, 0")
I("s_cmp_eq_u32 s9, 1"); I(f"s_cselect_b32 s{sTILE}, 63, s{sTILE}"); I(f"s_cselect_b32 s{SW+2}, 0, s{SW+2}")
if OPT.get("now", 0): I(f"s_mov_b32 s{SW+2}, 0")
I(f"s_lshl_b32 s{sKSTR}, s11, 4")
I("v_lshrrev_b32 v11, 2, v1")
I("v_mul_lo_u32 v11, v11, s11")
I("v_and_b32 v15, 3, v1")
I("v_lshl_add_u32 v11, v15, 4, v11")
I(f"s_lshl_b32 s9, s{sTILE}, 6")
I("v_add_u32 v11, s9, v11")
sWB = [26, 27, 38, 39]; sRING = 99; sQ = 19
if OPT.get("dbg", 0):
    I(f"s_lshl_b32 s9, s2, 3"); I(f"s_or_b32 s9, s9, s{sW}")
    I(f"s_cmp_eq_u32 s9, {133*8+4}"); I("s_cselect_b32 s10, 32, 0"); I("s_add_u32 s38, s38, s10"); I("s_addc_u32 s39, s39, 0")
    mk_srd(SDBG, 38, 39, 0); DBGREADY[0] = True
    I(f"s_cmp_eq_u32 s9, {133*8+4}"); I(f"s_cselect_b32 s{SDBG+2}, 32, 0"); I("s_cmp_eq_u32 s9, 0"); I(f"s_cselect_b32 s{SDBG+2}, 32, s{SDBG+2}")
    dbgstamp(0, "v126")
I("s_mov_b32 s42, s19")
I(f"s_and_b32 s{sQ}, s{sG}, 3")
if OPT.get("noxor", 0): I(f"s_mov_b32 s{sQ}, 0")
I(f"s_lshl_b32 s10, s{sKSTR}, 3")
for b in range(4):
    I(f"s_xor_b32 s9, s{sQ}, {b}"); I(f"s_mul_i32 s{sWB[b]}, s9, s10")
I(f"s_lshl_b32 s{sRING}, s{sW}, 13"); I(f"s_add_u32 s{sRING}, s{sRING}, {RING2}")
WV = 128
def woff(s):
    I(f"s_mul_i32 s{sOFF}, s{sKSTR}, {s % 8}") if s % 8 else None
    I(f"s_add_u32 s{sOFF}, s{sOFF}, s{sWB[s//8]}") if s % 8 else I(f"s_mov_b32 s{sOFF}, s{sWB[s//8]}")
def wslot(s):
    if not VG: return (s % NSLOT)*1024
    return ((s//2) % NSLOT)*1024 if s % 2 == 0 else (NSLOT + (s//2) % 2)*1024
def wdma(s):
    I(f"s_add_u32 m0, s{sRING}, {wslot(s)}")
    if VG: woff(s)
    elif s % 8 == 0: I(f"s_mov_b32 s{sOFF}, s{sWB[s//8]}")
    else: I(f"s_add_u32 s{sOFF}, s{sOFF}, s{sKSTR}")
    I(f"buffer_load_dwordx4 v11, {srd(SW)}, s{sOFF} offen lds", tag=f"w_{s}")
def wvg(s):
    woff(s)
    I(f"buffer_load_dwordx4 {vr(WV+4*(s//2),4)}, v11, {srd(SW)}, s{sOFF} offen")
def w_early_dma():
    for s in (range(0, 2*NSLOT, 2) if VG else range(NSLOT)): wdma(s)
def w_early_vg():
    if VG:
        for s in range(1, 32, 2): wvg(s)
L_noearly = newlabel("noearly")
I(f"s_cmp_eq_u32 s{sW}, 7"); I(f"s_cbranch_scc1 {L_noearly}")
I(f"s_cmp_lt_u32 s{sW}, 4"); I(f"s_cbranch_scc1 {L_noearly}")
if OPT.get("touch", 0):
    L_tq = newlabel("tq"); L_td = newlabel("td")
    NSH = 8 if OPT.get("map", 1) else 4
    I(f"s_and_b32 s9, s{sG}, {NSH-1}"); I(f"s_lshl_b32 s9, s9, {6 if NSH == 8 else 7}"); I("v_add_u32 v20, s9, v1")
    I(f"s_cmp_eq_u32 s{sW}, 6"); I(f"s_cbranch_scc1 {L_tq}")
    I("v_mul_u32_u24 v20, 2752, v20")
    I(f"s_mul_i32 s9, s{sC}, 5"); I(f"s_min_u32 s10, s{sC}, 3"); I("s_add_u32 s9, s9, s10"); I("s_lshl_b32 s9, s9, 6")
    I(f"s_and_b32 s10, s{sW}, 1"); I("s_mul_i32 s10, s10, 252"); I("s_add_u32 s9, s9, s10")
    for r_ in range(8 // NSH):
        I(f"buffer_load_dword v21, v20, {srd(SW)}, s9 offen"); I(f"buffer_load_dword v22, v20, {srd(SW)}, s9 offen offset:128")
        if NSH == 4 and r_ == 0: I(f"s_add_u32 s9, s9, {64*2752}")
    I(f"s_branch {L_td}")
    a.label(L_tq)
    mk_srd(SKVW, 18, 42, 512*1024)
    I("v_lshlrev_b32 v20, 10, v20"); I(f"s_lshl_b32 s9, s{sC}, 7")
    for r_ in range(8 // NSH):
        I(f"buffer_load_dword v21, v20, {srd(SKVW)}, s9 offen")
        if NSH == 4 and r_ == 0: I(f"s_add_u32 s9, s9, {64*1024}")
    a.label(L_td); a.vm = []
w_early_dma()
vm_w = [dict(o) for o in a.vm]
w_early_vg()
a.label(L_noearly); a.vm = []
mk_srd(SWS, 40, 41, WS_SIZE)
I(f"s_and_b32 s9, s{sC}, 3"); I(f"s_lshl_b32 s10, s{sG}, 2"); I(f"s_add_u32 s{sTB}, s9, s10"); I(f"s_lshr_b32 s{sKIND}, s{sC}, 2")
I(f"s_bfe_u32 s{sFT}, s{sW}, 0x10001"); I(f"s_and_b32 s{sTT}, s{sW}, 1"); I(f"s_lshr_b32 s{sKH}, s{sW}, 2")
I(f"s_and_b32 s{sNT2}, s{sW}, 1"); I(f"s_bfe_u32 s{sTT2}, s{sW}, 0x10001")
I(f"s_lshl_b32 s9, s{sG}, 16"); I(f"s_add_u32 s9, s9, {WS_O}")
I("s_add_u32 s9, s40, s9"); I("s_addc_u32 s10, s41, 0")
mk_srd(SO, 9, 10, 65536)
sOSLOT = 43
I(f"s_lshl_b32 s9, s{sC}, 2"); I(f"s_lshl_b32 s10, s{sFT}, 1"); I("s_add_u32 s9, s9, s10"); I(f"s_add_u32 s9, s9, s{sKH}")
I("s_lshl_b32 s9, s9, 1"); I(f"s_add_u32 s9, s9, s{sTT}"); I(f"s_lshl_b32 s{sOSLOT}, s9, 10")
def early_stamp():
    if OPT["stamps"]:
        I(f"s_lshl_b32 s100, s2, 3"); I(f"s_add_u32 s100, s100, s{sW}"); I("s_lshl_b32 s100, s100, 7")
        I(f"s_add_u32 s100, s100, {WS_DBG + 4*15}")
        I(f"buffer_store_dword v127, off, {srd(SWS)}, s100")
        I(f"buffer_store_dword v126, off, {srd(SWS)}, s100 offset:64")
I(f"s_load_dword s{sTAG}, s[40:41], {WS_EPOCH}")
early_stamp()
stamp(0)
L_kvw = newlabel("kvwave"); L_B = newlabel("barB")
I(f"s_cmp_eq_u32 s{sW}, 7"); I(f"s_cbranch_scc1 {L_kvw}")
I(f"s_cmp_ge_u32 s{sW}, 4"); I(f"s_cbranch_scc1 {L_B}")
st0 = a.save()
a.vm = vm_x

I(f"v_mul_u32_u24 v8, {XCS}, v6")
I("v_lshl_add_u32 v8, v5, 4, v8")
I("v_lshlrev_b32 v9, 2, v6")
I(f"v_add_u32 v9, {RSTD}, v9")
def dpp_allreduce_add(r, t):
    I(f"v_add_f32_dpp v{t}, v{r}, v{r} row_ror:8 row_mask:0xf bank_mask:0xf")
    I(f"v_add_f32_dpp v{r}, v{t}, v{t} row_ror:4 row_mask:0xf bank_mask:0xf")
    I(f"v_add_f32_dpp v{t}, v{r}, v{r} row_ror:2 row_mask:0xf bank_mask:0xf")
    I(f"v_add_f32_dpp v{r}, v{t}, v{t} row_ror:1 row_mask:0xf bank_mask:0xf")
def dpp_allreduce_add2(r, t, r2, t2):
    for ro in (8, 4, 2, 1):
        I(f"v_add_f32_dpp v{t}, v{r}, v{r} row_ror:{ro} row_mask:0xf bank_mask:0xf")
        I(f"v_add_f32_dpp v{t2}, v{r2}, v{r2} row_ror:{ro} row_mask:0xf bank_mask:0xf")
        r, t = t, r; r2, t2 = t2, r2
def ln_sum(k_, a0, a1):
    X = XR + 16*k_
    I(f"v_dot2_f32_bf16 v{a0}, v{X}, s{sONES}, 0")
    I(f"v_dot2_f32_bf16 v{a1}, v{X+1}, s{sONES}, 0")
    for i in range(2, 16):
        r = a0 if i % 2 == 0 else a1
        I(f"v_dot2_f32_bf16 v{r}, v{X+i}, s{sONES}, v{r}")
def ln_centre(k_, mu, ad):
    X = XR + 16*k_
    for q in range(5):
        if q < 4:
            tb = T + 16 + 8*(q % 2)
            for i in range(4):
                I(f"v_dot2_f32_bf16 v{tb+2*i}, v{X+4*q+i}, s{sSELLO}, v{mu}")
                I(f"v_dot2_f32_bf16 v{tb+2*i+1}, v{X+4*q+i}, s{sSELHI}, v{mu}")
        else:
            I(f"v_dot2_f32_bf16 v{T+12}, v{X}, v{X}, 0")
            I(f"v_dot2_f32_bf16 v{T+13}, v{X+1}, v{X+1}, 0")
            I(f"v_dot2_f32_bf16 v{T+12}, v{X+2}, v{X+2}, v{T+12}")
        if q > 0:
            pb = T + 16 + 8*((q-1) % 2)
            for i in range(4):
                I(f"v_cvt_pk_bf16_f32 v{X+4*(q-1)+i}, v{pb+2*i}, v{pb+2*i+1}")
            I(f"ds_write_b128 v{ad}, {vr(X+4*(q-1),4)} offset:{(q-1)*256}")
    for i in range(3, 16):
        r = T+12 if i % 2 == 0 else T+13
        I(f"v_dot2_f32_bf16 v{r}, v{X+i}, v{X+i}, v{r}")
def ln_set(k_, nxt):
    mu, ad, ar = T+2, T+5, T+6
    I(f"s_lshr_b32 s9, s{sBLK[k_]}, 14"); I(f"s_mul_i32 s10, s9, {16*XCS}"); I(f"v_add_u32 v{ad}, s10, v8")
    I(f"s_lshl_b32 s9, s9, 6"); I(f"v_add_u32 v{ar}, s9, v9")
    I(f"v_mul_f32 v{mu}, {fbits(-1.0/512)}, v{T}")
    ln_centre(k_, mu, ad)
    if nxt is not None:
        ln_sum(nxt, T, T+1)
        I(f"v_add_f32 v{T+12}, v{T+12}, v{T+13}")
        I(f"v_add_f32 v{T}, v{T}, v{T+1}")
        dpp_allreduce_add2(T+12, T+13, T, T+1)
    else:
        I(f"v_add_f32 v{T+12}, v{T+12}, v{T+13}")
        dpp_allreduce_add(T+12, T+13)
    I(f"v_mov_b32 v{T+13}, {fbits(1e-5)}")
    I(f"v_fmac_f32 v{T+13}, {fbits(1.0/512)}, v{T+12}")
    I(f"v_rsq_f32 v{T+12}, v{T+13}")
    I(f"ds_write_b32 v{ar}, v{T+12}")
ln_sum(0, T, T+1)
I(f"v_add_f32 v{T}, v{T}, v{T+1}")
dpp_allreduce_add(T, T+1)
ln_set(0, None)
I("v_mov_b32 v12, 1"); I(f"v_mov_b32 v13, {LCNT}")
I("s_mov_b64 exec, 1"); I("ds_add_u32 v13, v12"); I("s_mov_b64 exec, -1")
stamp(1)
ln_sum(1, T, T+1)
I(f"v_add_f32 v{T}, v{T}, v{T+1}")
dpp_allreduce_add(T, T+1)
LNW = OPT.get("lnw", 3)
for k_ in range(1, 4):
    if k_ == LNW: w_early_dma()
    ln_set(k_, k_ + 1 if k_ < 3 else None)
I(f"s_branch {L_B}")

a.label(L_kvw); a.restore(st0)
WR = 128
L_kvV = newlabel("kvV"); L_kvpub = newlabel("kvpub"); L_kp = newlabel("kvpoll"); L_kpd = newlabel("kvpolld")
a.vm = vm_kvw
for i in range(4): I(f"v_mov_b32 v{28+i}, -1")
I("v_add_u32 v16, 0x1000, v2")
I(f"s_lshl_b32 s9, s{sC}, 13")
for i in range(8):
    I(f"buffer_store_dwordx4 v[28:31], {'v2' if i < 4 else 'v16'}, {srd(SO)}, s9 offen offset:{(i%4)*1024} sc1")
w_early_dma()
I(f"s_and_b32 s9, s{sC}, 3"); I("s_lshl_b32 s9, s9, 4")
I("v_add_u32 v12, s9, v5")
I(f"v_mul_u32_u24 v13, {XCS}, v12")
I("v_lshl_add_u32 v13, v4, 4, v13")
I("v_lshrrev_b32 v14, 2, v5")
I("v_lshl_add_u32 v14, v4, 3, v14")
I("v_lshlrev_b32 v14, 5, v14")
I("v_and_b32 v15, 3, v1")
I("v_lshl_add_u32 v14, v15, 3, v14")
I(f"v_add_u32 v14, {W2R}, v14")
a.wait_vm_tag("kvw")
for s in range(16):
    I(f"ds_read_b64_tr_b16 {vr(WR+8*s+4,2)}, v14 offset:{s*1024}")
    I(f"ds_read_b64_tr_b16 {vr(WR+8*s+6,2)}, v14 offset:{s*1024+128}")
I(f"v_mov_b32 v19, {LCNT}")
I(f"s_mov_b32 s{sCNT}, 0x100000")
a.label(L_kp)
I("ds_read_b32 v20, v19")
I("v_cmp_gt_u32 vcc, 4, v20")
I("s_nop 4")
I(f"s_cbranch_vccz {L_kpd}")
I(f"s_sub_u32 s{sCNT}, s{sCNT}, 1"); I(f"s_cmp_lg_u32 s{sCNT}, 0"); I(f"s_cbranch_scc1 {L_kp}")
a.label(L_kpd)
stamp(1)
for s in range(16): I(f"ds_read_b128 {vr(WR+8*s,4)}, v13 offset:{s*64}")
KD = 88
def kv_mm(kind):
    for s in range(16):
        b = WR + 8*s
        c_ = "0" if s == 0 else vr(KD, 4)
        if kind == 0: I(f"v_mfma_f32_16x16x32_bf16 {vr(KD,4)}, {vr(b+4,4)}, {vr(b,4)}, {c_}")
        else:         I(f"v_mfma_f32_16x16x32_bf16 {vr(KD,4)}, {vr(b,4)}, {vr(b+4,4)}, {c_}")
I("v_bfe_u32 v20, v1, 4, 1"); I("v_lshrrev_b32 v21, 5, v1")
I(f"s_cmp_lg_u32 s{sKIND}, 0")
I(f"s_cbranch_scc1 {L_kvV}")
st_kv = a.save()
I("v_lshlrev_b32 v16, 2, v12"); I(f"v_add_u32 v16, {RSTD}, v16")
I(f"ds_read_b32 v17, v16")
I(f"s_lshr_b32 s9, s{sTB}, 1"); I("s_lshl_b32 s9, s9, 10"); I(f"s_and_b32 s10, s{sTB}, 1"); I("s_lshl_b32 s10, s10, 8")
I("s_add_u32 s9, s9, s10"); I(f"s_add_u32 s9, s9, {WS_K}")
I("v_lshlrev_b32 v20, 9, v20"); I("v_lshl_add_u32 v20, v5, 4, v20"); I("v_lshl_add_u32 v20, v21, 3, v20")
kv_mm(0)
for r in range(4): I(f"v_mul_f32 v{KD+r}, v{KD+r}, v17")
I(f"v_cvt_pk_bf16_f32 v18, v{KD}, v{KD+1}"); I(f"v_cvt_pk_bf16_f32 v19, v{KD+2}, v{KD+3}")
I(f"buffer_store_dwordx2 v[18:19], v20, {srd(SWS)}, s9 offen sc1", tag="kvst")
I("v_dot2_f32_bf16 v22, v18, v18, 0"); I("v_dot2_f32_bf16 v22, v19, v19, v22")
I("v_mov_b32 v23, v22"); I("v_permlane32_swap_b32 v22, v23"); I("v_add_f32 v22, v22, v23")
I("v_mov_b32 v23, v22"); I("v_permlane16_swap_b32 v22, v23"); I("v_add_f32 v22, v22, v23")
for ro in (8, 4, 2, 1):
    I(f"v_max_f32_dpp v23, v22, v22 row_ror:{ro} row_mask:0xf bank_mask:0xf"); I("v_mov_b32 v22, v23")
I("v_mov_b32 v63, v22")
I(f"s_branch {L_kvpub}")
a.label(L_kvV); a.restore(st_kv)
I(f"s_and_b32 s9, s{sC}, 3"); I("s_lshl_b32 s9, s9, 6"); I(f"s_add_u32 s9, s9, {RSTD}")
I("v_lshl_add_u32 v16, v4, 4, s9")
I(f"ds_read_b128 v[28:31], v16")
I(f"s_lshl_b32 s9, s{sTB}, 9"); I(f"s_add_u32 s9, s9, {WS_V}")
I("v_lshlrev_b32 v20, 8, v20"); I("v_lshl_add_u32 v20, v5, 4, v20"); I("v_lshl_add_u32 v20, v21, 3, v20")
kv_mm(1)
for r in range(4): I(f"v_mul_f32 v{KD+r}, v{KD+r}, v{28+r}")
I(f"v_cvt_pk_bf16_f32 v18, v{KD}, v{KD+1}"); I(f"v_cvt_pk_bf16_f32 v19, v{KD+2}, v{KD+3}")
I(f"buffer_store_dwordx2 v[18:19], v20, {srd(SWS)}, s9 offen sc1", tag="kvst")
I("v_mov_b32 v63, 0")
a.label(L_kvpub); a.flush_state(2)
a.label(L_B); a.flush_state(2); a.lg = []
a.vm = vm_w; a.smem_pending = {f"s{sTAG}"}; a.smem_out = True
stamp(2)
a.barrier()
I(f"s_mul_i32 s{sTAG}, s{sTAG}, 0x9E3779B1")
I(f"s_add_u32 s{sTAG}, s{sTAG}, 0x7F4A7C15")
stamp(3)
L_np = newlabel("nopub")
I(f"s_cmp_lg_u32 s{sW}, 7"); I(f"s_cbranch_scc1 {L_np}")
st = a.save()
a.force_wait(vm=0)
I(f"v_mov_b32 v62, s{sTAG}")
I(f"s_lshl_b32 s9, s{sTB}, 1"); I(f"s_add_u32 s9, s9, s{sKIND}"); I("s_lshl_b32 s9, s9, 3"); I(f"s_add_u32 s9, s9, {WS_KVFLAG}")
I("s_mov_b64 exec, 1")
I(f"buffer_store_dwordx2 v[62:63], off, {srd(SWS)}, s9 sc1")
I("s_mov_b64 exec, -1")
I("s_setprio 0")
a.label(L_np); a.restore(st)
stamp(5)
L_vgdone = newlabel("vgdone")
I(f"s_sub_u32 s9, s{sW}, 4"); I("s_cmp_lt_u32 s9, 3"); I(f"s_cbranch_scc1 {L_vgdone}")
w_early_vg()
a.label(L_vgdone)

ACC = 96
I("v_and_b32 v15, 3, v1"); I("v_lshlrev_b32 v13, 3, v15")
I("v_bfe_u32 v15, v1, 2, 2"); I("v_lshl_add_u32 v13, v15, 6, v13")
I("v_bfe_u32 v15, v1, 4, 1"); I("v_lshl_add_u32 v13, v15, 5, v13")
I("v_mov_b32 v17, v13")
I("v_lshrrev_b32 v16, 5, v1")
I("v_lshl_add_u32 v13, v16, 9, v13"); I(f"v_add_u32 v13, s{sRING}, v13")
I("v_and_b32 v18, 31, v1")
I(f"v_mul_u32_u24 v14, {XCS}, v18"); I("v_lshl_add_u32 v14, v16, 4, v14")
vB = [6, 7, 8, 9]
for b in range(4):
    I(f"s_xor_b32 s9, s{sQ}, {b}"); I("s_lshl_b32 s9, s9, 8"); I(f"v_add_u32 v{vB[b]}, s9, v14")
I(f"v_add_u32 v12, s{sRING}, v2")
def p2_stage(s):
    I(f"ds_write_b128 v12, {vr(WV+4*(s//2),4)} offset:{wslot(s)}")
NBUF = 3
AF = 128; BF = 140
def p2_readB(s):
    bb = BF + 8*(s % NBUF)
    I(f"ds_read_b128 {vr(bb,4)}, v{vB[s//8]} offset:{(s%8)*32}")
    I(f"ds_read_b128 {vr(bb+4,4)}, v{vB[s//8]} offset:{32*XCS + (s%8)*32}")
def p2_readA(s):
    ab = AF + 4*(s % NBUF)
    a.wait_vm_tag(f"w_{s}")
    I(f"ds_read_b64_tr_b16 {vr(ab,2)}, v13 offset:{wslot(s)}")
    I(f"ds_read_b64_tr_b16 {vr(ab+2,2)}, v13 offset:{wslot(s)+256}")
def p2_mma(s, tt):
    ab = AF + 4*(s % NBUF); bb = BF + 8*(s % NBUF)
    c_ = "0" if s == 0 else vr(ACC+16*tt, 16)
    I(f"v_mfma_f32_32x32x16_bf16 {vr(ACC+16*tt,16)}, {vr(ab,4)}, {vr(bb+4*tt,4)}, {c_}")

def poll(load_fn, check_fn, name, sleep=2, keep=0):
    L = newlabel(name); Ld = newlabel(name + "ok")
    I(f"s_mov_b32 s{sCNT}, 0x4000")
    a.label(L)
    load_fn()
    a.force_wait(vm=0)
    check_fn()
    I("s_nop 4")
    I(f"s_cbranch_vccz {Ld}")
    if sleep: I(f"s_sleep {sleep}")
    I(f"s_sub_u32 s{sCNT}, s{sCNT}, 1")
    I(f"s_cmp_lg_u32 s{sCNT}, 0")
    I(f"s_cbranch_scc1 {L}")
    a.label(Ld)
KVS = 192
sR = 20
def kv_flag_load():
    I(f"s_add_u32 s{sR}, s{sC}, s{sG}"); I(f"s_and_b32 s{sR}, s{sR}, 7"); I(f"s_xor_b32 s{sR}, s{sR}, s{sW}")
    I("v_bfe_u32 v19, v1, 2, 1"); I("v_lshlrev_b32 v19, 10, v19")
    I("v_bfe_u32 v56, v1, 3, 2"); I("v_lshl_add_u32 v19, v56, 8, v19")
    I("v_and_b32 v56, 3, v1"); I("v_lshl_add_u32 v19, v56, 3, v19")
    I(f"s_lshl_b32 s21, s{sR}, 5"); I(f"s_add_u32 s21, s21, {WS_KVFLAG}")
    I(f"buffer_load_dwordx2 v[60:61], v19, {srd(SWS)}, s21 offen sc1")
def kv_fetch():
    L = newlabel("kvok")
    I(f"v_cmp_ne_u32 vcc, s{sTAG}, v60")
    I("s_nop 4")
    I(f"s_cbranch_vccz {L}")
    st = a.save()
    poll(lambda: I(f"buffer_load_dwordx2 v[60:61], v19, {srd(SWS)}, s21 offen sc1"),
         lambda: I(f"v_cmp_ne_u32 vcc, s{sTAG}, v60"), "pkv")
    a.label(L); a.restore(st)
    I(f"s_lshl_b32 s9, s{sR}, 10"); I(f"s_add_u32 s23, s9, {WS_V}"); I(f"s_add_u32 s22, s9, {WS_K}")
    I("v_add_u32 v56, 0x8000, v2")
def kv_load(i, which):
    so = "s22" if which == 0 else "s23"
    I(f"buffer_load_dwordx4 {vr(KVS+8*i+4*which,4)}, {'v2' if i % 2 == 0 else 'v56'}, {srd(SWS)}, {so} offen sc1")
    if i % 2 == 1: I(f"s_add_u32 {so}, {so}, 8192")
def kv_publish(nyounger):
    L = newlabel("nopub")
    I(f"s_cmp_lg_u32 s{sW}, 7"); I(f"s_cbranch_scc1 {L}")
    st = a.save()
    a.raw(f"    s_waitcnt vmcnt({nyounger})")
    I(f"v_mov_b32 v62, s{sTAG}")
    I(f"s_lshl_b32 s9, s{sTB}, 1"); I(f"s_add_u32 s9, s9, s{sKIND}"); I("s_lshl_b32 s9, s9, 3"); I(f"s_add_u32 s9, s9, {WS_KVFLAG}")
    I("s_mov_b64 exec, 1")
    I(f"buffer_store_dwordx2 v[62:63], off, {srd(SWS)}, s9 sc1")
    I("s_mov_b64 exec, -1")
    a.label(L); a.restore(st); a.slot += 0
n_after_B = [2 if OPT["stamps"] else 0]
if OPT["stamps"] and not OPT.get("astamps", 0): n_after_B[0] = 4 + 16
else: n_after_B[0] = 16
if OPT.get("p2prio", 0):
    L_pp = newlabel("pp")
    I(f"s_and_b32 s9, s{sW}, 6"); I("s_cmp_lg_u32 s9, 4"); I(f"s_cbranch_scc1 {L_pp}"); I("s_setprio 1"); a.label(L_pp)
p2_readB(0); p2_readA(0); p2_readB(1); p2_readA(1)
mk_srd(SB1, 30, 31, 2752)
I("v_lshlrev_b32 v19, 2, v18"); I(f"v_add_u32 v19, {RSTD}, v19")
I(f"ds_read_b32 v20, v19"); I(f"ds_read_b32 v22, v19 offset:128")
for s in range(32):
    p2_mma(s, 0)
    if s + NSLOT < 32: wdma(s + NSLOT)
    if KVPOLL < s <= KVPOLL + 8: kv_load(s - KVPOLL - 1, 0)
    if s + 2 < 32: p2_readB(s + 2)
    p2_mma(s, 1)
    if s + 2 < 32: p2_readA(s + 2)
    if KVPOLL < s <= KVPOLL + 8: kv_load(s - KVPOLL - 1, 1)
    if s == KVPOLL - 4: kv_flag_load()
    if s == KVPOLL: kv_fetch()
    if s == 16:
        I(f"s_lshl_b32 s9, s{sTILE}, 6")
        I("v_lshl_add_u32 v10, v16, 3, s9")
        for q in range(4):
            I(f"buffer_load_dwordx2 {vr(24+2*q,2)}, v10, {srd(SB1)}, 0 offen offset:{16*q}")
stamp(4)
for ro in (8, 4, 2, 1):
    I(f"v_max_f32_dpp v60, v61, v61 row_ror:{ro} row_mask:0xf bank_mask:0xf"); I("v_mov_b32 v61, v60")
I("v_permlane16_swap_b32 v60, v61"); I("v_max_f32 v61, v60, v61")
I(f"s_lshl_b32 s11, s{sW}, 2"); I(f"s_add_u32 s11, s11, {KMAX}"); I("v_mov_b32 v60, s11")
I(f"ds_write_b32 v60, v61")
I(f"s_mul_i32 s9, s{sG}, {H_STRIDE}"); I(f"s_add_u32 s9, s9, {WS_H}")
I("s_add_u32 s9, s40, s9"); I("s_addc_u32 s10, s41, 0")
mk_srd(SH, 9, 10, 86*2048)
L_epf = newlabel("epffn"); L_epdone = newlabel("epdone")
I(f"s_cmp_ge_u32 s{sW}, 2")
I(f"s_cbranch_scc1 {L_epf}")
st_ep = a.save()
QS = 0.25 * math.log2(math.e)
I(f"v_mul_f32 v20, {fbits(QS)}, v20"); I(f"v_mul_f32 v22, {fbits(QS)}, v22")
I(f"s_lshl_b32 s9, s{sW}, 12"); I(f"s_add_u32 s9, s9, {QX}")
I("v_add_u32 v19, s9, v2")
for tt in range(2):
    rs = 20 + 2*tt
    for p in range(8):
        r = ACC + 16*tt + 2*p
        I(f"v_pk_mul_f32 {vr(r,2)}, {vr(r,2)}, {vr(rs,2)} op_sel_hi:[1,0]")
    for p in range(8):
        r = ACC + 16*tt + 2*p
        I(f"v_cvt_pk_bf16_f32 v{32+8*tt+p}, v{r}, v{r+1}")
    for x in range(2):
        I(f"ds_write_b128 v19, {vr(32+8*tt+4*x,4)} offset:{(tt*2+x)*1024}")
I("s_mov_b32 s9, 0x7fff0000")
for i in range(4): I(f"buffer_store_dwordx4 v[32:35], v2, {srd(SH)}, s9 offen sc1", tag="hst")
vm_q = [dict(o) for o in a.vm]
I(f"s_branch {L_epdone}")
a.label(L_epf); a.restore(st_ep)
C0 = -2.0 * math.sqrt(2.0/math.pi) * math.log2(math.e)
C1 = C0 * 0.044715
I(f"s_mov_b32 s{sC1}, {fbits(C1)}"); I(f"s_mov_b32 s{sC1+1}, {fbits(C1)}")
B1 = 32
for q in range(4):
    for d in range(2):
        I(f"v_lshlrev_b32 v{B1+4*q+2*d}, 16, v{24+2*q+d}")
        I(f"v_and_b32 v{B1+4*q+2*d+1}, 0xffff0000, v{24+2*q+d}")
I(f"v_mov_b32 v48, {fbits(C0)}"); I(f"v_mov_b32 v49, {fbits(C0)}")
I(f"s_lshl_b32 s9, s{sTILE}, 12")
def gelu8(r, rs, b, outr):
    t = 52
    for p in range(4): I(f"v_pk_fma_f32 {vr(r+2*p,2)}, {vr(r+2*p,2)}, {vr(rs,2)}, {vr(b+2*p,2)} op_sel_hi:[1,0,1]")
    for p in range(4): I(f"v_pk_mul_f32 {vr(t+2*p,2)}, {vr(r+2*p,2)}, {vr(r+2*p,2)}")
    for p in range(4): I(f"v_pk_fma_f32 {vr(t+2*p,2)}, {vr(t+2*p,2)}, s[{sC1}:{sC1+1}], v[48:49]")
    for p in range(4): I(f"v_pk_mul_f32 {vr(t+2*p,2)}, {vr(t+2*p,2)}, {vr(r+2*p,2)}")
    for i in range(8): I(f"v_exp_f32 v{t+i}, v{t+i}")
    for p in range(4): I(f"v_pk_add_f32 {vr(t+2*p,2)}, {vr(t+2*p,2)}, 1.0 op_sel_hi:[1,0]")
    for i in range(8): I(f"v_rcp_f32 v{t+i}, v{t+i}")
    for p in range(4): I(f"v_pk_mul_f32 {vr(t+2*p,2)}, {vr(t+2*p,2)}, {vr(r+2*p,2)}")
    for p in range(4): I(f"v_cvt_pk_bf16_f32 v{outr+p}, v{t+2*p}, v{t+2*p+1}")
for tt in range(2):
    for u in range(2):
        o_ = 64 + 4*(2*tt+u)
        gelu8(ACC+16*tt+8*u, 20+2*tt, B1+8*u, o_)
        I(f"buffer_store_dwordx4 {vr(o_,4)}, v2, {srd(SH)}, s9 offen offset:{u*2048 + tt*1024} sc1", tag="hst")
a.label(L_epdone); a.flush_state(2); a.lg = []
a.vm = vm_q
stamp(6)

vSK, vSV = 184, 186
I(f"s_lshl_b32 s11, s{sR}, 10"); I(f"v_add_u32 v{vSK}, s11, v2"); I(f"v_add_u32 v{vSK+1}, 0x8000, v{vSK}")
I(f"s_mul_i32 s11, s{sR}, {4*VS}"); I(f"s_add_u32 s11, s11, {VL}")
I(f"v_mul_u32_u24 v25, {VS}, v4"); I("v_lshl_add_u32 v25, v5, 4, v25"); I(f"v_add_u32 v{vSV}, s11, v25"); I(f"v_add_u32 v{vSV+1}, {32*4*VS}, v{vSV}")
def kv_stage(i, which):
    if which == 0: return f"ds_write_b128 v{vSK + i % 2}, {vr(KVS+8*i,4)} offset:{(i//2)*8192}"
    return f"ds_write_b128 v{vSV + i % 2}, {vr(KVS+8*i+4,4)} offset:{(i//2)*8*4*VS}"
I(f"s_mul_i32 s11, s{sW}, {16*2*VS}"); I(f"s_add_u32 s11, s11, {VL}")
I(f"v_mul_u32_u24 v26, {VS}, v18"); I("v_add_u32 v26, s11, v26")
for i in range(4): I(f"v_mov_b32 v{28+i}, s{sONES}")
QA, QB, KF, V1, V2 = 4, 8, 12, 16, 20
CA, CB, SA, SB, OA, OB = 32, 48, 64, 80, 96, 112
ACC2, A2, B2, XRES, BB2 = 192, 128, 136, 160, 164
vKA, vVA, vTR = 24, 25, 26
vLP, vHH, vJJ = 188, 189, 190
I("v_mov_b32 v160, v17"); I("v_mov_b32 v161, v16"); I("v_mov_b32 v162, v18")
I(f"s_and_b32 s11, s{sW}, 3"); I("s_lshl_b32 s11, s11, 11"); I(f"s_add_u32 s11, s11, {QX}")
I("v_add_u32 v165, s11, v2")
I(f"v_mov_b32 v167, {KMAX}")
a.barrier()
I(f"ds_write_b128 v26, v[28:31] offset:256")
I(f"ds_read_b128 {vr(QA,4)}, v165"); I(f"ds_read_b128 {vr(QB,4)}, v165 offset:1024")
I(f"ds_read_b128 v[168:171], v167"); I(f"ds_read_b128 v[172:175], v167 offset:16")
for i in range(2):
    for wh in range(2): I(kv_stage(i, wh))
I("v_max3_f32 v168, v168, v169, v170"); I("v_max3_f32 v172, v172, v173, v174"); I("v_max3_f32 v168, v168, v171, v175")
I("v_max_f32 v168, v168, v172")
for (q, t) in ((QA, 176), (QB, 178)):
    I(f"v_dot2_f32_bf16 v{t}, v{q}, v{q}, 0")
    for i in range(1, 4): I(f"v_dot2_f32_bf16 v{t}, v{q+i}, v{q+i}, v{t}")
for t in (176, 178):
    I(f"v_mov_b32 v{t+1}, v{t}"); I(f"v_permlane32_swap_b32 v{t}, v{t+1}"); I(f"v_add_f32 v{t}, v{t}, v{t+1}")
    I(f"v_mul_f32 v{t}, v{t}, v168"); I(f"v_sqrt_f32 v{t}, v{t}")
I("v_max_f32 v180, v176, v178")
for i in range(16):
    I(f"v_sub_f32 v{CA+i}, 0, v176"); I(f"v_sub_f32 v{CB+i}, 0, v178")
I(f"v_cmp_nge_f32 vcc, {fbits(50.0)}, v180")
I(f"s_lshl_b32 s11, s{sKH}, 15"); I(f"v_add_u32 v163, s11, v2")
I(f"s_mul_i32 s11, s{sKH}, {64*2*VS}"); I(f"s_add_u32 s11, s11, {VL}")
I(f"v_min_u32 v164, 16, v162"); I(f"v_lshlrev_b32 v164, 4, v164")
I(f"v_mul_u32_u24 v183, {VS}, v161"); I(f"v_add3_u32 v164, v164, v183, s11")
if OPT.get("zrows", 1):
    I("v_and_b32 v183, 27, v162"); I("v_cmp_lt_u32 s[20:21], 16, v183")
    I("v_mov_b32 v183, 0x80000"); I("v_cndmask_b32 v164, v164, v183, s[20:21]")
def publish_h():
    L = newlabel("nohf"); L2 = newlabel("noep")
    a.wait_vm_tag("hst")
    vm_keep = [dict(o) for o in a.vm]
    I(f"v_mov_b32 v171, s{sTAG}")
    I("s_mov_b64 exec, 1")
    I(f"s_cmp_lt_u32 s{sW}, 2"); I(f"s_cbranch_scc1 {L}")
    I(f"s_lshl_b32 s9, s{sG}, 8"); I(f"s_lshl_b32 s10, s{sTILE}, 2"); I("s_add_u32 s9, s9, s10"); I(f"s_add_u32 s9, s9, {WS_HFLAG}")
    I(f"buffer_store_dword v171, off, {srd(SWS)}, s9 sc1")
    a.label(L)
    I("s_or_b32 s11, s2, s%d" % sW); I("s_cmp_lg_u32 s11, 0"); I(f"s_cbranch_scc1 {L2}")
    I(f"buffer_store_dword v171, off, {srd(SWS)}, 0 offset:{WS_EPOCH} sc1")
    a.label(L2)
    I("s_mov_b64 exec, -1")
    a.vm = vm_keep
a.barrier()
I(f"v_mov_b32 v{vKA}, v163"); I(f"v_mov_b32 v{vVA}, v164")
I(f"v_mov_b32 v{vLP}, v160"); I(f"v_mov_b32 v{vHH}, v161"); I(f"v_mov_b32 v{vJJ}, v162")
I(f"ds_read_b128 {vr(KF,4)}, v{vKA} offset:{KL}")
L_fast = newlabel("fast"); L_slow = newlabel("slowloop")
I(f"s_cbranch_vccz {L_fast}")
st_f = a.save()
I(f"v_mov_b32 v176, {fbits(-3.0e38)}"); I(f"v_mov_b32 v178, {fbits(-3.0e38)}")
I(f"s_mov_b32 s10, {WS_K}"); I("s_mov_b32 s11, 64")
a.label(L_slow); a.flush_state(16)
I(f"buffer_load_dwordx4 {vr(V1,4)}, v2, {srd(SWS)}, s10 offen sc1")
a.force_wait(vm=0)
I(f"v_mfma_f32_32x32x16_bf16 {vr(SA,16)}, {vr(V1,4)}, {vr(QA,4)}, 0")
I(f"v_mfma_f32_32x32x16_bf16 {vr(SB,16)}, {vr(V1,4)}, {vr(QB,4)}, 0")
I("s_add_u32 s10, s10, 1024")
for (S_, t) in ((SA, 176), (SB, 178)):
    for i in range(8): I(f"v_max3_f32 v{t}, v{t}, v{S_+2*i}, v{S_+2*i+1}")
I("s_sub_u32 s11, s11, 1"); I("s_cmp_lg_u32 s11, 0"); I(f"s_cbranch_scc1 {L_slow}")
for t in (176, 178):
    I(f"v_mov_b32 v{t+1}, v{t}"); I(f"v_permlane32_swap_b32 v{t}, v{t+1}"); I(f"v_max_f32 v{t}, v{t}, v{t+1}")
for i in range(16):
    I(f"v_sub_f32 v{CA+i}, 0, v176"); I(f"v_sub_f32 v{CB+i}, 0, v178")
I("s_nop 15")
a.label(L_fast); a.restore(st_f)
stamp(7)

def mm(d, x, y, c):
    cs = "0" if c is None else vr(c, 16)
    return f"v_mfma_f32_32x32x16_bf16 {vr(d,16)}, {vr(x,4)}, {vr(y,4)}, {cs}"
def blk(S_, h):
    b = S_ + 8*h
    return [f"v_exp_f32 v{b+i}, v{b+i}" for i in range(8)] + [f"v_cvt_pk_bf16_f32 v{b+i}, v{b+2*i}, v{b+2*i+1}" for i in range(4)]
def rdK(t): return f"ds_read_b128 {vr(KF,4)}, v{vKA} offset:{KL + t*1024}"
def rdV(reg, u): return f"ds_read_b128 {vr(reg,4)}, v{vVA} offset:{u*2*VS}"
I(rdV(V1, 0))
I(mm(SA, KF, QA, CA))

vWD, vOUT, vTR2, vT = 30, 31, 27, 28
sW2OFF, sHOFF, sWOM, sWOOFF, sRB = sT1, sT2, sKSTR, sOFF, 21
sKQ = sNT2
RINGREG = [0, 32768, VL, VL + 64*2*VS]
WOREG = [8192, 32768 + 8192, VL + 16*2*VS, VL + 80*2*VS]
NK2 = 22
def sel4(dst, idx, tab):
    I(f"s_mov_b32 s{dst}, {tab[0]}")
    for k_ in range(1, 4):
        I(f"s_cmp_eq_u32 s{idx}, {k_}"); I(f"s_cselect_b32 s{dst}, {tab[k_]}, s{dst}")
def setup1():
    I(f"s_lshr_b32 s{sKQ}, s{sW}, 1")
    I(f"s_lshl_b32 s11, s{sW}, 11"); I(f"s_add_u32 s{sT0}, s11, {W2R}")
    sel4(sRB, sKQ, RINGREG); I(f"s_lshl_b32 s9, s{sTT}, 12"); I(f"s_add_u32 s{sRB}, s{sRB}, s9")
    I(f"v_lshl_add_u32 v{vT}, v{vHH}, 8, v{vLP}"); I(f"v_add_u32 v{vTR}, s{sT0}, v{vT}"); I(f"v_add_u32 v{vTR2}, s{sRB}, v{vT}")
    I(f"v_lshrrev_b32 v{vWD}, 2, v{vJJ}"); I(f"v_lshlrev_b32 v{vWD}, 10, v{vWD}")
    I(f"v_lshl_add_u32 v{vWD}, v{vHH}, 6, v{vWD}"); I(f"v_and_b32 v{vT}, 3, v1"); I(f"v_lshl_add_u32 v{vWD}, v{vT}, 4, v{vWD}")
    I(f"s_lshl_b32 s11, s{sC}, 7"); I(f"v_add_u32 v{vWD}, s11, v{vWD}")
    mk_srd(SW2, 32, 33, 1376*1024)
    I(f"s_mul_i32 s{sW2OFF}, s{sKQ}, {NK2*16384}"); I(f"s_mul_i32 s{sHOFF}, s{sKQ}, {NK2*2048}")
    I(f"s_lshl_b32 s9, s{sTT}, 10"); I(f"s_add_u32 s{sHOFF}, s{sHOFF}, s9")
    I(f"v_lshlrev_b32 v{vT}, 10, v1"); I(f"v_add_u32 v{vT}, s11, v{vT}")
    I(f"s_mul_i32 s9, s{sTT}, {176*1024}"); I(f"s_add_u32 s9, s9, s{sW2OFF}")
    for i in range(3 if OPT.get("touchw", 0) else 0):
        I(f"buffer_load_dword v{172+i}, v{vT}, {srd(SW2)}, s9 offen")
        if i < 2: I("s_add_u32 s9, s9, 65536")
def setup2():
    mk_srd(SWO, 24, 25, 512*1024)
    I(f"s_lshl_b32 s{sWOOFF}, s{sW}, 16")
    if OPT.get("touchw", 0): I(f"buffer_load_dword v175, v{vT}, {srd(SWO)}, s{sWOOFF} offen")
    sel4(sWOM, sKQ, WOREG)
    I(f"s_lshl_b32 s9, s{sTT}, 13"); I(f"s_add_u32 s{sWOM}, s{sWOM}, s9")
def setup3():
    mk_srd(SB2, 34, 35, 1024)
    mk_srd(SOUT, 36, 37, 2048*1024)
    I(f"s_lshl_b32 s11, s{sC}, 7"); I(f"s_lshl_b32 s9, s{sKQ}, 5"); I("s_add_u32 s11, s11, s9")
    I(f"v_lshl_add_u32 v{vT}, v{vHH}, 4, s11")
    I(f"buffer_load_dwordx4 {vr(BB2,4)}, v{vT}, {srd(SB2)}, 0 offen")
    I(f"s_lshl_b32 s9, s{sG}, 6"); I(f"s_lshl_b32 s10, s{sTT}, 5"); I("s_add_u32 s9, s9, s10")
    I(f"v_add_u32 v{vOUT}, s9, v{vJJ}"); I(f"v_lshl_add_u32 v{vOUT}, v{vOUT}, 10, v{vT}")
    I(f"buffer_load_dwordx4 {vr(XRES,4)}, v{vOUT}, {srd(SX)}, 0 offen")
    if OPT.get("touchout", 0): I(f"buffer_load_dword v174, v{vOUT}, {srd(SOUT)}, 0 offen")
def slot_base(n): return (f"s{sT0}", 0) if n % 3 == 0 else (f"s{sRB}", (n % 3 - 1)*2048)
def w2_dma(n, hf):
    b, o = slot_base(n)
    return [("I", f"s_add_u32 m0, {b}, {o + hf*1024}"),
            ("I", f"s_add_u32 s{sW2OFF}, s{sW2OFF}, 8192") if (n, hf) != (0, 0) else ("I", "s_nop 0"),
            ("I", f"buffer_load_dwordx4 v{vWD}, {srd(SW2)}, s{sW2OFF} offen lds", f"w2_{n}")]
NB2 = 4
def h_load(n):
    b = B2 + 4*(n % NB2)
    L = [("I", f"buffer_load_dwordx4 {vr(b,4)}, v2, {srd(SH)}, s{sHOFF} offen offset:{(n % 2)*2048} sc1")]
    if n % 2: L.append(("I", f"s_add_u32 s{sHOFF}, s{sHOFF}, 4096"))
    return L
A2 = 128; B2 = 144
def w2_tr(n, nt):
    ab = A2 + 8*(n % 2) + 4*nt
    ad = vTR if n % 3 == 0 else vTR2
    o = slot_base(n)[1] + nt*512
    return [("WV", f"w2_{n}"),
            ("I", f"ds_read_b64_tr_b16 {vr(ab,2)}, v{ad} offset:{o}", f"tr_{n}"),
            ("I", f"ds_read_b64_tr_b16 {vr(ab+2,2)}, v{ad} offset:{o+1024}", f"tr_{n}")]
def f2_mm(n, nt):
    d = ACC2 + 16*nt
    return [("I", mm(d, A2+8*(n % 2)+4*nt, B2+4*(n % NB2), None if n == 0 else d))]
def hpoll():
    I(f"s_mul_i32 s9, s{sKQ}, 11")
    I(f"v_min_u32 v{vT}, 10, v1"); I(f"v_add_u32 v{vT}, s9, v{vT}"); I(f"v_min_u32 v{vT}, 42, v{vT}"); I(f"v_lshlrev_b32 v{vT}, 2, v{vT}")
    I(f"s_lshl_b32 s22, s{sG}, 8"); I(f"s_add_u32 s22, s22, {WS_HFLAG}")
    I(f"buffer_load_dword v171, v{vT}, {srd(SWS)}, s22 offen sc1")
def hcheck():
    L = newlabel("hok")
    I(f"v_cmp_ne_u32 vcc, s{sTAG}, v171")
    I("s_nop 4")
    I(f"s_cbranch_vccz {L}")
    st = a.save()
    poll(lambda: I(f"buffer_load_dword v171, v{vT}, {srd(SWS)}, s22 offen sc1"),
         lambda: I(f"v_cmp_ne_u32 vcc, s{sTAG}, v171"), "ph")
    a.label(L); a.restore(st)
def wo_dma(i):
    return [("I", f"s_add_u32 m0, s{sWOM}, {i*1024}"),
            ("I", f"s_add_u32 s{sWOOFF}, s{sWOOFF}, 8192") if i else ("I", "s_nop 0"),
            ("I", f"buffer_load_dwordx4 v{vWD}, {srd(SWO)}, s{sWOOFF} offen lds", "wo")]
NSTEP = 32
extra = {t: {} for t in range(NSTEP + 1)}
def add(t, pos, L): extra[t].setdefault(pos, []).extend(L)
add(0, 30, [("F", publish_h)])
add(1, 20, [("F", setup1)])
add(1, 44, [("F", setup2)])
add(2, 44, [("F", setup3)])
for n_ in range(12):
    add(n_ // 2, 21 if n_ % 2 == 0 else 45, [("I", kv_stage(2 + n_ // 2, n_ % 2))])
T0 = 8
add(4, 30, [("F", hpoll)])
add(5, 6, w2_dma(0, 0)); add(5, 30, w2_dma(0, 1))
add(6, 6, [("F", hcheck)])
add(6, 7, h_load(0)); add(6, 30, h_load(1)); add(7, 6, h_load(2))
add(7, 21, w2_tr(0, 0)); add(7, 40, w2_tr(0, 1))
add(7, 10, w2_dma(1, 0)); add(7, 16, w2_dma(1, 1)); add(7, 27, w2_dma(2, 0)); add(7, 34, w2_dma(2, 1))
for n in range(NK2):
    t = T0 + n
    add(t, 20, f2_mm(n, 0))
    if n + 1 < NK2: add(t, 34, w2_tr(n+1, 0))
    add(t, 44, f2_mm(n, 1))
    if n + 1 < NK2: add(t, 45, w2_tr(n+1, 1))
    if n + 3 < NK2:
        add(t, 46, h_load(n+3))
        add(t, 27, [("WL", f"tr_{n}")] + w2_dma(n+3, 0)); add(t+1, 3, w2_dma(n+3, 1))
if OPT.get("nof2", 0):
    for t in range(6, NSTEP): extra[t] = {}
if OPT.get("astamps", 0):
    for k_, t in enumerate((1, 2, 3, 4, 5, 6, 7, 8) if OPT.get("astamps") == 2 else (2, 5, 8, 12, 16, 20, 24, 28)): add(t, 0, [("F", (lambda k_=k_: stamp(k_)))])
PW = 2
for t in range(0, NSTEP, PW):
    if OPT.get("prio", 1): add(t, 1, [("I", f"s_setprio {3 - (t // PW) % 4}")])
for t in (7, 15, 23): add(t, 8, [("B",)])
for i in range(8): add(23 + (i+1)//2, 30 if i % 2 == 0 else 10, wo_dma(i))

def emit(L):
    for e in L:
        if e[0] == "I": I(e[1], tag=e[2] if len(e) > 2 else None)
        elif e[0] == "WV": a.wait_vm_tag(e[1])
        elif e[0] == "WL": a.wait_lg_tag(e[1])
        elif e[0] == "F": e[1]()
        elif e[0] == "B": a.barrier()
P4FLAG[0] = True
for t in range(NSTEP):
    valu = blk(SA, 0) + blk(SA, 1) + blk(SB, 0) + blk(SB, 1)
    ins = {}
    ins[2] = ([("I", mm(OB, V2, SB+8, OB))] if t > 0 else []) + [("I", rdV(V2, 2*t+1))]
    ins[9] = [("I", mm(SB, KF, QB, CB))] + ([("I", rdK(t+1))] if t+1 < NSTEP else [])
    ins[15] = [("I", mm(OA, V1, SA, OA if t > 0 else None))]
    ins[26] = [("I", mm(OA, V2, SA+8, OA))]
    ins[33] = [("I", mm(SA, KF, QA, CA))] if t+1 < NSTEP else []
    ins[39] = [("I", mm(OB, V1, SB, OB if t > 0 else None))] + ([("I", rdV(V1, 2*t+2))] if t+1 < NSTEP else [])
    for p_, L in extra[t].items():
        ins.setdefault(p_, []); ins[p_] = ins[p_] + L
    for i, v in enumerate(valu):
        if i in ins: emit(ins[i])
        I(v)
I(mm(OB, V2, SB+8, OB))
I("s_setprio 0")

L_k1 = newlabel("k1"); L_kj = newlabel("kj")
I(f"v_add_u32 v24, s{sT0}, v2")
I(f"s_xor_b32 s9, s{sW}, 4"); I("s_lshl_b32 s10, s9, 11"); I(f"s_add_u32 s10, s10, {W2R}"); I("v_add_u32 v25, s10, v2")
I(f"s_lshl_b32 s9, s9, 8"); I(f"s_add_u32 s9, s9, {QX}"); I("v_lshl_add_u32 v29, v1, 2, s9")
I(f"s_lshl_b32 s9, s{sW}, 8"); I(f"s_add_u32 s9, s9, {QX}"); I("v_lshl_add_u32 v28, v1, 2, s9")
a.wait_vm_tag("wo")
stamp(8)
I(f"s_cmp_lg_u32 s{sKH}, 0"); I(f"s_cbranch_scc1 {L_k1}")
hs = a.save()
for q in range(2): I(f"ds_write_b128 v24, {vr(OB+4*q,4)} offset:{q*1024}")
I(f"ds_write_b32 v28, v{OB+8}")
I(f"s_branch {L_kj}")
a.label(L_k1); a.restore(hs)
for q in range(2): I(f"ds_write_b128 v24, {vr(OA+4*q,4)} offset:{q*1024}")
I(f"ds_write_b32 v28, v{OA+8}")
for i in range(9): I(f"v_mov_b32 v{OA+i}, v{OB+i}")
a.label(L_kj); a.flush_state(2)
a.barrier()
for q in range(2): I(f"ds_read_b128 {vr(OB+4*q,4)}, v25 offset:{q*1024}")
I(f"ds_read_b32 v{OB+8}, v29")
WOF = 32
sel4(9, sKQ, WOREG)
I(f"v_lshl_add_u32 v26, v{vHH}, 8, v{vLP}"); I("v_add_u32 v26, s9, v26")
for i in range(9): I(f"v_add_f32 v{OA+i}, v{OA+i}, v{OB+i}")
I(f"v_rcp_f32 v{OA+8}, v{OA+8}")
for p in range(4): I(f"v_pk_mul_f32 {vr(OA+2*p,2)}, {vr(OA+2*p,2)}, {vr(OA+8,2)} op_sel_hi:[1,0]")
for p in range(4): I(f"v_cvt_pk_bf16_f32 v{OB+p}, v{OA+2*p}, v{OA+2*p+1}")
I(f"buffer_store_dwordx4 {vr(OB,4)}, v2, {srd(SO)}, s{sOSLOT} offen sc1")
stamp(9)
for hd in range(8):
    for nt in range(2):
        I(f"ds_read_b64_tr_b16 {vr(WOF+8*hd+4*nt,2)}, v26 offset:{hd*2048 + nt*512}")
        I(f"ds_read_b64_tr_b16 {vr(WOF+8*hd+4*nt+2,2)}, v26 offset:{hd*2048 + nt*512 + 1024}")
XB = 240
for d in range(4):
    I(f"v_lshlrev_b32 v{XB+2*d}, 16, v{XRES+d}"); I(f"v_and_b32 v{XB+1+2*d}, 0xffff0000, v{XRES+d}")
    I(f"v_lshlrev_b32 v{XB+8+2*d}, 16, v{BB2+d}"); I(f"v_and_b32 v{XB+9+2*d}, 0xffff0000, v{BB2+d}")
for p in range(4): I(f"v_pk_add_f32 {vr(XB+2*p,2)}, {vr(XB+2*p,2)}, {vr(XB+8+2*p,2)}")
AREA = [24576, VL + 48*2*VS, None]
def area_addr(dst, j, wreg):
    I(f"s_lshl_b32 s10, {wreg}, 11")
    if j < 2: I(f"s_add_u32 s10, s10, {AREA[j]}")
    else:
        I(f"s_cmp_ge_u32 {wreg}, 4"); I("s_cselect_b32 s11, 49152, 0"); I("s_add_u32 s10, s10, s11")
    I(f"v_add_u32 v{dst}, s10, v2")
for dl in range(1, 4):
    I(f"s_add_u32 s9, s{sW}, {2*dl}"); I("s_and_b32 s9, s9, 7"); area_addr(12 + dl, dl - 1, "s9")
    area_addr(16 + dl, dl - 1, f"s{sW}")
OF = 96
I(f"s_lshl_b32 s26, s{sKQ}, 14"); I(f"s_lshl_b32 s10, s{sTT}, 10"); I("s_add_u32 s26, s26, s10")
for k_ in range(1, 4): I(f"v_add_u32 v{3+k_}, {k_*4096}, v2")
def oload():
    for hd in range(8):
        ad = "v2" if hd < 2 else f"v{3 + hd//2}"
        I(f"buffer_load_dwordx4 {vr(OF+4*hd,4)}, {ad}, {srd(SO)}, s26 offen offset:{(hd%2)*2048} sc1")
stamp(10)
L_orep = newlabel("orep"); L_ook = newlabel("ook")
FB = 128
I(f"s_mov_b32 s{sCNT}, 0x4000")
a.label(L_orep); a.vm = []
oload()
for hd in range(8):
    o_ = OF + 4*hd
    for nt in range(2):
        I(mm(FB+16*nt, WOF+8*hd+4*nt, o_, ACC2+16*nt if hd == 0 else FB+16*nt))
    if hd == 0:
        I(f"v_max3_u32 v8, v{o_}, v{o_+1}, v{o_+2}"); I(f"v_mov_b32 v9, v{o_+3}")
    else:
        I(f"v_max3_u32 v8, v8, v{o_}, v{o_+1}"); I(f"v_max3_u32 v9, v9, v{o_+2}, v{o_+3}")
I("v_max_u32 v8, v8, v9")
I("v_cmp_eq_u32 vcc, -1, v8")
I("s_nop 4")
I(f"s_cbranch_vccz {L_ook}")
I("s_nop 15")
I(f"s_sub_u32 s{sCNT}, s{sCNT}, 1"); I(f"s_cmp_lg_u32 s{sCNT}, 0"); I(f"s_cbranch_scc1 {L_orep}")
a.label(L_ook)
stamp(11)
FA = 160
L_j = newlabel("rsj"); Ls = [newlabel(f"rs{k_}") for k_ in range(4)]
for k_ in range(1, 4):
    I(f"s_cmp_eq_u32 s{sKQ}, {k_}"); I(f"s_cbranch_scc1 {Ls[k_]}")
hs = a.save()
for k_ in range(4):
    a.label(Ls[k_]); a.restore(hs)
    for dl in range(1, 4):
        ch = (k_ + dl) % 4
        for q in range(2): I(f"ds_write_b128 v{12+dl}, {vr(FB+8*ch+4*q,4)} offset:{q*1024}")
    for p in range(4): I(f"v_pk_mov_b32 {vr(FA+2*p,2)}, {vr(FB+8*k_+2*p,2)}, {vr(FB+8*k_+2*p,2)} op_sel:[0,1]")
    if k_ < 3: I(f"s_branch {L_j}")
a.label(L_j); a.flush_state(2)
a.barrier()
for dl in range(1, 4):
    for q in range(2): I(f"ds_read_b128 {vr(32+8*(dl-1)+4*q,4)}, v{16+dl} offset:{q*1024}")
for p in range(4): I(f"v_pk_add_f32 {vr(FA+2*p,2)}, {vr(FA+2*p,2)}, {vr(32+2*p,2)}")
for p in range(4): I(f"v_pk_add_f32 {vr(40+2*p,2)}, {vr(40+2*p,2)}, {vr(48+2*p,2)}")
for p in range(4): I(f"v_pk_add_f32 {vr(FA+2*p,2)}, {vr(FA+2*p,2)}, {vr(40+2*p,2)}")
for i in range(4): I(f"v_permlane32_swap_b32 v{FA+i}, v{FA+4+i}")
for p in range(4): I(f"v_pk_add_f32 {vr(FA+2*p,2)}, {vr(FA+2*p,2)}, {vr(XB+2*p,2)}")
for p in range(4): I(f"v_cvt_pk_bf16_f32 v{56+p}, v{FA+2*p}, v{FA+2*p+1}")
I(f"buffer_store_dwordx4 v[56:59], v{vOUT}, {srd(SOUT)}, 0 offen")
stamp(12)
if OPT["stamps"] or OPT.get("dbg", 0): a.waitcnt(vm=0)
stamp(13)
a.raw("L_end:")
a.raw("    s_endpgm")

ref = open(f"cdna_kernels/{NAME}.s.ref").read()
head = ref[:ref.index("; Override launch geometry")]
out = head + f"""; Generated by gen/gen.py (hand-written generator).  One workgroup of 8 waves per CU.
; @launch grid=(256,1,1) block=(512,1,1) lds={LDS_BYTES}
.amdgcn_target "amdgcn-amd-amdhsa--gfx950"
.text
.globl {NAME}_kernel
.p2align 8
.type {NAME}_kernel,@function
{NAME}_kernel:
""" + a.text() + f""".section .rodata,"a"
.p2align 6
.amdhsa_kernel {NAME}_kernel
  .amdhsa_next_free_vgpr 256
  .amdhsa_next_free_sgpr 102
  .amdhsa_accum_offset 256
  .amdhsa_group_segment_fixed_size 0
  .amdhsa_kernarg_size 104
  .amdhsa_user_sgpr_count 2
  .amdhsa_user_sgpr_kernarg_segment_ptr 1
  .amdhsa_system_sgpr_workgroup_id_x 1
.end_amdhsa_kernel
"""
path = OPT_OUT if (OPT_OUT := next((x for x in sys.argv[1:] if x.endswith(".s")), None)) else f"cdna_kernels/{NAME}.s"
open(path, "w").write(out)
print("wrote", path, "lines", len(a.out), "nops", a.nops)
```

```python
import sys, math, struct
sys.path.insert(0, "gen")
from asmlib import Asm

NAME = "parallel_sum__grouped_kv_mqa__dense_activation_gelu__prompt"
OPT = dict(stop=99, stamps=False)
for a_ in sys.argv[1:]:
    if "=" in a_:
        k_, v_ = a_.split("="); OPT[k_] = int(v_)

def fbits(x): return "0x%08x" % struct.unpack("<I", struct.pack("<f", x))[0]

WS_EPOCH = 0
WS_KVFLAG = 0x1000
WS_HFLAG = 0x2000
WS_K = 0x10000
WS_V = 0x20000
WS_H = 0x100000
H_STRIDE = 0x2C000
WS_O = 0x800000
WS_DBG = 0xA00000
WS_SIZE = 0x1000000
XC = 0; XCS = 1040
RING2 = 66560
KL = 0; VL = 65536; VS = 272
QX = 135168
W2R = 143360
MISC = 159744
RSTD = MISC; KMAX = MISC + 256
LDS_BYTES = 163840
SX, SW, SKVW, SWS, SH, SO, SW2, SWO, SB1, SB2, SOUT = 44, 48, 52, 56, 60, 64, 68, 72, 76, 80, 84
SB2 = SB1
def srd(n): return f"s[{n}:{n+3}]"
sW, sG, sC, sTAG, sKSTR, sOFF, sT0, sT1, sT2, sTILE = 3, 4, 5, 6, 7, 8, 16, 17, 18, 12
sONES, sSELLO, sSELHI, sCNT = 13, 14, 15, 42
sC0, sC1 = 88, 90
sTB, sKIND, sFT, sTT, sKH, sNT2, sTT2 = 92, 93, 94, 95, 96, 97, 98
sEX = 100

a = Asm(); I = a.I
def vr(b, n): return f"v[{b}:{b+n-1}]"
lblc = [0]
def newlabel(p):
    lblc[0] += 1
    return f"L_{p}_{lblc[0]}"

P4FLAG = [False]
DBGMAP = {3: 1, 7: 2, 8: 3, 9: 4, 11: 5, 13: 6, 0: 7}
def dbgstamp(slot, src=None):
    L = newlabel("dbg")
    a.waitcnt(lg=0)
    I(f"s_cmp_gt_u32 s{SDBG+2}, 0"); I(f"s_cbranch_scc0 {L}")
    st = a.save()
    if src is None:
        I("s_memrealtime s[100:101]"); a.waitcnt(lg=0)
        I("v_mov_b32 v3, s100")
    I(f"buffer_store_dword {src or 'v3'}, off, s[{SDBG}:{SDBG+3}], s42 offset:{4*slot}".replace("s42", "0"))
    a.label(L); a.restore(st)
SDBG = 80
def stamp(idx):
    if OPT.get("dbg", 0):
        if idx in DBGMAP and DBGREADY[0]: dbgstamp(DBGMAP[idx])
        return
    if not OPT["stamps"]: return
    if OPT.get("astamps", 0) and idx < 7 and not P4FLAG[0]: return
    a.waitcnt(lg=0)
    for k_, op in enumerate(("s_memtime", "s_memrealtime")):
        I(f"{op} s[100:101]")
        a.waitcnt(lg=0)
        I("v_mov_b32 v3, s100")
        I(f"s_lshl_b32 s100, s2, 3"); I(f"s_add_u32 s100, s100, s{sW}"); I("s_lshl_b32 s100, s100, 7")
        I(f"s_add_u32 s100, s100, {WS_DBG + 4*idx + 64*k_}")
        I(f"buffer_store_dword v3, off, {srd(SWS)}, s100")

DBGREADY = [False]
def mk_srd(n, lo, hi, nbytes):
    I(f"s_mov_b32 s{n}, s{lo}"); I(f"s_mov_b32 s{n+1}, s{hi}")
    I(f"s_mov_b32 s{n+2}, {nbytes}"); I(f"s_mov_b32 s{n+3}, 0x00020000")


NE_OLD = OPT.get("ne_old", 8)
T0 = OPT.get("t0", 8)
TBAR = OPT.get("tbar", 18)
NSLOT = 8
KVPOLL = OPT.get("kvpoll", 22)
NMU = MISC + 256; KMAX = MISC + 512; LCNT = MISC + 576; CSL = MISC + 1024
I("s_cmp_ge_u32 s2, 256")
I("s_cbranch_scc1 L_end")
if OPT["stamps"]:
    I("s_memrealtime s[26:27]"); I("s_memtime s[38:39]"); a.waitcnt(lg=0); I("s_mov_b32 s19, s26"); I("s_mov_b32 s101, s38")
    I("v_mov_b32 v126, s19"); I("v_mov_b32 v127, s101")
if OPT.get("dbg", 0):
    I("s_memrealtime s[26:27]"); a.waitcnt(lg=0); I("v_mov_b32 v126, s26")
I("s_load_dwordx16 s[16:31], s[0:1], 0")
I("s_load_dwordx8 s[32:39], s[0:1], 64")
I("s_load_dwordx2 s[40:41], s[0:1], 96")
I("v_lshrrev_b32 v3, 6, v0")
I("v_and_b32 v1, 63, v0")
I(f"v_readfirstlane_b32 s{sW}, v3")
I("v_lshlrev_b32 v2, 4, v1")
if OPT.get("map", 1) == 0:
    I("s_and_b32 s9, s2, 7"); I("s_lshl_b32 s9, s9, 2"); I("s_bfe_u32 s10, s2, 0x20003"); I(f"s_or_b32 s{sG}, s9, s10")
    I(f"s_lshr_b32 s{sC}, s2, 5")
else:
    I("s_bfe_u32 s9, s2, 0x20001"); I("s_lshl_b32 s9, s9, 3"); I("s_bfe_u32 s10, s2, 0x30003"); I(f"s_or_b32 s{sG}, s9, s10")
    I("s_and_b32 s9, s2, 1"); I("s_lshl_b32 s9, s9, 2"); I("s_lshr_b32 s10, s2, 6"); I(f"s_or_b32 s{sC}, s9, s10")
XR = 128; T = 64
I("v_lshrrev_b32 v4, 4, v1")
I("v_and_b32 v5, 15, v1")
I(f"s_lshl_b32 s9, s{sC}, 1"); I(f"s_add_u32 s9, s9, s{sW}"); I("s_and_b32 s9, s9, 7"); I("s_lshl_b32 s9, s9, 3")
I("v_add_u32 v20, s9, v4")
I("v_lshlrev_b32 v21, 10, v20"); I("v_lshl_add_u32 v21, v5, 4, v21")
I(f"s_lshl_b32 s9, s{sG}, 16"); I("s_add_u32 s10, s9, 4096")
I(f"s_mov_b32 s{SX+2}, {2048*1024}"); I(f"s_mov_b32 s{SX+3}, 0x00020000")
I(f"s_mov_b32 s{SX}, s16"); I(f"s_mov_b32 s{SX+1}, s17")
for k_ in range(2):
    for i in range(4):
        I(f"buffer_load_dwordx4 {vr(XR+16*k_+4*i,4)}, v21, {srd(SX)}, s{9+k_} offen offset:{i*256}")
I(f"s_cmp_lt_u32 s{sC}, 4")
I("s_cselect_b32 s9, s20, s22"); I("s_cselect_b32 s10, s21, s23")
mk_srd(SKVW, 9, 10, 16384)
I(f"s_lshl_b32 s9, s{sW}, 11"); I(f"s_add_u32 m0, s9, {W2R}")
I("s_nop 0")
I(f"buffer_load_dwordx4 v2, {srd(SKVW)}, s9 offen lds", tag="x")
I(f"buffer_load_dwordx4 v2, {srd(SKVW)}, s9 offen offset:1024 lds", tag="x")
I(f"s_mov_b32 s{sONES}, 0x3f803f80")
I(f"s_mul_i32 s9, s{sC}, 5"); I(f"s_min_u32 s10, s{sC}, 3"); I("s_add_u32 s9, s9, s10")
I(f"s_add_u32 s9, s9, s{sW}"); I(f"s_sub_u32 s{sTILE}, s9, 2")
I(f"s_lshl_b32 s9, s{sC}, 1"); I(f"s_add_u32 s9, s9, s{sW}")
I(f"s_cmp_lt_u32 s{sW}, 2"); I(f"s_cselect_b32 s{sTILE}, s9, s{sTILE}")
I("s_mov_b32 s11, 2752"); I("s_cselect_b32 s11, 1024, s11")
I(f"s_mov_b32 s{SW+2}, {512*2752}"); I(f"s_cselect_b32 s{SW+2}, {512*1024}, s{SW+2}")
I(f"s_cselect_b32 s{SW}, s18, s28"); I(f"s_cselect_b32 s{SW+1}, s19, s29")
I(f"s_mov_b32 s{SW+3}, 0x00020000")
I(f"s_cmp_ge_u32 s{sC}, 3"); I("s_cselect_b32 s9, 1, 0"); I(f"s_cmp_eq_u32 s{sW}, 7"); I("s_cselect_b32 s9, s9, 0")
I("s_cmp_eq_u32 s9, 1"); I(f"s_cselect_b32 s{sTILE}, 63, s{sTILE}"); I(f"s_cselect_b32 s{SW+2}, 0, s{SW+2}")
if OPT.get("now", 0): I(f"s_mov_b32 s{SW+2}, 0")
I(f"s_lshl_b32 s{sKSTR}, s11, 4")
I("v_lshrrev_b32 v11, 2, v1")
I("v_mul_lo_u32 v11, v11, s11")
I("v_and_b32 v15, 3, v1")
I("v_lshl_add_u32 v11, v15, 4, v11")
I(f"s_lshl_b32 s9, s{sTILE}, 6")
I("v_add_u32 v11, s9, v11")
sWB = [26, 27, 38, 39]; sRING = 99; sQ = 19
if OPT.get("dbg", 0):
    I(f"s_lshl_b32 s9, s2, 3"); I(f"s_or_b32 s9, s9, s{sW}")
    I(f"s_cmp_eq_u32 s9, {133*8+4}"); I("s_cselect_b32 s10, 32, 0"); I("s_add_u32 s38, s38, s10"); I("s_addc_u32 s39, s39, 0")
    mk_srd(SDBG, 38, 39, 0); DBGREADY[0] = True
    I(f"s_cmp_eq_u32 s9, {133*8+4}"); I(f"s_cselect_b32 s{SDBG+2}, 32, 0"); I("s_cmp_eq_u32 s9, 0"); I(f"s_cselect_b32 s{SDBG+2}, 32, s{SDBG+2}")
    dbgstamp(0, "v126")
I(f"s_and_b32 s{sQ}, s{sG}, 3")
if OPT.get("noxor", 0): I(f"s_mov_b32 s{sQ}, 0")
I(f"s_lshl_b32 s10, s{sKSTR}, 3")
for b in range(4):
    I(f"s_xor_b32 s9, s{sQ}, {b}"); I(f"s_mul_i32 s{sWB[b]}, s9, s10")
I(f"s_lshl_b32 s{sRING}, s{sW}, 13"); I(f"s_add_u32 s{sRING}, s{sRING}, {RING2}")
def wslot(s): return (s % NSLOT)*1024
def wdma(s):
    I(f"s_add_u32 m0, s{sRING}, {wslot(s)}")
    if s % 8 == 0: I(f"s_mov_b32 s{sOFF}, s{sWB[s//8]}")
    else: I(f"s_add_u32 s{sOFF}, s{sOFF}, s{sKSTR}")
    I(f"buffer_load_dwordx4 v11, {srd(SW)}, s{sOFF} offen lds", tag=f"w_{s}")
NEARLY = OPT.get("nearly", 2)
for s in range(NEARLY): wdma(s)
mk_srd(SWS, 40, 41, WS_SIZE)
I(f"s_load_dword s{sTAG}, s[40:41], {WS_EPOCH}")
I(f"s_and_b32 s9, s{sC}, 3"); I(f"s_lshl_b32 s10, s{sG}, 2"); I(f"s_add_u32 s{sTB}, s9, s10"); I(f"s_lshr_b32 s{sKIND}, s{sC}, 2")
I(f"s_bfe_u32 s{sFT}, s{sW}, 0x10001"); I(f"s_and_b32 s{sTT}, s{sW}, 1"); I(f"s_lshr_b32 s{sKH}, s{sW}, 2")
I(f"s_lshl_b32 s9, s{sG}, 16"); I(f"s_add_u32 s9, s9, {WS_O}")
I("s_add_u32 s9, s40, s9"); I("s_addc_u32 s10, s41, 0")
mk_srd(SO, 9, 10, 65536)
sOSLOT = 43
I(f"s_lshl_b32 s9, s{sC}, 2"); I(f"s_lshl_b32 s10, s{sFT}, 1"); I("s_add_u32 s9, s9, s10"); I(f"s_add_u32 s9, s9, s{sKH}")
I("s_lshl_b32 s9, s9, 1"); I(f"s_add_u32 s9, s9, s{sTT}"); I(f"s_lshl_b32 s{sOSLOT}, s9, 10")
if OPT["stamps"]:
    I(f"s_lshl_b32 s100, s2, 3"); I(f"s_add_u32 s100, s100, s{sW}"); I("s_lshl_b32 s100, s100, 7")
    I(f"s_add_u32 s100, s100, {WS_DBG + 4*15}")
    I(f"buffer_store_dword v127, off, {srd(SWS)}, s100")
    I(f"buffer_store_dword v126, off, {srd(SWS)}, s100 offset:64")
ACC = 96
I("v_and_b32 v15, 3, v1"); I("v_lshlrev_b32 v13, 3, v15")
I("v_bfe_u32 v15, v1, 2, 2"); I("v_lshl_add_u32 v13, v15, 6, v13")
I("v_bfe_u32 v15, v1, 4, 1"); I("v_lshl_add_u32 v13, v15, 5, v13")
I("v_mov_b32 v17, v13")
I("v_lshrrev_b32 v16, 5, v1")
I("v_lshl_add_u32 v13, v16, 9, v13"); I(f"v_add_u32 v13, s{sRING}, v13")
I("v_and_b32 v18, 31, v1")
I(f"v_mul_u32_u24 v14, {XCS}, v18"); I("v_lshl_add_u32 v14, v16, 4, v14")
vB = [6, 7, 8, 9]
for b in range(4):
    I(f"s_xor_b32 s9, s{sQ}, {b}"); I("s_lshl_b32 s9, s9, 8"); I(f"v_add_u32 v{vB[b]}, s9, v14")
SEL = 88; CSA = 92
I("v_xor_b32 v15, v4, v1"); I("v_and_b32 v15, 1, v15"); I("v_cmp_eq_u32 vcc, 0, v15"); I(f"v_mov_b32 v15, s{sONES}")
for i in range(4): I(f"v_cndmask_b32 v{SEL+i}, 0, v15, vcc")
stamp(0)
I(f"v_mul_u32_u24 v21, {XCS}, v20"); I("v_lshl_add_u32 v21, v5, 4, v21")
I("v_lshlrev_b32 v20, 2, v20"); I(f"v_add_u32 v20, {RSTD}, v20")
for k_ in range(2):
    X = XR + 16*k_; t = T + 8*k_
    for i in range(16):
        if i % 4 == 0: I(f"ds_write_b128 v21, {vr(X+i,4)} offset:{k_*4*XCS + (i//4)*256}")
        I(f"v_dot2_f32_bf16 v{t}, v{X+i}, s{sONES}, {'0' if i == 0 else f'v{t}'}")
        I(f"v_dot2_f32_bf16 v{t+2}, v{X+i}, v{X+i}, {'0' if i == 0 else f'v{t+2}'}")
for k_ in range(2):
    pass
regs = [[T, T+1], [T+2, T+3], [T+8, T+9], [T+10, T+11]]
for ro in (8, 4, 2, 1):
    for rr in regs:
        I(f"v_add_f32_dpp v{rr[1]}, v{rr[0]}, v{rr[0]} row_ror:{ro} row_mask:0xf bank_mask:0xf"); rr.reverse()
for k_ in range(2):
    t = T + 8*k_
    I(f"v_mul_f32 v{t+4}, {fbits(-1.0/512)}, v{t}")
    I(f"v_mul_f32 v{t+5}, {fbits(1.0/512)}, v{t+2}")
for k_ in range(2):
    t = T + 8*k_
    I(f"v_fma_f32 v{t+5}, -v{t+4}, v{t+4}, v{t+5}")
    I(f"ds_write_b32 v20, v{t+4} offset:{256 + 16*k_}")
    I(f"v_max_f32 v{t+5}, 0, v{t+5}")
    I(f"v_add_f32 v{t+5}, {fbits(1e-5)}, v{t+5}")
    I(f"v_rsq_f32 v{t+5}, v{t+5}")
for k_ in range(2): I(f"ds_write_b32 v20, v{T+8*k_+5} offset:{16*k_}")
stamp(5)
for s in range(NEARLY, NSLOT): wdma(s)
a.wait_vm_tag("x")
a.barrier()
I(f"s_mul_i32 s{sTAG}, s{sTAG}, 0x9E3779B1")
I(f"s_add_u32 s{sTAG}, s{sTAG}, 0x7F4A7C15")
stamp(3)
L_kv = newlabel("kv"); L_k = newlabel("kloop")
I(f"s_cmp_lg_u32 s{sW}, 0"); I(f"s_cbranch_scc1 {L_k}")
stB = a.save()
WR = 128
I("s_setprio 3")
L_kvV = newlabel("kvV"); L_kvpub = newlabel("kvpub")
I(f"s_and_b32 s9, s{sC}, 3"); I("s_lshl_b32 s9, s9, 4")
I("v_add_u32 v20, s9, v5")
I(f"v_mul_u32_u24 v21, {XCS}, v20")
I("v_lshl_add_u32 v21, v4, 4, v21")
I("v_lshrrev_b32 v22, 2, v5")
I("v_lshl_add_u32 v22, v4, 3, v22")
I("v_lshlrev_b32 v22, 5, v22")
I("v_and_b32 v15, 3, v1")
I("v_lshl_add_u32 v22, v15, 3, v22")
I(f"v_add_u32 v22, {W2R}, v22")
for s in range(16):
    I(f"ds_read_b128 {vr(WR+8*s,4)}, v21 offset:{s*64}")
    I(f"ds_read_b64_tr_b16 {vr(WR+8*s+4,2)}, v22 offset:{s*1024}")
    I(f"ds_read_b64_tr_b16 {vr(WR+8*s+6,2)}, v22 offset:{s*1024+128}")
for i in range(4): I(f"v_mov_b32 v{68+i}, -1")
for i in range(4): I(f"v_mov_b32 v{64+i}, s{sONES}")
I("v_add_u32 v23, 0x1000, v2")
I(f"s_lshl_b32 s9, s{sC}, 13")
for i in range(8):
    I(f"buffer_store_dwordx4 v[68:71], {'v2' if i < 4 else 'v23'}, {srd(SO)}, s9 offen offset:{(i%4)*1024} sc1")
KD = 72; KC = 76
def kv_mm(kind):
    for s in range(16):
        b = WR + 8*s
        x_, w_ = vr(b, 4), vr(b+4, 4)
        c_ = "0" if s == 0 else vr(KD, 4); cc = "0" if s == 0 else vr(KC, 4)
        I(f"v_mfma_f32_16x16x32_bf16 {vr(KD,4)}, {w_ if kind == 0 else x_}, {x_ if kind == 0 else w_}, {c_}")
        I(f"v_mfma_f32_16x16x32_bf16 {vr(KC,4)}, {w_ if kind == 0 else 'v[64:67]'}, {'v[64:67]' if kind == 0 else w_}, {cc}")
I("v_bfe_u32 v24, v1, 4, 1"); I("v_lshrrev_b32 v25, 5, v1")
I(f"s_cmp_lg_u32 s{sKIND}, 0")
I(f"s_cbranch_scc1 {L_kvV}")
st_kv = a.save()
I("v_lshlrev_b32 v26, 2, v20"); I(f"v_add_u32 v26, {RSTD}, v26")
I(f"s_lshr_b32 s9, s{sTB}, 1"); I("s_lshl_b32 s9, s9, 10"); I(f"s_and_b32 s10, s{sTB}, 1"); I("s_lshl_b32 s10, s10, 8")
I("s_add_u32 s9, s9, s10"); I(f"s_add_u32 s9, s9, {WS_K}")
I("v_lshlrev_b32 v24, 9, v24"); I("v_lshl_add_u32 v24, v5, 4, v24"); I("v_lshl_add_u32 v24, v25, 3, v24")
I("ds_read_b32 v27, v26"); I("ds_read_b32 v28, v26 offset:256")
kv_mm(0)
for r in range(4): I(f"v_fmac_f32 v{KD+r}, v28, v{KC+r}")
for r in range(4): I(f"v_mul_f32 v{KD+r}, v{KD+r}, v27")
I(f"v_cvt_pk_bf16_f32 v30, v{KD}, v{KD+1}"); I(f"v_cvt_pk_bf16_f32 v31, v{KD+2}, v{KD+3}")
I(f"buffer_store_dwordx2 v[30:31], v24, {srd(SWS)}, s9 offen sc1")
I("v_dot2_f32_bf16 v22, v30, v30, 0"); I("v_dot2_f32_bf16 v22, v31, v31, v22")
I("v_mov_b32 v23, v22"); I("v_permlane32_swap_b32 v22, v23"); I("v_add_f32 v22, v22, v23")
I("v_mov_b32 v23, v22"); I("v_permlane16_swap_b32 v22, v23"); I("v_add_f32 v22, v22, v23")
for ro in (8, 4, 2, 1):
    I(f"v_max_f32_dpp v23, v22, v22 row_ror:{ro} row_mask:0xf bank_mask:0xf"); I("v_mov_b32 v22, v23")
I("v_mov_b32 v63, v22")
I(f"s_branch {L_kvpub}")
a.label(L_kvV); a.restore(st_kv)
I(f"s_and_b32 s9, s{sC}, 3"); I("s_lshl_b32 s9, s9, 6"); I(f"s_add_u32 s9, s9, {RSTD}")
I("v_lshl_add_u32 v26, v4, 4, s9")
I(f"s_lshl_b32 s9, s{sTB}, 9"); I(f"s_add_u32 s9, s9, {WS_V}")
I("v_lshlrev_b32 v24, 8, v24"); I("v_lshl_add_u32 v24, v5, 4, v24"); I("v_lshl_add_u32 v24, v25, 3, v24")
I("ds_read_b128 v[80:83], v26"); I("ds_read_b128 v[84:87], v26 offset:256")
kv_mm(1)
for r in range(4): I(f"v_fmac_f32 v{KD+r}, v{84+r}, v{KC+r}")
for r in range(4): I(f"v_mul_f32 v{KD+r}, v{KD+r}, v{80+r}")
I(f"v_cvt_pk_bf16_f32 v30, v{KD}, v{KD+1}"); I(f"v_cvt_pk_bf16_f32 v31, v{KD+2}, v{KD+3}")
I(f"buffer_store_dwordx2 v[30:31], v24, {srd(SWS)}, s9 offen sc1")
I("v_mov_b32 v63, 0")
a.label(L_kvpub); a.flush_state(2)
I(f"v_mov_b32 v62, s{sTAG}")
I(f"s_lshl_b32 s9, s{sTB}, 1"); I(f"s_add_u32 s9, s9, s{sKIND}"); I("s_lshl_b32 s9, s9, 3"); I(f"s_add_u32 s9, s9, {WS_KVFLAG}")
a.force_wait(vm=0)
I("s_mov_b64 exec, 1")
I(f"buffer_store_dwordx2 v[62:63], off, {srd(SWS)}, s9 sc1")
I("s_mov_b64 exec, -1")
I("s_setprio 0")
stamp(1)
a.label(L_k); a.restore(stB); a.flush_state(3); a.lg = []
stamp(2)

NBUF = 3
AF = 128; BF = 140
def p2_readB(s):
    bb = BF + 8*(s % NBUF)
    I(f"ds_read_b128 {vr(bb,4)}, v{vB[s//8]} offset:{(s%8)*32}")
    I(f"ds_read_b128 {vr(bb+4,4)}, v{vB[s//8]} offset:{32*XCS + (s%8)*32}")
def p2_readA(s):
    ab = AF + 4*(s % NBUF)
    a.wait_vm_tag(f"w_{s}")
    I(f"ds_read_b64_tr_b16 {vr(ab,2)}, v13 offset:{wslot(s)}")
    I(f"ds_read_b64_tr_b16 {vr(ab+2,2)}, v13 offset:{wslot(s)+256}")
def p2_mma(s, tt):
    ab = AF + 4*(s % NBUF); bb = BF + 8*(s % NBUF)
    c_ = "0" if s == 0 else vr(ACC+16*tt, 16)
    I(f"v_mfma_f32_32x32x16_bf16 {vr(ACC+16*tt,16)}, {vr(ab,4)}, {vr(bb+4*tt,4)}, {c_}")
def p2_cs(s):
    ab = AF + 4*(s % NBUF)
    I(f"v_mfma_f32_16x16x32_bf16 {vr(CSA,4)}, {vr(ab,4)}, {vr(SEL,4)}, {'0' if s == 0 else vr(CSA,4)}")

def poll(load_fn, check_fn, name, sleep=2):
    L = newlabel(name); Ld = newlabel(name + "ok")
    I(f"s_mov_b32 s{sCNT}, 0x4000")
    a.label(L)
    load_fn()
    a.force_wait(vm=0)
    check_fn()
    I("s_nop 4")
    I(f"s_cbranch_vccz {Ld}")
    if sleep: I(f"s_sleep {sleep}")
    I(f"s_sub_u32 s{sCNT}, s{sCNT}, 1")
    I(f"s_cmp_lg_u32 s{sCNT}, 0")
    I(f"s_cbranch_scc1 {L}")
    a.label(Ld)
KVS = 192
sR = 20
def kv_flag_load():
    I(f"s_add_u32 s{sR}, s{sC}, s{sG}"); I(f"s_and_b32 s{sR}, s{sR}, 7"); I(f"s_xor_b32 s{sR}, s{sR}, s{sW}")
    I("v_bfe_u32 v19, v1, 2, 1"); I("v_lshlrev_b32 v19, 10, v19")
    I("v_bfe_u32 v56, v1, 3, 2"); I("v_lshl_add_u32 v19, v56, 8, v19")
    I("v_and_b32 v56, 3, v1"); I("v_lshl_add_u32 v19, v56, 3, v19")
    I(f"s_lshl_b32 s21, s{sR}, 5"); I(f"s_add_u32 s21, s21, {WS_KVFLAG}")
    I(f"buffer_load_dwordx2 v[60:61], v19, {srd(SWS)}, s21 offen sc1")
def kv_fetch():
    L = newlabel("kvok")
    I(f"v_cmp_ne_u32 vcc, s{sTAG}, v60")
    I("s_nop 4")
    I(f"s_cbranch_vccz {L}")
    st = a.save()
    poll(lambda: I(f"buffer_load_dwordx2 v[60:61], v19, {srd(SWS)}, s21 offen sc1"),
         lambda: I(f"v_cmp_ne_u32 vcc, s{sTAG}, v60"), "pkv")
    a.label(L); a.restore(st)
    I(f"s_lshl_b32 s9, s{sR}, 10"); I(f"s_add_u32 s23, s9, {WS_V}"); I(f"s_add_u32 s22, s9, {WS_K}")
    I("v_add_u32 v191, 0x8000, v2")
def kv_load(i, which):
    so = "s22" if which == 0 else "s23"
    I(f"buffer_load_dwordx4 {vr(KVS+8*i+4*which,4)}, {'v2' if i % 2 == 0 else 'v191'}, {srd(SWS)}, {so} offen sc1")
    if i % 2 == 1: I(f"s_add_u32 {so}, {so}, 8192")
def kv_publish(nyounger):
    L = newlabel("nopub")
    I(f"s_cmp_lg_u32 s{sW}, 0"); I(f"s_cbranch_scc1 {L}")
    st = a.save()
    a.raw(f"    s_waitcnt vmcnt({nyounger})")
    I(f"v_mov_b32 v62, s{sTAG}")
    I(f"s_lshl_b32 s9, s{sTB}, 1"); I(f"s_add_u32 s9, s9, s{sKIND}"); I("s_lshl_b32 s9, s9, 3"); I(f"s_add_u32 s9, s9, {WS_KVFLAG}")
    I("s_mov_b64 exec, 1")
    I(f"buffer_store_dwordx2 v[62:63], off, {srd(SWS)}, s9 sc1")
    I("s_mov_b64 exec, -1")
    a.label(L); a.restore(st)
p2_readB(0); p2_readA(0); p2_readB(1); p2_readA(1)
mk_srd(SB1, 30, 31, 2752)
PUBK = OPT.get("pubk", 3)
for s in range(32):
    p2_mma(s, 0)
    PX = OPT.get("p2x", 0)
    if s + NSLOT < 32 and not PX & 2: wdma(s + NSLOT)
    if not PX & 4: p2_cs(s)
    if s + 2 < 32 and not PX & 1: p2_readB(s + 2)
    p2_mma(s, 1)
    if s + 2 < 32: p2_readA(s + 2)
    if s == 27: kv_flag_load()
    if s == 16:
        I(f"s_lshl_b32 s9, s{sTILE}, 6")
        I("v_lshl_add_u32 v10, v16, 3, s9")
        for q in range(4):
            I(f"buffer_load_dwordx2 {vr(24+2*q,2)}, v10, {srd(SB1)}, 0 offen offset:{16*q}")
    if s == 28:
        I("v_lshlrev_b32 v10, 2, v18"); I(f"v_add_u32 v10, {RSTD}, v10")
        for tt in range(2):
            I(f"ds_read_b32 v{20+2*tt}, v10 offset:{128*tt}"); I(f"ds_read_b32 v{64+2*tt}, v10 offset:{256 + 128*tt}")
stamp(4)
kv_fetch()
for i in range(2):
    for wh in range(2): kv_load(i, wh)
I(f"s_lshl_b32 s11, s{sW}, 7"); I(f"s_add_u32 s11, s11, {CSL}")
I("v_lshlrev_b32 v10, 6, v5"); I("v_lshl_add_u32 v10, v4, 4, v10"); I("v_add_u32 v10, s11, v10")
I("v_cmp_gt_u32 vcc, 2, v5")
for ro in (8, 4, 2, 1):
    I(f"v_max_f32_dpp v60, v61, v61 row_ror:{ro} row_mask:0xf bank_mask:0xf"); I("v_mov_b32 v61, v60")
I(f"s_and_saveexec_b64 s[26:27], vcc")
I(f"ds_write_b128 v10, {vr(CSA,4)}")
I("s_mov_b64 exec, s[26:27]")
I("v_lshl_add_u32 v10, v16, 4, s11")
CS = 72
for q in range(4): I(f"ds_read_b128 {vr(CS+4*q,4)}, v10 offset:{32*q}")
I("v_permlane16_swap_b32 v60, v61"); I("v_max_f32 v61, v60, v61")
I(f"s_lshl_b32 s11, s{sW}, 2"); I(f"s_add_u32 s11, s11, {KMAX}"); I("v_mov_b32 v60, s11")
I(f"ds_write_b32 v60, v61")
I(f"s_mul_i32 s9, s{sG}, {H_STRIDE}"); I(f"s_add_u32 s9, s9, {WS_H}")
I("s_add_u32 s9, s40, s9"); I("s_addc_u32 s10, s41, 0")
mk_srd(SH, 9, 10, 86*2048)
L_epf = newlabel("epffn"); L_epdone = newlabel("epdone")
I(f"s_cmp_ge_u32 s{sW}, 2")
I(f"s_cbranch_scc1 {L_epf}")
st_ep = a.save()
QS = 0.25 * math.log2(math.e)
I(f"v_mul_f32 v20, {fbits(QS)}, v20"); I(f"v_mul_f32 v22, {fbits(QS)}, v22")
I(f"s_lshl_b32 s9, s{sW}, 12"); I(f"s_add_u32 s9, s9, {QX}")
I("v_add_u32 v19, s9, v2")
for tt in range(2):
    rs = 20 + 2*tt; nm = 64 + 2*tt
    for p in range(8):
        r = ACC + 16*tt + 2*p
        I(f"v_pk_fma_f32 {vr(r,2)}, {vr(CS+2*p,2)}, {vr(nm,2)}, {vr(r,2)} op_sel_hi:[1,0,1]")
    for p in range(8):
        r = ACC + 16*tt + 2*p
        I(f"v_pk_mul_f32 {vr(r,2)}, {vr(r,2)}, {vr(rs,2)} op_sel_hi:[1,0]")
    for p in range(8):
        r = ACC + 16*tt + 2*p
        I(f"v_cvt_pk_bf16_f32 v{32+8*tt+p}, v{r}, v{r+1}")
    for x in range(2):
        I(f"ds_write_b128 v19, {vr(32+8*tt+4*x,4)} offset:{(tt*2+x)*1024}")
I("s_mov_b32 s9, 0x7fff0000")
def kv_rest(n):
    for m in range(3*n, 3*n + 3): kv_load(2 + m // 2, m % 2)
for i in range(4):
    I(f"buffer_store_dwordx4 v[32:35], v2, {srd(SH)}, s9 offen sc1", tag="hst")
vm_q = [dict(o) for o in a.vm]
I(f"s_branch {L_epdone}")
a.label(L_epf); a.restore(st_ep)
C0 = -2.0 * math.sqrt(2.0/math.pi) * math.log2(math.e)
C1 = C0 * 0.044715
I(f"s_mov_b32 s{sC1}, {fbits(C1)}"); I(f"s_mov_b32 s{sC1+1}, {fbits(C1)}")
B1 = 32
for q in range(4):
    for d in range(2):
        I(f"v_lshlrev_b32 v{B1+4*q+2*d}, 16, v{24+2*q+d}")
        I(f"v_and_b32 v{B1+4*q+2*d+1}, 0xffff0000, v{24+2*q+d}")
I(f"v_mov_b32 v48, {fbits(C0)}"); I(f"v_mov_b32 v49, {fbits(C0)}")
I(f"s_lshl_b32 s9, s{sTILE}, 12")
def gelu8(r, rs, nm, cs, b, outr):
    t = 52
    for p in range(4): I(f"v_pk_fma_f32 {vr(r+2*p,2)}, {vr(cs+2*p,2)}, {vr(nm,2)}, {vr(r+2*p,2)} op_sel_hi:[1,0,1]")
    for p in range(4): I(f"v_pk_fma_f32 {vr(r+2*p,2)}, {vr(r+2*p,2)}, {vr(rs,2)}, {vr(b+2*p,2)} op_sel_hi:[1,0,1]")
    for p in range(4): I(f"v_pk_mul_f32 {vr(t+2*p,2)}, {vr(r+2*p,2)}, {vr(r+2*p,2)}")
    for p in range(4): I(f"v_pk_fma_f32 {vr(t+2*p,2)}, {vr(t+2*p,2)}, s[{sC1}:{sC1+1}], v[48:49]")
    for p in range(4): I(f"v_pk_mul_f32 {vr(t+2*p,2)}, {vr(t+2*p,2)}, {vr(r+2*p,2)}")
    for i in range(8): I(f"v_exp_f32 v{t+i}, v{t+i}")
    for p in range(4): I(f"v_pk_add_f32 {vr(t+2*p,2)}, {vr(t+2*p,2)}, 1.0 op_sel_hi:[1,0]")
    for i in range(8): I(f"v_rcp_f32 v{t+i}, v{t+i}")
    for p in range(4): I(f"v_pk_mul_f32 {vr(t+2*p,2)}, {vr(t+2*p,2)}, {vr(r+2*p,2)}")
    for p in range(4): I(f"v_cvt_pk_bf16_f32 v{outr+p}, v{t+2*p}, v{t+2*p+1}")
for tt in range(2):
    for u in range(2):
        o_ = 128 + 4*(2*tt+u)
        gelu8(ACC+16*tt+8*u, 20+2*tt, 64+2*tt, CS+8*u, B1+8*u, o_)
        I(f"buffer_store_dwordx4 {vr(o_,4)}, v2, {srd(SH)}, s9 offen offset:{u*2048 + tt*1024} sc1", tag="hst")
a.label(L_epdone); a.flush_state(2); a.lg = []
a.vm = vm_q
stamp(6)

vSK, vSV = 184, 186
I(f"s_lshl_b32 s11, s{sR}, 10"); I(f"v_add_u32 v{vSK}, s11, v2"); I(f"v_add_u32 v{vSK+1}, 0x8000, v{vSK}")
I(f"s_mul_i32 s11, s{sR}, {4*VS}"); I(f"s_add_u32 s11, s11, {VL}")
I(f"v_mul_u32_u24 v25, {VS}, v4"); I("v_lshl_add_u32 v25, v5, 4, v25"); I(f"v_add_u32 v{vSV}, s11, v25"); I(f"v_add_u32 v{vSV+1}, {32*4*VS}, v{vSV}")
def kv_stage(i, which):
    if which == 0: return f"ds_write_b128 v{vSK + i % 2}, {vr(KVS+8*i,4)} offset:{(i//2)*8192}"
    return f"ds_write_b128 v{vSV + i % 2}, {vr(KVS+8*i+4,4)} offset:{(i//2)*8*4*VS}"
I(f"s_mul_i32 s11, s{sW}, {16*2*VS}"); I(f"s_add_u32 s11, s11, {VL}")
I(f"v_mul_u32_u24 v26, {VS}, v18"); I("v_add_u32 v26, s11, v26")
for i in range(4): I(f"v_mov_b32 v{28+i}, s{sONES}")
QA, QB, KF, V1, V2 = 4, 8, 12, 16, 20
CA, CB, SA, SB, OA, OB = 32, 48, 64, 80, 96, 112
ACC2, A2, B2, XRES, BB2 = 192, 128, 136, 160, 164
vKA, vVA, vTR = 24, 25, 26
vLP, vHH, vJJ = 188, 189, 190
I("v_mov_b32 v160, v17"); I("v_mov_b32 v161, v16"); I("v_mov_b32 v162, v18")
I(f"s_and_b32 s11, s{sW}, 3"); I("s_lshl_b32 s11, s11, 11"); I(f"s_add_u32 s11, s11, {QX}")
I("v_add_u32 v165, s11, v2")
I(f"v_mov_b32 v167, {KMAX}")
a.barrier()
I(f"ds_write_b128 v26, v[28:31] offset:256")
I(f"ds_read_b128 {vr(QA,4)}, v165"); I(f"ds_read_b128 {vr(QB,4)}, v165 offset:1024")
I(f"ds_read_b128 v[168:171], v167"); I(f"ds_read_b128 v[172:175], v167 offset:16")
for i in range(2):
    for wh in range(2): I(kv_stage(i, wh))
I("v_max3_f32 v168, v168, v169, v170"); I("v_max3_f32 v172, v172, v173, v174"); I("v_max3_f32 v168, v168, v171, v175")
I("v_max_f32 v168, v168, v172")
for (q, t) in ((QA, 176), (QB, 178)):
    I(f"v_dot2_f32_bf16 v{t}, v{q}, v{q}, 0")
    for i in range(1, 4): I(f"v_dot2_f32_bf16 v{t}, v{q+i}, v{q+i}, v{t}")
for t in (176, 178):
    I(f"v_mov_b32 v{t+1}, v{t}"); I(f"v_permlane32_swap_b32 v{t}, v{t+1}"); I(f"v_add_f32 v{t}, v{t}, v{t+1}")
    I(f"v_mul_f32 v{t}, v{t}, v168"); I(f"v_sqrt_f32 v{t}, v{t}")
I("v_max_f32 v180, v176, v178")
for i in range(16):
    I(f"v_sub_f32 v{CA+i}, 0, v176"); I(f"v_sub_f32 v{CB+i}, 0, v178")
I(f"v_cmp_nge_f32 vcc, {fbits(50.0)}, v180")
I(f"s_lshl_b32 s11, s{sKH}, 15"); I(f"v_add_u32 v163, s11, v2")
I(f"s_mul_i32 s11, s{sKH}, {64*2*VS}"); I(f"s_add_u32 s11, s11, {VL}")
I(f"v_min_u32 v164, 16, v162"); I(f"v_lshlrev_b32 v164, 4, v164")
I(f"v_mul_u32_u24 v183, {VS}, v161"); I(f"v_add3_u32 v164, v164, v183, s11")
if OPT.get("zrows", 1):
    I("v_and_b32 v183, 27, v162"); I("v_cmp_lt_u32 s[20:21], 16, v183")
    I("v_mov_b32 v183, 0x80000"); I("v_cndmask_b32 v164, v164, v183, s[20:21]")
def publish_h():
    L = newlabel("nohf"); L2 = newlabel("noep")
    a.wait_vm_tag("hst")
    vm_keep = [dict(o) for o in a.vm]
    I(f"v_mov_b32 v171, s{sTAG}")
    I("s_mov_b64 exec, 1")
    I(f"s_cmp_lt_u32 s{sW}, 2"); I(f"s_cbranch_scc1 {L}")
    I(f"s_lshl_b32 s9, s{sG}, 8"); I(f"s_lshl_b32 s10, s{sTILE}, 2"); I("s_add_u32 s9, s9, s10"); I(f"s_add_u32 s9, s9, {WS_HFLAG}")
    I(f"buffer_store_dword v171, off, {srd(SWS)}, s9 sc1")
    a.label(L)
    I("s_or_b32 s11, s2, s%d" % sW); I("s_cmp_lg_u32 s11, 0"); I(f"s_cbranch_scc1 {L2}")
    I(f"buffer_store_dword v171, off, {srd(SWS)}, 0 offset:{WS_EPOCH} sc1")
    a.label(L2)
    I("s_mov_b64 exec, -1")
    a.vm = vm_keep
a.barrier()
I(f"v_mov_b32 v{vKA}, v163"); I(f"v_mov_b32 v{vVA}, v164")
I(f"v_mov_b32 v{vLP}, v160"); I(f"v_mov_b32 v{vHH}, v161"); I(f"v_mov_b32 v{vJJ}, v162")
I(f"ds_read_b128 {vr(KF,4)}, v{vKA} offset:{KL}")
L_fast = newlabel("fast"); L_slow = newlabel("slowloop")
I(f"s_cbranch_vccz {L_fast}")
st_f = a.save()
I(f"v_mov_b32 v176, {fbits(-3.0e38)}"); I(f"v_mov_b32 v178, {fbits(-3.0e38)}")
I(f"s_mov_b32 s10, {WS_K}"); I("s_mov_b32 s11, 64")
a.label(L_slow); a.flush_state(16)
I(f"buffer_load_dwordx4 {vr(V1,4)}, v2, {srd(SWS)}, s10 offen sc1")
a.force_wait(vm=0)
I(f"v_mfma_f32_32x32x16_bf16 {vr(SA,16)}, {vr(V1,4)}, {vr(QA,4)}, 0")
I(f"v_mfma_f32_32x32x16_bf16 {vr(SB,16)}, {vr(V1,4)}, {vr(QB,4)}, 0")
I("s_add_u32 s10, s10, 1024")
for (S_, t) in ((SA, 176), (SB, 178)):
    for i in range(8): I(f"v_max3_f32 v{t}, v{t}, v{S_+2*i}, v{S_+2*i+1}")
I("s_sub_u32 s11, s11, 1"); I("s_cmp_lg_u32 s11, 0"); I(f"s_cbranch_scc1 {L_slow}")
for t in (176, 178):
    I(f"v_mov_b32 v{t+1}, v{t}"); I(f"v_permlane32_swap_b32 v{t}, v{t+1}"); I(f"v_max_f32 v{t}, v{t}, v{t+1}")
for i in range(16):
    I(f"v_sub_f32 v{CA+i}, 0, v176"); I(f"v_sub_f32 v{CB+i}, 0, v178")
I("s_nop 15")
a.label(L_fast); a.restore(st_f)
stamp(7)

def mm(d, x, y, c):
    cs = "0" if c is None else vr(c, 16)
    return f"v_mfma_f32_32x32x16_bf16 {vr(d,16)}, {vr(x,4)}, {vr(y,4)}, {cs}"
def blk(S_, h):
    b = S_ + 8*h
    return [f"v_exp_f32 v{b+i}, v{b+i}" for i in range(8)] + [f"v_cvt_pk_bf16_f32 v{b+i}, v{b+2*i}, v{b+2*i+1}" for i in range(4)]
def rdK(t): return f"ds_read_b128 {vr(KF,4)}, v{vKA} offset:{KL + t*1024}"
def rdV(reg, u): return f"ds_read_b128 {vr(reg,4)}, v{vVA} offset:{u*2*VS}"
I(rdV(V1, 0))
I(mm(SA, KF, QA, CA))

vWD, vOUT, vTR2, vT = 30, 31, 27, 28
sW2OFF, sHOFF, sWOM, sWOOFF, sRB = sT1, sT2, sKSTR, sOFF, 21
sKQ = sNT2
RINGREG = [0, 32768, VL, VL + 64*2*VS]
WOREG = [8192, 32768 + 8192, VL + 16*2*VS, VL + 80*2*VS]
NK2 = 22
def sel4(dst, idx, tab):
    I(f"s_mov_b32 s{dst}, {tab[0]}")
    for k_ in range(1, 4):
        I(f"s_cmp_eq_u32 s{idx}, {k_}"); I(f"s_cselect_b32 s{dst}, {tab[k_]}, s{dst}")
def setup1():
    I(f"s_lshr_b32 s{sKQ}, s{sW}, 1")
    I(f"s_lshl_b32 s11, s{sW}, 11"); I(f"s_add_u32 s{sT0}, s11, {W2R}")
    sel4(sRB, sKQ, RINGREG); I(f"s_lshl_b32 s9, s{sTT}, 12"); I(f"s_add_u32 s{sRB}, s{sRB}, s9")
    I(f"v_lshl_add_u32 v{vT}, v{vHH}, 8, v{vLP}"); I(f"v_add_u32 v{vTR}, s{sT0}, v{vT}"); I(f"v_add_u32 v{vTR2}, s{sRB}, v{vT}")
    I(f"v_lshrrev_b32 v{vWD}, 2, v{vJJ}"); I(f"v_lshlrev_b32 v{vWD}, 10, v{vWD}")
    I(f"v_lshl_add_u32 v{vWD}, v{vHH}, 6, v{vWD}"); I(f"v_and_b32 v{vT}, 3, v1"); I(f"v_lshl_add_u32 v{vWD}, v{vT}, 4, v{vWD}")
    I(f"s_lshl_b32 s11, s{sC}, 7"); I(f"v_add_u32 v{vWD}, s11, v{vWD}")
    mk_srd(SW2, 32, 33, 1376*1024)
    I(f"s_mul_i32 s{sW2OFF}, s{sKQ}, {NK2*16384}"); I(f"s_mul_i32 s{sHOFF}, s{sKQ}, {NK2*2048}")
    I(f"s_lshl_b32 s9, s{sTT}, 10"); I(f"s_add_u32 s{sHOFF}, s{sHOFF}, s9")
    I(f"v_lshlrev_b32 v{vT}, 10, v1"); I(f"v_add_u32 v{vT}, s11, v{vT}")
    I(f"s_mul_i32 s9, s{sTT}, {176*1024}"); I(f"s_add_u32 s9, s9, s{sW2OFF}")
    for i in range(3 if OPT.get("touchw", 0) else 0):
        I(f"buffer_load_dword v{172+i}, v{vT}, {srd(SW2)}, s9 offen")
        if i < 2: I("s_add_u32 s9, s9, 65536")
def setup2():
    mk_srd(SWO, 24, 25, 512*1024)
    I(f"s_lshl_b32 s{sWOOFF}, s{sW}, 16")
    if OPT.get("touchw", 0): I(f"buffer_load_dword v175, v{vT}, {srd(SWO)}, s{sWOOFF} offen")
    sel4(sWOM, sKQ, WOREG)
    I(f"s_lshl_b32 s9, s{sTT}, 13"); I(f"s_add_u32 s{sWOM}, s{sWOM}, s9")
def setup3():
    mk_srd(SB2, 34, 35, 1024)
    mk_srd(SOUT, 36, 37, 2048*1024)
    I(f"s_lshl_b32 s11, s{sC}, 7"); I(f"s_lshl_b32 s9, s{sKQ}, 5"); I("s_add_u32 s11, s11, s9")
    I(f"v_lshl_add_u32 v{vT}, v{vHH}, 4, s11")
    I(f"buffer_load_dwordx4 {vr(BB2,4)}, v{vT}, {srd(SB2)}, 0 offen")
    I(f"s_lshl_b32 s9, s{sG}, 6"); I(f"s_lshl_b32 s10, s{sTT}, 5"); I("s_add_u32 s9, s9, s10")
    I(f"v_add_u32 v{vOUT}, s9, v{vJJ}"); I(f"v_lshl_add_u32 v{vOUT}, v{vOUT}, 10, v{vT}")
    I(f"buffer_load_dwordx4 {vr(XRES,4)}, v{vOUT}, {srd(SX)}, 0 offen")
    if OPT.get("touchout", 0): I(f"buffer_load_dword v174, v{vOUT}, {srd(SOUT)}, 0 offen")
def slot_base(n): return (f"s{sT0}", 0) if n % 3 == 0 else (f"s{sRB}", (n % 3 - 1)*2048)
def w2_dma(n, hf):
    b, o = slot_base(n)
    return [("I", f"s_add_u32 m0, {b}, {o + hf*1024}"),
            ("I", f"s_add_u32 s{sW2OFF}, s{sW2OFF}, 8192") if (n, hf) != (0, 0) else ("I", "s_nop 0"),
            ("I", f"buffer_load_dwordx4 v{vWD}, {srd(SW2)}, s{sW2OFF} offen lds", f"w2_{n}")]
NB2 = 4
def h_load(n):
    b = B2 + 4*(n % NB2)
    L = [("I", f"buffer_load_dwordx4 {vr(b,4)}, v2, {srd(SH)}, s{sHOFF} offen offset:{(n % 2)*2048} sc1")]
    if n % 2: L.append(("I", f"s_add_u32 s{sHOFF}, s{sHOFF}, 4096"))
    return L
A2 = 128; B2 = 144
def w2_tr(n, nt):
    ab = A2 + 8*(n % 2) + 4*nt
    ad = vTR if n % 3 == 0 else vTR2
    o = slot_base(n)[1] + nt*512
    return [("WV", f"w2_{n}"),
            ("I", f"ds_read_b64_tr_b16 {vr(ab,2)}, v{ad} offset:{o}", f"tr_{n}"),
            ("I", f"ds_read_b64_tr_b16 {vr(ab+2,2)}, v{ad} offset:{o+1024}", f"tr_{n}")]
def f2_mm(n, nt):
    d = ACC2 + 16*nt
    return [("I", mm(d, A2+8*(n % 2)+4*nt, B2+4*(n % NB2), None if n == 0 else d))]
def hpoll():
    I(f"s_mul_i32 s9, s{sKQ}, 11")
    I(f"v_min_u32 v{vT}, 10, v1"); I(f"v_add_u32 v{vT}, s9, v{vT}"); I(f"v_min_u32 v{vT}, 42, v{vT}"); I(f"v_lshlrev_b32 v{vT}, 2, v{vT}")
    I(f"s_lshl_b32 s27, s{sG}, 8"); I(f"s_add_u32 s27, s27, {WS_HFLAG}")
    I(f"buffer_load_dword v171, v{vT}, {srd(SWS)}, s27 offen sc1")
def hcheck():
    L = newlabel("hok")
    I(f"v_cmp_ne_u32 vcc, s{sTAG}, v171")
    I("s_nop 4")
    I(f"s_cbranch_vccz {L}")
    st = a.save()
    poll(lambda: I(f"buffer_load_dword v171, v{vT}, {srd(SWS)}, s27 offen sc1"),
         lambda: I(f"v_cmp_ne_u32 vcc, s{sTAG}, v171"), "ph")
    a.label(L); a.restore(st)
def wo_dma(i):
    return [("I", f"s_add_u32 m0, s{sWOM}, {i*1024}"),
            ("I", f"s_add_u32 s{sWOOFF}, s{sWOOFF}, 8192") if i else ("I", "s_nop 0"),
            ("I", f"buffer_load_dwordx4 v{vWD}, {srd(SWO)}, s{sWOOFF} offen lds", "wo")]
NSTEP = 32
extra = {t: {} for t in range(NSTEP + 1)}
def add(t, pos, L): extra[t].setdefault(pos, []).extend(L)
add(0, 30, [("F", publish_h)])
add(1, 20, [("F", setup1)])
add(1, 44, [("F", setup2)])
add(2, 44, [("F", setup3)])
for n_ in range(12):
    add(n_ // 4, (4, 16, 27, 40)[n_ % 4], [("F", (lambda n_=n_: kv_load(2 + n_ // 2, n_ % 2)))])
    add(3 + n_ // 3, (10, 21, 45)[n_ % 3], [("I", kv_stage(2 + n_ // 2, n_ % 2))])
T0 = 8
add(4, 30, [("F", hpoll)])
add(5, 6, w2_dma(0, 0)); add(5, 30, w2_dma(0, 1))
add(6, 6, [("F", hcheck)])
add(6, 7, h_load(0)); add(6, 30, h_load(1)); add(7, 6, h_load(2))
add(7, 21, w2_tr(0, 0)); add(7, 40, w2_tr(0, 1))
add(7, 10, w2_dma(1, 0)); add(7, 16, w2_dma(1, 1)); add(7, 27, w2_dma(2, 0)); add(7, 34, w2_dma(2, 1))
for n in range(NK2):
    t = T0 + n
    add(t, 20, f2_mm(n, 0))
    if n + 1 < NK2: add(t, 34, w2_tr(n+1, 0))
    add(t, 44, f2_mm(n, 1))
    if n + 1 < NK2: add(t, 45, w2_tr(n+1, 1))
    if n + 3 < NK2:
        add(t, 46, h_load(n+3))
        add(t, 27, [("WL", f"tr_{n}")] + w2_dma(n+3, 0)); add(t+1, 3, w2_dma(n+3, 1))
if OPT.get("nof2", 0):
    for t in range(6, NSTEP): extra[t] = {}
if OPT.get("astamps", 0):
    for k_, t in enumerate((1, 2, 3, 4, 5, 6, 7, 8) if OPT.get("astamps") == 2 else (2, 5, 8, 12, 16, 20, 24, 28)): add(t, 0, [("F", (lambda k_=k_: stamp(k_)))])
PW = 2
for t in range(0, NSTEP, PW):
    if OPT.get("prio", 1): add(t, 1, [("I", f"s_setprio {3 - (t // PW) % 4}")])
for t in (7, 15, 23): add(t, 8, [("B",)])
for i in range(8): add(23 + (i+1)//2, 30 if i % 2 == 0 else 10, wo_dma(i))

def emit(L):
    for e in L:
        if e[0] == "I": I(e[1], tag=e[2] if len(e) > 2 else None)
        elif e[0] == "WV": a.wait_vm_tag(e[1])
        elif e[0] == "WL": a.wait_lg_tag(e[1])
        elif e[0] == "F": e[1]()
        elif e[0] == "B": a.barrier()
P4FLAG[0] = True
for t in range(NSTEP):
    valu = blk(SA, 0) + blk(SA, 1) + blk(SB, 0) + blk(SB, 1)
    ins = {}
    ins[2] = ([("I", mm(OB, V2, SB+8, OB))] if t > 0 else []) + [("I", rdV(V2, 2*t+1))]
    ins[9] = [("I", mm(SB, KF, QB, CB))] + ([("I", rdK(t+1))] if t+1 < NSTEP else [])
    ins[15] = [("I", mm(OA, V1, SA, OA if t > 0 else None))]
    ins[26] = [("I", mm(OA, V2, SA+8, OA))]
    ins[33] = [("I", mm(SA, KF, QA, CA))] if t+1 < NSTEP else []
    ins[39] = [("I", mm(OB, V1, SB, OB if t > 0 else None))] + ([("I", rdV(V1, 2*t+2))] if t+1 < NSTEP else [])
    for p_, L in extra[t].items():
        ins.setdefault(p_, []); ins[p_] = ins[p_] + L
    for i, v in enumerate(valu):
        if i in ins: emit(ins[i])
        I(v)
I(mm(OB, V2, SB+8, OB))
I("s_setprio 0")

L_k1 = newlabel("k1"); L_kj = newlabel("kj")
I(f"v_add_u32 v24, s{sT0}, v2")
I(f"s_xor_b32 s9, s{sW}, 4"); I("s_lshl_b32 s10, s9, 11"); I(f"s_add_u32 s10, s10, {W2R}"); I("v_add_u32 v25, s10, v2")
I(f"s_lshl_b32 s9, s9, 8"); I(f"s_add_u32 s9, s9, {QX}"); I("v_lshl_add_u32 v29, v1, 2, s9")
I(f"s_lshl_b32 s9, s{sW}, 8"); I(f"s_add_u32 s9, s9, {QX}"); I("v_lshl_add_u32 v28, v1, 2, s9")
a.wait_vm_tag("wo")
stamp(8)
I(f"s_cmp_lg_u32 s{sKH}, 0"); I(f"s_cbranch_scc1 {L_k1}")
hs = a.save()
for q in range(2): I(f"ds_write_b128 v24, {vr(OB+4*q,4)} offset:{q*1024}")
I(f"ds_write_b32 v28, v{OB+8}")
I(f"s_branch {L_kj}")
a.label(L_k1); a.restore(hs)
for q in range(2): I(f"ds_write_b128 v24, {vr(OA+4*q,4)} offset:{q*1024}")
I(f"ds_write_b32 v28, v{OA+8}")
for i in range(9): I(f"v_mov_b32 v{OA+i}, v{OB+i}")
a.label(L_kj); a.flush_state(2)
a.barrier()
for q in range(2): I(f"ds_read_b128 {vr(OB+4*q,4)}, v25 offset:{q*1024}")
I(f"ds_read_b32 v{OB+8}, v29")
WOF = 32
sel4(9, sKQ, WOREG)
I(f"v_lshl_add_u32 v26, v{vHH}, 8, v{vLP}"); I("v_add_u32 v26, s9, v26")
for i in range(9): I(f"v_add_f32 v{OA+i}, v{OA+i}, v{OB+i}")
I(f"v_rcp_f32 v{OA+8}, v{OA+8}")
for p in range(4): I(f"v_pk_mul_f32 {vr(OA+2*p,2)}, {vr(OA+2*p,2)}, {vr(OA+8,2)} op_sel_hi:[1,0]")
for p in range(4): I(f"v_cvt_pk_bf16_f32 v{OB+p}, v{OA+2*p}, v{OA+2*p+1}")
I(f"buffer_store_dwordx4 {vr(OB,4)}, v2, {srd(SO)}, s{sOSLOT} offen sc1")
stamp(9)
for hd in range(8):
    for nt in range(2):
        I(f"ds_read_b64_tr_b16 {vr(WOF+8*hd+4*nt,2)}, v26 offset:{hd*2048 + nt*512}")
        I(f"ds_read_b64_tr_b16 {vr(WOF+8*hd+4*nt+2,2)}, v26 offset:{hd*2048 + nt*512 + 1024}")
XB = 240
for d in range(4):
    I(f"v_lshlrev_b32 v{XB+2*d}, 16, v{XRES+d}"); I(f"v_and_b32 v{XB+1+2*d}, 0xffff0000, v{XRES+d}")
    I(f"v_lshlrev_b32 v{XB+8+2*d}, 16, v{BB2+d}"); I(f"v_and_b32 v{XB+9+2*d}, 0xffff0000, v{BB2+d}")
for p in range(4): I(f"v_pk_add_f32 {vr(XB+2*p,2)}, {vr(XB+2*p,2)}, {vr(XB+8+2*p,2)}")
AREA = [24576, VL + 48*2*VS, None]
def area_addr(dst, j, wreg):
    I(f"s_lshl_b32 s10, {wreg}, 11")
    if j < 2: I(f"s_add_u32 s10, s10, {AREA[j]}")
    else:
        I(f"s_cmp_ge_u32 {wreg}, 4"); I("s_cselect_b32 s11, 49152, 0"); I("s_add_u32 s10, s10, s11")
    I(f"v_add_u32 v{dst}, s10, v2")
for dl in range(1, 4):
    I(f"s_add_u32 s9, s{sW}, {2*dl}"); I("s_and_b32 s9, s9, 7"); area_addr(12 + dl, dl - 1, "s9")
    area_addr(16 + dl, dl - 1, f"s{sW}")
OF = 96
I(f"s_lshl_b32 s26, s{sKQ}, 14"); I(f"s_lshl_b32 s10, s{sTT}, 10"); I("s_add_u32 s26, s26, s10")
for k_ in range(1, 4): I(f"v_add_u32 v{3+k_}, {k_*4096}, v2")
def oload():
    for hd in range(8):
        ad = "v2" if hd < 2 else f"v{3 + hd//2}"
        I(f"buffer_load_dwordx4 {vr(OF+4*hd,4)}, {ad}, {srd(SO)}, s26 offen offset:{(hd%2)*2048} sc1")
stamp(10)
L_orep = newlabel("orep"); L_ook = newlabel("ook")
FB = 128
I(f"s_mov_b32 s{sCNT}, 0x4000")
a.label(L_orep); a.vm = []
oload()
for hd in range(8):
    o_ = OF + 4*hd
    for nt in range(2):
        I(mm(FB+16*nt, WOF+8*hd+4*nt, o_, ACC2+16*nt if hd == 0 else FB+16*nt))
    if hd == 0:
        I(f"v_max3_u32 v8, v{o_}, v{o_+1}, v{o_+2}"); I(f"v_mov_b32 v9, v{o_+3}")
    else:
        I(f"v_max3_u32 v8, v8, v{o_}, v{o_+1}"); I(f"v_max3_u32 v9, v9, v{o_+2}, v{o_+3}")
I("v_max_u32 v8, v8, v9")
I("v_cmp_eq_u32 vcc, -1, v8")
I("s_nop 4")
I(f"s_cbranch_vccz {L_ook}")
I("s_nop 15")
I(f"s_sub_u32 s{sCNT}, s{sCNT}, 1"); I(f"s_cmp_lg_u32 s{sCNT}, 0"); I(f"s_cbranch_scc1 {L_orep}")
a.label(L_ook)
stamp(11)
FA = 160
L_j = newlabel("rsj"); Ls = [newlabel(f"rs{k_}") for k_ in range(4)]
for k_ in range(1, 4):
    I(f"s_cmp_eq_u32 s{sKQ}, {k_}"); I(f"s_cbranch_scc1 {Ls[k_]}")
hs = a.save()
for k_ in range(4):
    a.label(Ls[k_]); a.restore(hs)
    for dl in range(1, 4):
        ch = (k_ + dl) % 4
        for q in range(2): I(f"ds_write_b128 v{12+dl}, {vr(FB+8*ch+4*q,4)} offset:{q*1024}")
    for p in range(4): I(f"v_pk_mov_b32 {vr(FA+2*p,2)}, {vr(FB+8*k_+2*p,2)}, {vr(FB+8*k_+2*p,2)} op_sel:[0,1]")
    if k_ < 3: I(f"s_branch {L_j}")
a.label(L_j); a.flush_state(2)
a.barrier()
for dl in range(1, 4):
    for q in range(2): I(f"ds_read_b128 {vr(32+8*(dl-1)+4*q,4)}, v{16+dl} offset:{q*1024}")
for p in range(4): I(f"v_pk_add_f32 {vr(FA+2*p,2)}, {vr(FA+2*p,2)}, {vr(32+2*p,2)}")
for p in range(4): I(f"v_pk_add_f32 {vr(40+2*p,2)}, {vr(40+2*p,2)}, {vr(48+2*p,2)}")
for p in range(4): I(f"v_pk_add_f32 {vr(FA+2*p,2)}, {vr(FA+2*p,2)}, {vr(40+2*p,2)}")
for i in range(4): I(f"v_permlane32_swap_b32 v{FA+i}, v{FA+4+i}")
for p in range(4): I(f"v_pk_add_f32 {vr(FA+2*p,2)}, {vr(FA+2*p,2)}, {vr(XB+2*p,2)}")
for p in range(4): I(f"v_cvt_pk_bf16_f32 v{56+p}, v{FA+2*p}, v{FA+2*p+1}")
I(f"buffer_store_dwordx4 v[56:59], v{vOUT}, {srd(SOUT)}, 0 offen")
stamp(12)
if OPT["stamps"] or OPT.get("dbg", 0): a.waitcnt(vm=0)
stamp(13)
a.raw("L_end:")
a.raw("    s_endpgm")

ref = open(f"cdna_kernels/{NAME}.s.ref").read()
head = ref[:ref.index("; Override launch geometry")]
out = head + f"""; Generated by gen/gen.py (hand-written generator).  One workgroup of 8 waves per CU.
; @launch grid=(256,1,1) block=(512,1,1) lds={LDS_BYTES}
.amdgcn_target "amdgcn-amd-amdhsa--gfx950"
.text
.globl {NAME}_kernel
.p2align 8
.type {NAME}_kernel,@function
{NAME}_kernel:
""" + a.text() + f""".section .rodata,"a"
.p2align 6
.amdhsa_kernel {NAME}_kernel
  .amdhsa_next_free_vgpr 256
  .amdhsa_next_free_sgpr 102
  .amdhsa_accum_offset 256
  .amdhsa_group_segment_fixed_size 0
  .amdhsa_kernarg_size 104
  .amdhsa_user_sgpr_count 2
  .amdhsa_user_sgpr_kernarg_segment_ptr 1
  .amdhsa_system_sgpr_workgroup_id_x 1
.end_amdhsa_kernel
"""
path = OPT_OUT if (OPT_OUT := next((x for x in sys.argv[1:] if x.endswith(".s")), None)) else f"cdna_kernels/{NAME}.s"
open(path, "w").write(out)
print("wrote", path, "lines", len(a.out), "nops", a.nops)
```

```python
import sys, math, struct
sys.path.insert(0, "gen")
from asmlib import Asm

NAME = "parallel_sum__grouped_kv_mqa__dense_activation_gelu__prompt"
OPT = dict(stop=99, stamps=False)
for a_ in sys.argv[1:]:
    if "=" in a_:
        k_, v_ = a_.split("="); OPT[k_] = int(v_)

def fbits(x): return "0x%08x" % struct.unpack("<I", struct.pack("<f", x))[0]

WS_EPOCH = 0
WS_KVFLAG = 0x1000
WS_HFLAG = 0x2000
WS_K = 0x10000
WS_V = 0x20000
WS_H = 0x100000
H_STRIDE = 0x2C000
WS_O = 0x800000
WS_DBG = 0xA00000
WS_SIZE = 0x1000000
XC = 0; XCS = 1040
RING2 = 66560
KL = 0; VL = 65536; VS = 272
QX = 135168
W2R = 143360
MISC = 159744
RSTD = MISC; KMAX = MISC + 256
LDS_BYTES = 163840
SX, SW, SKVW, SWS, SH, SO, SW2, SWO, SB1, SB2, SOUT = 44, 48, 52, 56, 60, 64, 68, 72, 76, 80, 84
SB2 = SB1
def srd(n): return f"s[{n}:{n+3}]"
sW, sG, sC, sTAG, sKSTR, sOFF, sT0, sT1, sT2, sTILE = 3, 4, 5, 6, 7, 8, 16, 17, 18, 12
sONES, sSELLO, sSELHI, sCNT = 13, 14, 15, 42
sC0, sC1 = 88, 90
sTB, sKIND, sFT, sTT, sKH, sNT2, sTT2 = 92, 93, 94, 95, 96, 97, 98
sEX = 100

a = Asm(); I = a.I
def vr(b, n): return f"v[{b}:{b+n-1}]"
lblc = [0]
def newlabel(p):
    lblc[0] += 1
    return f"L_{p}_{lblc[0]}"

P4FLAG = [False]
DBGMAP = {3: 1, 7: 2, 8: 3, 9: 4, 11: 5, 13: 6, 0: 7}
def dbgstamp(slot, src=None):
    L = newlabel("dbg")
    a.waitcnt(lg=0)
    I(f"s_cmp_gt_u32 s{SDBG+2}, 0"); I(f"s_cbranch_scc0 {L}")
    st = a.save()
    if src is None:
        I("s_memrealtime s[100:101]"); a.waitcnt(lg=0)
        I("v_mov_b32 v3, s100")
    I(f"buffer_store_dword {src or 'v3'}, off, s[{SDBG}:{SDBG+3}], s42 offset:{4*slot}".replace("s42", "0"))
    a.label(L); a.restore(st)
SDBG = 80
def stamp(idx):
    if OPT.get("dbg", 0):
        if idx in DBGMAP and DBGREADY[0]: dbgstamp(DBGMAP[idx])
        return
    if not OPT["stamps"]: return
    if OPT.get("astamps", 0) and idx < 7 and not P4FLAG[0]: return
    a.waitcnt(lg=0)
    for k_, op in enumerate(("s_memtime", "s_memrealtime")):
        I(f"{op} s[100:101]")
        a.waitcnt(lg=0)
        I("v_mov_b32 v3, s100")
        I(f"s_lshl_b32 s100, s2, 3"); I(f"s_add_u32 s100, s100, s{sW}"); I("s_lshl_b32 s100, s100, 7")
        I(f"s_add_u32 s100, s100, {WS_DBG + 4*idx + 64*k_}")
        I(f"buffer_store_dword v3, off, {srd(SWS)}, s100")

DBGREADY = [False]
def mk_srd(n, lo, hi, nbytes):
    I(f"s_mov_b32 s{n}, s{lo}"); I(f"s_mov_b32 s{n+1}, s{hi}")
    I(f"s_mov_b32 s{n+2}, {nbytes}"); I(f"s_mov_b32 s{n+3}, 0x00020000")


NE_OLD = OPT.get("ne_old", 8)
T0 = OPT.get("t0", 8)
TBAR = OPT.get("tbar", 18)
NSLOT = 8
KVPOLL = OPT.get("kvpoll", 22)
NMU = MISC + 256; KMAX = MISC + 512; LCNT = MISC + 576; CSL = MISC + 1024
I("s_cmp_ge_u32 s2, 256")
I("s_cbranch_scc1 L_end")
if OPT["stamps"]:
    I("s_memrealtime s[26:27]"); I("s_memtime s[38:39]"); a.waitcnt(lg=0); I("s_mov_b32 s19, s26"); I("s_mov_b32 s101, s38")
    I("v_mov_b32 v126, s19"); I("v_mov_b32 v127, s101")
if OPT.get("dbg", 0):
    I("s_memrealtime s[26:27]"); a.waitcnt(lg=0); I("v_mov_b32 v126, s26")
I("s_load_dwordx16 s[16:31], s[0:1], 0")
I("s_load_dwordx8 s[32:39], s[0:1], 64")
I("s_load_dwordx2 s[40:41], s[0:1], 96")
I("v_lshrrev_b32 v3, 6, v0")
I("v_and_b32 v1, 63, v0")
I(f"v_readfirstlane_b32 s{sW}, v3")
I("v_lshlrev_b32 v2, 4, v1")
if OPT.get("map", 1) == 0:
    I("s_and_b32 s9, s2, 7"); I("s_lshl_b32 s9, s9, 2"); I("s_bfe_u32 s10, s2, 0x20003"); I(f"s_or_b32 s{sG}, s9, s10")
    I(f"s_lshr_b32 s{sC}, s2, 5")
else:
    I("s_bfe_u32 s9, s2, 0x20001"); I("s_lshl_b32 s9, s9, 3"); I("s_bfe_u32 s10, s2, 0x30003"); I(f"s_or_b32 s{sG}, s9, s10")
    I("s_and_b32 s9, s2, 1"); I("s_lshl_b32 s9, s9, 2"); I("s_lshr_b32 s10, s2, 6"); I(f"s_or_b32 s{sC}, s9, s10")
XR = 128; T = 64
I("v_lshrrev_b32 v4, 4, v1")
I("v_and_b32 v5, 15, v1")
I(f"s_lshl_b32 s9, s{sC}, 1"); I(f"s_add_u32 s9, s9, s{sW}"); I("s_and_b32 s9, s9, 7"); I("s_lshl_b32 s9, s9, 3")
I("v_add_u32 v20, s9, v4")
I("v_lshlrev_b32 v21, 10, v20"); I("v_lshl_add_u32 v21, v5, 4, v21")
I(f"s_lshl_b32 s9, s{sG}, 16"); I("s_add_u32 s10, s9, 4096")
I(f"s_mov_b32 s{SX+2}, {2048*1024}"); I(f"s_mov_b32 s{SX+3}, 0x00020000")
I(f"s_mov_b32 s{SX}, s16"); I(f"s_mov_b32 s{SX+1}, s17")
for k_ in range(2):
    for i in range(4):
        I(f"buffer_load_dwordx4 {vr(XR+16*k_+4*i,4)}, v21, {srd(SX)}, s{9+k_} offen offset:{i*256}")
I(f"s_cmp_lt_u32 s{sC}, 4")
I("s_cselect_b32 s9, s20, s22"); I("s_cselect_b32 s10, s21, s23")
mk_srd(SKVW, 9, 10, 16384)
I(f"s_lshl_b32 s9, s{sW}, 11"); I(f"s_add_u32 m0, s9, {W2R}")
I("s_nop 0")
I(f"buffer_load_dwordx4 v2, {srd(SKVW)}, s9 offen lds", tag="x")
I(f"buffer_load_dwordx4 v2, {srd(SKVW)}, s9 offen offset:1024 lds", tag="x")
I(f"s_mov_b32 s{sONES}, 0x3f803f80")
I(f"s_mul_i32 s9, s{sC}, 5"); I(f"s_min_u32 s10, s{sC}, 3"); I("s_add_u32 s9, s9, s10")
I(f"s_add_u32 s9, s9, s{sW}"); I(f"s_sub_u32 s{sTILE}, s9, 2")
I(f"s_lshl_b32 s9, s{sC}, 1"); I(f"s_add_u32 s9, s9, s{sW}")
I(f"s_cmp_lt_u32 s{sW}, 2"); I(f"s_cselect_b32 s{sTILE}, s9, s{sTILE}")
I("s_mov_b32 s11, 2752"); I("s_cselect_b32 s11, 1024, s11")
I(f"s_mov_b32 s{SW+2}, {512*2752}"); I(f"s_cselect_b32 s{SW+2}, {512*1024}, s{SW+2}")
I(f"s_cselect_b32 s{SW}, s18, s28"); I(f"s_cselect_b32 s{SW+1}, s19, s29")
I(f"s_mov_b32 s{SW+3}, 0x00020000")
I(f"s_cmp_ge_u32 s{sC}, 3"); I("s_cselect_b32 s9, 1, 0"); I(f"s_cmp_eq_u32 s{sW}, 7"); I("s_cselect_b32 s9, s9, 0")
I("s_cmp_eq_u32 s9, 1"); I(f"s_cselect_b32 s{sTILE}, 63, s{sTILE}"); I(f"s_cselect_b32 s{SW+2}, 0, s{SW+2}")
if OPT.get("now", 0): I(f"s_mov_b32 s{SW+2}, 0")
I(f"s_lshl_b32 s{sKSTR}, s11, 4")
I("v_lshrrev_b32 v11, 2, v1")
I("v_mul_lo_u32 v11, v11, s11")
I("v_and_b32 v15, 3, v1")
I("v_lshl_add_u32 v11, v15, 4, v11")
I(f"s_lshl_b32 s9, s{sTILE}, 6")
I("v_add_u32 v11, s9, v11")
sWB = [26, 27, 38, 39]; sRING = 99; sQ = 19
if OPT.get("dbg", 0):
    I(f"s_lshl_b32 s9, s2, 3"); I(f"s_or_b32 s9, s9, s{sW}")
    I(f"s_cmp_eq_u32 s9, {133*8+4}"); I("s_cselect_b32 s10, 32, 0"); I("s_add_u32 s38, s38, s10"); I("s_addc_u32 s39, s39, 0")
    mk_srd(SDBG, 38, 39, 0); DBGREADY[0] = True
    I(f"s_cmp_eq_u32 s9, {133*8+4}"); I(f"s_cselect_b32 s{SDBG+2}, 32, 0"); I("s_cmp_eq_u32 s9, 0"); I(f"s_cselect_b32 s{SDBG+2}, 32, s{SDBG+2}")
    dbgstamp(0, "v126")
I(f"s_and_b32 s{sQ}, s{sG}, 3")
if OPT.get("noxor", 0): I(f"s_mov_b32 s{sQ}, 0")
I(f"s_lshl_b32 s10, s{sKSTR}, 3")
for b in range(4):
    I(f"s_xor_b32 s9, s{sQ}, {b}"); I(f"s_mul_i32 s{sWB[b]}, s9, s10")
I(f"s_lshl_b32 s{sRING}, s{sW}, 13"); I(f"s_add_u32 s{sRING}, s{sRING}, {RING2}")
def wslot(s): return (s % NSLOT)*1024
def wdma(s):
    I(f"s_add_u32 m0, s{sRING}, {wslot(s)}")
    if s % 8 == 0: I(f"s_mov_b32 s{sOFF}, s{sWB[s//8]}")
    else: I(f"s_add_u32 s{sOFF}, s{sOFF}, s{sKSTR}")
    I(f"buffer_load_dwordx4 v11, {srd(SW)}, s{sOFF} offen lds", tag=f"w_{s}")
NEARLY = OPT.get("nearly", 2)
for s in range(NEARLY): wdma(s)
mk_srd(SWS, 40, 41, WS_SIZE)
I(f"s_load_dword s{sTAG}, s[40:41], {WS_EPOCH}")
I(f"s_and_b32 s9, s{sC}, 3"); I(f"s_lshl_b32 s10, s{sG}, 2"); I(f"s_add_u32 s{sTB}, s9, s10"); I(f"s_lshr_b32 s{sKIND}, s{sC}, 2")
I(f"s_bfe_u32 s{sFT}, s{sW}, 0x10001"); I(f"s_and_b32 s{sTT}, s{sW}, 1"); I(f"s_lshr_b32 s{sKH}, s{sW}, 2")
I(f"s_lshl_b32 s9, s{sG}, 16"); I(f"s_add_u32 s9, s9, {WS_O}")
I("s_add_u32 s9, s40, s9"); I("s_addc_u32 s10, s41, 0")
mk_srd(SO, 9, 10, 65536)
sOSLOT = 43
I(f"s_lshl_b32 s9, s{sC}, 2"); I(f"s_lshl_b32 s10, s{sFT}, 1"); I("s_add_u32 s9, s9, s10"); I(f"s_add_u32 s9, s9, s{sKH}")
I("s_lshl_b32 s9, s9, 1"); I(f"s_add_u32 s9, s9, s{sTT}"); I(f"s_lshl_b32 s{sOSLOT}, s9, 10")
if OPT["stamps"]:
    I(f"s_lshl_b32 s100, s2, 3"); I(f"s_add_u32 s100, s100, s{sW}"); I("s_lshl_b32 s100, s100, 7")
    I(f"s_add_u32 s100, s100, {WS_DBG + 4*15}")
    I(f"buffer_store_dword v127, off, {srd(SWS)}, s100")
    I(f"buffer_store_dword v126, off, {srd(SWS)}, s100 offset:64")
ACC = 96
I("v_and_b32 v15, 3, v1"); I("v_lshlrev_b32 v13, 3, v15")
I("v_bfe_u32 v15, v1, 2, 2"); I("v_lshl_add_u32 v13, v15, 6, v13")
I("v_bfe_u32 v15, v1, 4, 1"); I("v_lshl_add_u32 v13, v15, 5, v13")
I("v_mov_b32 v17, v13")
I("v_lshrrev_b32 v16, 5, v1")
I("v_lshl_add_u32 v13, v16, 9, v13"); I(f"v_add_u32 v13, s{sRING}, v13")
I("v_and_b32 v18, 31, v1")
I(f"v_mul_u32_u24 v14, {XCS}, v18"); I("v_lshl_add_u32 v14, v16, 4, v14")
vB = [6, 7, 8, 9]
for b in range(4):
    I(f"s_xor_b32 s9, s{sQ}, {b}"); I("s_lshl_b32 s9, s9, 8"); I(f"v_add_u32 v{vB[b]}, s9, v14")
SEL = 88; CSA = 92
I("v_xor_b32 v15, v4, v1"); I("v_and_b32 v15, 1, v15"); I("v_cmp_eq_u32 vcc, 0, v15"); I(f"v_mov_b32 v15, s{sONES}")
for i in range(4): I(f"v_cndmask_b32 v{SEL+i}, 0, v15, vcc")
stamp(0)
I(f"v_mul_u32_u24 v21, {XCS}, v20"); I("v_lshl_add_u32 v21, v5, 4, v21")
I("v_lshlrev_b32 v20, 2, v20"); I(f"v_add_u32 v20, {RSTD}, v20")
for k_ in range(2):
    X = XR + 16*k_; t = T + 8*k_
    for i in range(16):
        if i % 4 == 0: I(f"ds_write_b128 v21, {vr(X+i,4)} offset:{k_*4*XCS + (i//4)*256}")
        I(f"v_dot2_f32_bf16 v{t}, v{X+i}, s{sONES}, {'0' if i == 0 else f'v{t}'}")
        I(f"v_dot2_f32_bf16 v{t+2}, v{X+i}, v{X+i}, {'0' if i == 0 else f'v{t+2}'}")
for k_ in range(2):
    pass
regs = [[T, T+1], [T+2, T+3], [T+8, T+9], [T+10, T+11]]
for ro in (8, 4, 2, 1):
    for rr in regs:
        I(f"v_add_f32_dpp v{rr[1]}, v{rr[0]}, v{rr[0]} row_ror:{ro} row_mask:0xf bank_mask:0xf"); rr.reverse()
for k_ in range(2):
    t = T + 8*k_
    I(f"v_mul_f32 v{t+4}, {fbits(-1.0/512)}, v{t}")
    I(f"v_mul_f32 v{t+5}, {fbits(1.0/512)}, v{t+2}")
for k_ in range(2):
    t = T + 8*k_
    I(f"v_fma_f32 v{t+5}, -v{t+4}, v{t+4}, v{t+5}")
    I(f"ds_write_b32 v20, v{t+4} offset:{256 + 16*k_}")
    I(f"v_max_f32 v{t+5}, 0, v{t+5}")
    I(f"v_add_f32 v{t+5}, {fbits(1e-5)}, v{t+5}")
    I(f"v_rsq_f32 v{t+5}, v{t+5}")
for k_ in range(2): I(f"ds_write_b32 v20, v{T+8*k_+5} offset:{16*k_}")
stamp(5)
for s in range(NEARLY, NSLOT): wdma(s)
a.wait_vm_tag("x")
a.barrier()
I(f"s_mul_i32 s{sTAG}, s{sTAG}, 0x9E3779B1")
I(f"s_add_u32 s{sTAG}, s{sTAG}, 0x7F4A7C15")
stamp(3)
L_kv = newlabel("kv"); L_k = newlabel("kloop")
I(f"s_cmp_lg_u32 s{sW}, 0"); I(f"s_cbranch_scc1 {L_k}")
stB = a.save()
WR = 128
I("s_setprio 3")
L_kvV = newlabel("kvV"); L_kvpub = newlabel("kvpub")
I(f"s_and_b32 s9, s{sC}, 3"); I("s_lshl_b32 s9, s9, 4")
I("v_add_u32 v20, s9, v5")
I(f"v_mul_u32_u24 v21, {XCS}, v20")
I("v_lshl_add_u32 v21, v4, 4, v21")
I("v_lshrrev_b32 v22, 2, v5")
I("v_lshl_add_u32 v22, v4, 3, v22")
I("v_lshlrev_b32 v22, 5, v22")
I("v_and_b32 v15, 3, v1")
I("v_lshl_add_u32 v22, v15, 3, v22")
I(f"v_add_u32 v22, {W2R}, v22")
for s in range(16):
    I(f"ds_read_b128 {vr(WR+8*s,4)}, v21 offset:{s*64}")
    I(f"ds_read_b64_tr_b16 {vr(WR+8*s+4,2)}, v22 offset:{s*1024}")
    I(f"ds_read_b64_tr_b16 {vr(WR+8*s+6,2)}, v22 offset:{s*1024+128}")
for i in range(4): I(f"v_mov_b32 v{68+i}, -1")
for i in range(4): I(f"v_mov_b32 v{64+i}, s{sONES}")
I("v_add_u32 v23, 0x1000, v2")
I(f"s_lshl_b32 s9, s{sC}, 13")
for i in range(8):
    I(f"buffer_store_dwordx4 v[68:71], {'v2' if i < 4 else 'v23'}, {srd(SO)}, s9 offen offset:{(i%4)*1024} sc1")
KD = 72; KC = 76
def kv_mm(kind):
    for s in range(16):
        b = WR + 8*s
        x_, w_ = vr(b, 4), vr(b+4, 4)
        c_ = "0" if s == 0 else vr(KD, 4); cc = "0" if s == 0 else vr(KC, 4)
        I(f"v_mfma_f32_16x16x32_bf16 {vr(KD,4)}, {w_ if kind == 0 else x_}, {x_ if kind == 0 else w_}, {c_}")
        I(f"v_mfma_f32_16x16x32_bf16 {vr(KC,4)}, {w_ if kind == 0 else 'v[64:67]'}, {'v[64:67]' if kind == 0 else w_}, {cc}")
I("v_bfe_u32 v24, v1, 4, 1"); I("v_lshrrev_b32 v25, 5, v1")
I(f"s_cmp_lg_u32 s{sKIND}, 0")
I(f"s_cbranch_scc1 {L_kvV}")
st_kv = a.save()
I("v_lshlrev_b32 v26, 2, v20"); I(f"v_add_u32 v26, {RSTD}, v26")
I(f"s_lshr_b32 s9, s{sTB}, 1"); I("s_lshl_b32 s9, s9, 10"); I(f"s_and_b32 s10, s{sTB}, 1"); I("s_lshl_b32 s10, s10, 8")
I("s_add_u32 s9, s9, s10"); I(f"s_add_u32 s9, s9, {WS_K}")
I("v_lshlrev_b32 v24, 9, v24"); I("v_lshl_add_u32 v24, v5, 4, v24"); I("v_lshl_add_u32 v24, v25, 3, v24")
I("ds_read_b32 v27, v26"); I("ds_read_b32 v28, v26 offset:256")
kv_mm(0)
for r in range(4): I(f"v_fmac_f32 v{KD+r}, v28, v{KC+r}")
for r in range(4): I(f"v_mul_f32 v{KD+r}, v{KD+r}, v27")
I(f"v_cvt_pk_bf16_f32 v30, v{KD}, v{KD+1}"); I(f"v_cvt_pk_bf16_f32 v31, v{KD+2}, v{KD+3}")
I(f"buffer_store_dwordx2 v[30:31], v24, {srd(SWS)}, s9 offen sc1")
I("v_dot2_f32_bf16 v22, v30, v30, 0"); I("v_dot2_f32_bf16 v22, v31, v31, v22")
I("v_mov_b32 v23, v22"); I("v_permlane32_swap_b32 v22, v23"); I("v_add_f32 v22, v22, v23")
I("v_mov_b32 v23, v22"); I("v_permlane16_swap_b32 v22, v23"); I("v_add_f32 v22, v22, v23")
for ro in (8, 4, 2, 1):
    I(f"v_max_f32_dpp v23, v22, v22 row_ror:{ro} row_mask:0xf bank_mask:0xf"); I("v_mov_b32 v22, v23")
I("v_mov_b32 v63, v22")
I(f"s_branch {L_kvpub}")
a.label(L_kvV); a.restore(st_kv)
I(f"s_and_b32 s9, s{sC}, 3"); I("s_lshl_b32 s9, s9, 6"); I(f"s_add_u32 s9, s9, {RSTD}")
I("v_lshl_add_u32 v26, v4, 4, s9")
I(f"s_lshl_b32 s9, s{sTB}, 9"); I(f"s_add_u32 s9, s9, {WS_V}")
I("v_lshlrev_b32 v24, 8, v24"); I("v_lshl_add_u32 v24, v5, 4, v24"); I("v_lshl_add_u32 v24, v25, 3, v24")
I("ds_read_b128 v[80:83], v26"); I("ds_read_b128 v[84:87], v26 offset:256")
kv_mm(1)
for r in range(4): I(f"v_fmac_f32 v{KD+r}, v{84+r}, v{KC+r}")
for r in range(4): I(f"v_mul_f32 v{KD+r}, v{KD+r}, v{80+r}")
I(f"v_cvt_pk_bf16_f32 v30, v{KD}, v{KD+1}"); I(f"v_cvt_pk_bf16_f32 v31, v{KD+2}, v{KD+3}")
I(f"buffer_store_dwordx2 v[30:31], v24, {srd(SWS)}, s9 offen sc1")
I("v_mov_b32 v63, 0")
a.label(L_kvpub); a.flush_state(2)
I(f"v_mov_b32 v62, s{sTAG}")
I(f"s_lshl_b32 s9, s{sTB}, 1"); I(f"s_add_u32 s9, s9, s{sKIND}"); I("s_lshl_b32 s9, s9, 3"); I(f"s_add_u32 s9, s9, {WS_KVFLAG}")
a.force_wait(vm=0)
I("s_mov_b64 exec, 1")
I(f"buffer_store_dwordx2 v[62:63], off, {srd(SWS)}, s9 sc1")
I("s_mov_b64 exec, -1")
I("s_setprio 0")
stamp(1)
a.label(L_k); a.restore(stB); a.flush_state(3); a.lg = []
stamp(2)

NBUF = 3
AF = 128; BF = 140
def p2_readB(s):
    bb = BF + 8*(s % NBUF)
    I(f"ds_read_b128 {vr(bb,4)}, v{vB[s//8]} offset:{(s%8)*32}")
    I(f"ds_read_b128 {vr(bb+4,4)}, v{vB[s//8]} offset:{32*XCS + (s%8)*32}")
def p2_readA(s):
    ab = AF + 4*(s % NBUF)
    a.wait_vm_tag(f"w_{s}")
    I(f"ds_read_b64_tr_b16 {vr(ab,2)}, v13 offset:{wslot(s)}")
    I(f"ds_read_b64_tr_b16 {vr(ab+2,2)}, v13 offset:{wslot(s)+256}")
def p2_mma(s, tt):
    ab = AF + 4*(s % NBUF); bb = BF + 8*(s % NBUF)
    c_ = "0" if s == 0 else vr(ACC+16*tt, 16)
    I(f"v_mfma_f32_32x32x16_bf16 {vr(ACC+16*tt,16)}, {vr(ab,4)}, {vr(bb+4*tt,4)}, {c_}")
def p2_cs(s):
    ab = AF + 4*(s % NBUF)
    I(f"v_mfma_f32_16x16x32_bf16 {vr(CSA,4)}, {vr(ab,4)}, {vr(SEL,4)}, {'0' if s == 0 else vr(CSA,4)}")

def poll(load_fn, check_fn, name, sleep=2):
    L = newlabel(name); Ld = newlabel(name + "ok")
    I(f"s_mov_b32 s{sCNT}, 0x4000")
    a.label(L)
    load_fn()
    a.force_wait(vm=0)
    check_fn()
    I("s_nop 4")
    I(f"s_cbranch_vccz {Ld}")
    if sleep: I(f"s_sleep {sleep}")
    I(f"s_sub_u32 s{sCNT}, s{sCNT}, 1")
    I(f"s_cmp_lg_u32 s{sCNT}, 0")
    I(f"s_cbranch_scc1 {L}")
    a.label(Ld)
KVS = 192
sR = 20
def kv_flag_load():
    I(f"s_add_u32 s{sR}, s{sC}, s{sG}"); I(f"s_and_b32 s{sR}, s{sR}, 7"); I(f"s_xor_b32 s{sR}, s{sR}, s{sW}")
    I("v_bfe_u32 v19, v1, 2, 1"); I("v_lshlrev_b32 v19, 10, v19")
    I("v_bfe_u32 v56, v1, 3, 2"); I("v_lshl_add_u32 v19, v56, 8, v19")
    I("v_and_b32 v56, 3, v1"); I("v_lshl_add_u32 v19, v56, 3, v19")
    I(f"s_lshl_b32 s21, s{sR}, 5"); I(f"s_add_u32 s21, s21, {WS_KVFLAG}")
    I(f"buffer_load_dwordx2 v[60:61], v19, {srd(SWS)}, s21 offen sc1")
def kv_fetch():
    L = newlabel("kvok")
    I(f"v_cmp_ne_u32 vcc, s{sTAG}, v60")
    I("s_nop 4")
    I(f"s_cbranch_vccz {L}")
    st = a.save()
    poll(lambda: I(f"buffer_load_dwordx2 v[60:61], v19, {srd(SWS)}, s21 offen sc1"),
         lambda: I(f"v_cmp_ne_u32 vcc, s{sTAG}, v60"), "pkv")
    a.label(L); a.restore(st)
    I(f"s_lshl_b32 s9, s{sR}, 10"); I(f"s_add_u32 s23, s9, {WS_V}"); I(f"s_add_u32 s22, s9, {WS_K}")
    I("v_add_u32 v191, 0x8000, v2")
def kv_load(i, which):
    so = "s22" if which == 0 else "s23"
    I(f"buffer_load_dwordx4 {vr(KVS+8*i+4*which,4)}, {'v2' if i % 2 == 0 else 'v191'}, {srd(SWS)}, {so} offen sc1")
    if i % 2 == 1: I(f"s_add_u32 {so}, {so}, 8192")
def kv_publish(nyounger):
    L = newlabel("nopub")
    I(f"s_cmp_lg_u32 s{sW}, 0"); I(f"s_cbranch_scc1 {L}")
    st = a.save()
    a.raw(f"    s_waitcnt vmcnt({nyounger})")
    I(f"v_mov_b32 v62, s{sTAG}")
    I(f"s_lshl_b32 s9, s{sTB}, 1"); I(f"s_add_u32 s9, s9, s{sKIND}"); I("s_lshl_b32 s9, s9, 3"); I(f"s_add_u32 s9, s9, {WS_KVFLAG}")
    I("s_mov_b64 exec, 1")
    I(f"buffer_store_dwordx2 v[62:63], off, {srd(SWS)}, s9 sc1")
    I("s_mov_b64 exec, -1")
    a.label(L); a.restore(st)
p2_readB(0); p2_readA(0); p2_readB(1); p2_readA(1)
mk_srd(SB1, 30, 31, 2752)
PUBK = OPT.get("pubk", 3)
for s in range(32):
    p2_mma(s, 0)
    PX = OPT.get("p2x", 0)
    if s + NSLOT < 32 and not PX & 2: wdma(s + NSLOT)
    if not PX & 4: p2_cs(s)
    if s + 2 < 32 and not PX & 1: p2_readB(s + 2)
    p2_mma(s, 1)
    if s + 2 < 32: p2_readA(s + 2)
    if s == 27: kv_flag_load()
    if s == 16:
        I(f"s_lshl_b32 s9, s{sTILE}, 6")
        I("v_lshl_add_u32 v10, v16, 3, s9")
        for q in range(4):
            I(f"buffer_load_dwordx2 {vr(24+2*q,2)}, v10, {srd(SB1)}, 0 offen offset:{16*q}")
    if s == 28:
        I("v_lshlrev_b32 v10, 2, v18"); I(f"v_add_u32 v10, {RSTD}, v10")
        for tt in range(2):
            I(f"ds_read_b32 v{20+2*tt}, v10 offset:{128*tt}"); I(f"ds_read_b32 v{64+2*tt}, v10 offset:{256 + 128*tt}")
stamp(4)
kv_fetch()
for i in range(2):
    for wh in range(2): kv_load(i, wh)
I(f"s_lshl_b32 s11, s{sW}, 7"); I(f"s_add_u32 s11, s11, {CSL}")
I("v_lshlrev_b32 v10, 6, v5"); I("v_lshl_add_u32 v10, v4, 4, v10"); I("v_add_u32 v10, s11, v10")
I("v_cmp_gt_u32 vcc, 2, v5")
for ro in (8, 4, 2, 1):
    I(f"v_max_f32_dpp v60, v61, v61 row_ror:{ro} row_mask:0xf bank_mask:0xf"); I("v_mov_b32 v61, v60")
I(f"s_and_saveexec_b64 s[26:27], vcc")
I(f"ds_write_b128 v10, {vr(CSA,4)}")
I("s_mov_b64 exec, s[26:27]")
I("v_lshl_add_u32 v10, v16, 4, s11")
CS = 72
for q in range(4): I(f"ds_read_b128 {vr(CS+4*q,4)}, v10 offset:{32*q}")
I("v_permlane16_swap_b32 v60, v61"); I("v_max_f32 v61, v60, v61")
I(f"s_lshl_b32 s11, s{sW}, 2"); I(f"s_add_u32 s11, s11, {KMAX}"); I("v_mov_b32 v60, s11")
I(f"ds_write_b32 v60, v61")
I(f"s_mul_i32 s9, s{sG}, {H_STRIDE}"); I(f"s_add_u32 s9, s9, {WS_H}")
I("s_add_u32 s9, s40, s9"); I("s_addc_u32 s10, s41, 0")
mk_srd(SH, 9, 10, 86*2048)
L_epf = newlabel("epffn"); L_epdone = newlabel("epdone")
I(f"s_cmp_ge_u32 s{sW}, 2")
I(f"s_cbranch_scc1 {L_epf}")
st_ep = a.save()
QS = 0.25 * math.log2(math.e)
I(f"v_mul_f32 v20, {fbits(QS)}, v20"); I(f"v_mul_f32 v22, {fbits(QS)}, v22")
I(f"s_lshl_b32 s9, s{sW}, 12"); I(f"s_add_u32 s9, s9, {QX}")
I("v_add_u32 v19, s9, v2")
for tt in range(2):
    rs = 20 + 2*tt; nm = 64 + 2*tt
    for p in range(8):
        r = ACC + 16*tt + 2*p
        I(f"v_pk_fma_f32 {vr(r,2)}, {vr(CS+2*p,2)}, {vr(nm,2)}, {vr(r,2)} op_sel_hi:[1,0,1]")
    for p in range(8):
        r = ACC + 16*tt + 2*p
        I(f"v_pk_mul_f32 {vr(r,2)}, {vr(r,2)}, {vr(rs,2)} op_sel_hi:[1,0]")
    for p in range(8):
        r = ACC + 16*tt + 2*p
        I(f"v_cvt_pk_bf16_f32 v{32+8*tt+p}, v{r}, v{r+1}")
    for x in range(2):
        I(f"ds_write_b128 v19, {vr(32+8*tt+4*x,4)} offset:{(tt*2+x)*1024}")
I("s_mov_b32 s9, 0x7fff0000")
def kv_rest(n):
    for m in range(3*n, 3*n + 3): kv_load(2 + m // 2, m % 2)
for i in range(4):
    I(f"buffer_store_dwordx4 v[32:35], v2, {srd(SH)}, s9 offen sc1", tag="hst")
vm_q = [dict(o) for o in a.vm]
I(f"s_branch {L_epdone}")
a.label(L_epf); a.restore(st_ep)
C0 = -2.0 * math.sqrt(2.0/math.pi) * math.log2(math.e)
C1 = C0 * 0.044715
I(f"s_mov_b32 s{sC1}, {fbits(C1)}"); I(f"s_mov_b32 s{sC1+1}, {fbits(C1)}")
B1 = 32
for q in range(4):
    for d in range(2):
        I(f"v_lshlrev_b32 v{B1+4*q+2*d}, 16, v{24+2*q+d}")
        I(f"v_and_b32 v{B1+4*q+2*d+1}, 0xffff0000, v{24+2*q+d}")
I(f"v_mov_b32 v48, {fbits(C0)}"); I(f"v_mov_b32 v49, {fbits(C0)}")
I(f"s_lshl_b32 s9, s{sTILE}, 12")
def gelu8(r, rs, nm, cs, b, outr):
    t = 52
    for p in range(4): I(f"v_pk_fma_f32 {vr(r+2*p,2)}, {vr(cs+2*p,2)}, {vr(nm,2)}, {vr(r+2*p,2)} op_sel_hi:[1,0,1]")
    for p in range(4): I(f"v_pk_fma_f32 {vr(r+2*p,2)}, {vr(r+2*p,2)}, {vr(rs,2)}, {vr(b+2*p,2)} op_sel_hi:[1,0,1]")
    for p in range(4): I(f"v_pk_mul_f32 {vr(t+2*p,2)}, {vr(r+2*p,2)}, {vr(r+2*p,2)}")
    for p in range(4): I(f"v_pk_fma_f32 {vr(t+2*p,2)}, {vr(t+2*p,2)}, s[{sC1}:{sC1+1}], v[48:49]")
    for p in range(4): I(f"v_pk_mul_f32 {vr(t+2*p,2)}, {vr(t+2*p,2)}, {vr(r+2*p,2)}")
    for i in range(8): I(f"v_exp_f32 v{t+i}, v{t+i}")
    for p in range(4): I(f"v_pk_add_f32 {vr(t+2*p,2)}, {vr(t+2*p,2)}, 1.0 op_sel_hi:[1,0]")
    for i in range(8): I(f"v_rcp_f32 v{t+i}, v{t+i}")
    for p in range(4): I(f"v_pk_mul_f32 {vr(t+2*p,2)}, {vr(t+2*p,2)}, {vr(r+2*p,2)}")
    for p in range(4): I(f"v_cvt_pk_bf16_f32 v{outr+p}, v{t+2*p}, v{t+2*p+1}")
for tt in range(2):
    for u in range(2):
        o_ = 128 + 4*(2*tt+u)
        gelu8(ACC+16*tt+8*u, 20+2*tt, 64+2*tt, CS+8*u, B1+8*u, o_)
        I(f"buffer_store_dwordx4 {vr(o_,4)}, v2, {srd(SH)}, s9 offen offset:{u*2048 + tt*1024} sc1", tag="hst")
a.label(L_epdone); a.flush_state(2); a.lg = []
a.vm = vm_q
stamp(6)

vSK, vSV = 184, 186
I(f"s_lshl_b32 s11, s{sR}, 10"); I(f"v_add_u32 v{vSK}, s11, v2"); I(f"v_add_u32 v{vSK+1}, 0x8000, v{vSK}")
I(f"s_mul_i32 s11, s{sR}, {4*VS}"); I(f"s_add_u32 s11, s11, {VL}")
I(f"v_mul_u32_u24 v25, {VS}, v4"); I("v_lshl_add_u32 v25, v5, 4, v25"); I(f"v_add_u32 v{vSV}, s11, v25"); I(f"v_add_u32 v{vSV+1}, {32*4*VS}, v{vSV}")
def kv_stage(i, which):
    if which == 0: return f"ds_write_b128 v{vSK + i % 2}, {vr(KVS+8*i,4)} offset:{(i//2)*8192}"
    return f"ds_write_b128 v{vSV + i % 2}, {vr(KVS+8*i+4,4)} offset:{(i//2)*8*4*VS}"
I(f"s_mul_i32 s11, s{sW}, {16*2*VS}"); I(f"s_add_u32 s11, s11, {VL}")
I(f"v_mul_u32_u24 v26, {VS}, v18"); I("v_add_u32 v26, s11, v26")
for i in range(4): I(f"v_mov_b32 v{28+i}, s{sONES}")
QA, QB, KF, V1, V2 = 4, 8, 12, 16, 20
CA, CB, SA, SB, OA, OB = 32, 48, 64, 80, 96, 112
ACC2, A2, B2, XRES, BB2 = 192, 128, 136, 160, 164
vKA, vVA, vTR = 24, 25, 26
vLP, vHH, vJJ = 188, 189, 190
I("v_mov_b32 v160, v17"); I("v_mov_b32 v161, v16"); I("v_mov_b32 v162, v18")
I(f"s_and_b32 s11, s{sW}, 3"); I("s_lshl_b32 s11, s11, 11"); I(f"s_add_u32 s11, s11, {QX}")
I("v_add_u32 v165, s11, v2")
I(f"v_mov_b32 v167, {KMAX}")
a.barrier()
I(f"ds_write_b128 v26, v[28:31] offset:256")
I(f"ds_read_b128 {vr(QA,4)}, v165"); I(f"ds_read_b128 {vr(QB,4)}, v165 offset:1024")
I(f"ds_read_b128 v[168:171], v167"); I(f"ds_read_b128 v[172:175], v167 offset:16")
for i in range(2):
    for wh in range(2): I(kv_stage(i, wh))
I("v_max3_f32 v168, v168, v169, v170"); I("v_max3_f32 v172, v172, v173, v174"); I("v_max3_f32 v168, v168, v171, v175")
I("v_max_f32 v168, v168, v172")
for (q, t) in ((QA, 176), (QB, 178)):
    I(f"v_dot2_f32_bf16 v{t}, v{q}, v{q}, 0")
    for i in range(1, 4): I(f"v_dot2_f32_bf16 v{t}, v{q+i}, v{q+i}, v{t}")
for t in (176, 178):
    I(f"v_mov_b32 v{t+1}, v{t}"); I(f"v_permlane32_swap_b32 v{t}, v{t+1}"); I(f"v_add_f32 v{t}, v{t}, v{t+1}")
    I(f"v_mul_f32 v{t}, v{t}, v168"); I(f"v_sqrt_f32 v{t}, v{t}")
I("v_max_f32 v180, v176, v178")
for i in range(16):
    I(f"v_sub_f32 v{CA+i}, 0, v176"); I(f"v_sub_f32 v{CB+i}, 0, v178")
I(f"v_cmp_nge_f32 vcc, {fbits(50.0)}, v180")
I(f"s_lshl_b32 s11, s{sKH}, 15"); I(f"v_add_u32 v163, s11, v2")
I(f"s_mul_i32 s11, s{sKH}, {64*2*VS}"); I(f"s_add_u32 s11, s11, {VL}")
I(f"v_min_u32 v164, 16, v162"); I(f"v_lshlrev_b32 v164, 4, v164")
I(f"v_mul_u32_u24 v183, {VS}, v161"); I(f"v_add3_u32 v164, v164, v183, s11")
if OPT.get("zrows", 1):
    I("v_and_b32 v183, 27, v162"); I("v_cmp_lt_u32 s[20:21], 16, v183")
    I("v_mov_b32 v183, 0x80000"); I("v_cndmask_b32 v164, v164, v183, s[20:21]")
def publish_h():
    L = newlabel("nohf"); L2 = newlabel("noep")
    a.wait_vm_tag("hst")
    vm_keep = [dict(o) for o in a.vm]
    I(f"v_mov_b32 v171, s{sTAG}")
    I("s_mov_b64 exec, 1")
    I(f"s_cmp_lt_u32 s{sW}, 2"); I(f"s_cbranch_scc1 {L}")
    I(f"s_lshl_b32 s9, s{sG}, 8"); I(f"s_lshl_b32 s10, s{sTILE}, 2"); I("s_add_u32 s9, s9, s10"); I(f"s_add_u32 s9, s9, {WS_HFLAG}")
    I(f"buffer_store_dword v171, off, {srd(SWS)}, s9 sc1")
    a.label(L)
    I("s_or_b32 s11, s2, s%d" % sW); I("s_cmp_lg_u32 s11, 0"); I(f"s_cbranch_scc1 {L2}")
    I(f"buffer_store_dword v171, off, {srd(SWS)}, 0 offset:{WS_EPOCH} sc1")
    a.label(L2)
    I("s_mov_b64 exec, -1")
    a.vm = vm_keep
a.barrier()
I(f"v_mov_b32 v{vKA}, v163"); I(f"v_mov_b32 v{vVA}, v164")
I(f"v_mov_b32 v{vLP}, v160"); I(f"v_mov_b32 v{vHH}, v161"); I(f"v_mov_b32 v{vJJ}, v162")
I(f"ds_read_b128 {vr(KF,4)}, v{vKA} offset:{KL}")
L_fast = newlabel("fast"); L_slow = newlabel("slowloop")
I(f"s_cbranch_vccz {L_fast}")
st_f = a.save()
I(f"v_mov_b32 v176, {fbits(-3.0e38)}"); I(f"v_mov_b32 v178, {fbits(-3.0e38)}")
I(f"s_mov_b32 s10, {WS_K}"); I("s_mov_b32 s11, 64")
a.label(L_slow); a.flush_state(16)
I(f"buffer_load_dwordx4 {vr(V1,4)}, v2, {srd(SWS)}, s10 offen sc1")
a.force_wait(vm=0)
I(f"v_mfma_f32_32x32x16_bf16 {vr(SA,16)}, {vr(V1,4)}, {vr(QA,4)}, 0")
I(f"v_mfma_f32_32x32x16_bf16 {vr(SB,16)}, {vr(V1,4)}, {vr(QB,4)}, 0")
I("s_add_u32 s10, s10, 1024")
for (S_, t) in ((SA, 176), (SB, 178)):
    for i in range(8): I(f"v_max3_f32 v{t}, v{t}, v{S_+2*i}, v{S_+2*i+1}")
I("s_sub_u32 s11, s11, 1"); I("s_cmp_lg_u32 s11, 0"); I(f"s_cbranch_scc1 {L_slow}")
for t in (176, 178):
    I(f"v_mov_b32 v{t+1}, v{t}"); I(f"v_permlane32_swap_b32 v{t}, v{t+1}"); I(f"v_max_f32 v{t}, v{t}, v{t+1}")
for i in range(16):
    I(f"v_sub_f32 v{CA+i}, 0, v176"); I(f"v_sub_f32 v{CB+i}, 0, v178")
I("s_nop 15")
a.label(L_fast); a.restore(st_f)
stamp(7)

def mm(d, x, y, c):
    cs = "0" if c is None else vr(c, 16)
    return f"v_mfma_f32_32x32x16_bf16 {vr(d,16)}, {vr(x,4)}, {vr(y,4)}, {cs}"
def blk(S_, h):
    b = S_ + 8*h
    return [f"v_exp_f32 v{b+i}, v{b+i}" for i in range(8)] + [f"v_cvt_pk_bf16_f32 v{b+i}, v{b+2*i}, v{b+2*i+1}" for i in range(4)]
def rdK(t): return f"ds_read_b128 {vr(KF,4)}, v{vKA} offset:{KL + t*1024}"
def rdV(reg, u): return f"ds_read_b128 {vr(reg,4)}, v{vVA} offset:{u*2*VS}"
I(rdV(V1, 0))
I(mm(SA, KF, QA, CA))

vWD, vOUT, vTR2, vT = 30, 31, 27, 28
sW2OFF, sHOFF, sWOM, sWOOFF, sRB = sT1, sT2, sKSTR, sOFF, 21
sKQ = sNT2
RINGREG = [0, 32768, VL, VL + 64*2*VS]
WOREG = [8192, 32768 + 8192, VL + 16*2*VS, VL + 80*2*VS]
NK2 = 22
def sel4(dst, idx, tab):
    I(f"s_mov_b32 s{dst}, {tab[0]}")
    for k_ in range(1, 4):
        I(f"s_cmp_eq_u32 s{idx}, {k_}"); I(f"s_cselect_b32 s{dst}, {tab[k_]}, s{dst}")
def setup1():
    I(f"s_lshr_b32 s{sKQ}, s{sW}, 1")
    I(f"s_lshl_b32 s11, s{sW}, 11"); I(f"s_add_u32 s{sT0}, s11, {W2R}")
    sel4(sRB, sKQ, RINGREG); I(f"s_lshl_b32 s9, s{sTT}, 12"); I(f"s_add_u32 s{sRB}, s{sRB}, s9")
    I(f"v_lshl_add_u32 v{vT}, v{vHH}, 8, v{vLP}"); I(f"v_add_u32 v{vTR}, s{sT0}, v{vT}"); I(f"v_add_u32 v{vTR2}, s{sRB}, v{vT}")
    I(f"v_lshrrev_b32 v{vWD}, 2, v{vJJ}"); I(f"v_lshlrev_b32 v{vWD}, 10, v{vWD}")
    I(f"v_lshl_add_u32 v{vWD}, v{vHH}, 6, v{vWD}"); I(f"v_and_b32 v{vT}, 3, v1"); I(f"v_lshl_add_u32 v{vWD}, v{vT}, 4, v{vWD}")
    I(f"s_lshl_b32 s11, s{sC}, 7"); I(f"v_add_u32 v{vWD}, s11, v{vWD}")
    mk_srd(SW2, 32, 33, 1376*1024)
    I(f"s_mul_i32 s{sW2OFF}, s{sKQ}, {NK2*16384}"); I(f"s_mul_i32 s{sHOFF}, s{sKQ}, {NK2*2048}")
    I(f"s_lshl_b32 s9, s{sTT}, 10"); I(f"s_add_u32 s{sHOFF}, s{sHOFF}, s9")
    I(f"v_lshlrev_b32 v{vT}, 10, v1"); I(f"v_add_u32 v{vT}, s11, v{vT}")
    I(f"s_mul_i32 s9, s{sTT}, {176*1024}"); I(f"s_add_u32 s9, s9, s{sW2OFF}")
    for i in range(3 if OPT.get("touchw", 0) else 0):
        I(f"buffer_load_dword v{172+i}, v{vT}, {srd(SW2)}, s9 offen")
        if i < 2: I("s_add_u32 s9, s9, 65536")
def setup2():
    mk_srd(SWO, 24, 25, 512*1024)
    I(f"s_lshl_b32 s{sWOOFF}, s{sW}, 16")
    if OPT.get("touchw", 0): I(f"buffer_load_dword v175, v{vT}, {srd(SWO)}, s{sWOOFF} offen")
    sel4(sWOM, sKQ, WOREG)
    I(f"s_lshl_b32 s9, s{sTT}, 13"); I(f"s_add_u32 s{sWOM}, s{sWOM}, s9")
def setup3():
    mk_srd(SB2, 34, 35, 1024)
    mk_srd(SOUT, 36, 37, 2048*1024)
    I(f"s_lshl_b32 s11, s{sC}, 7"); I(f"s_lshl_b32 s9, s{sKQ}, 5"); I("s_add_u32 s11, s11, s9")
    I(f"v_lshl_add_u32 v{vT}, v{vHH}, 4, s11")
    I(f"buffer_load_dwordx4 {vr(BB2,4)}, v{vT}, {srd(SB2)}, 0 offen")
    I(f"s_lshl_b32 s9, s{sG}, 6"); I(f"s_lshl_b32 s10, s{sTT}, 5"); I("s_add_u32 s9, s9, s10")
    I(f"v_add_u32 v{vOUT}, s9, v{vJJ}"); I(f"v_lshl_add_u32 v{vOUT}, v{vOUT}, 10, v{vT}")
    I(f"buffer_load_dwordx4 {vr(XRES,4)}, v{vOUT}, {srd(SX)}, 0 offen")
    if OPT.get("touchout", 0): I(f"buffer_load_dword v174, v{vOUT}, {srd(SOUT)}, 0 offen")
def slot_base(n): return (f"s{sT0}", 0) if n % 3 == 0 else (f"s{sRB}", (n % 3 - 1)*2048)
def w2_dma(n, hf):
    b, o = slot_base(n)
    return [("I", f"s_add_u32 m0, {b}, {o + hf*1024}"),
            ("I", f"s_add_u32 s{sW2OFF}, s{sW2OFF}, 8192") if (n, hf) != (0, 0) else ("I", "s_nop 0"),
            ("I", f"buffer_load_dwordx4 v{vWD}, {srd(SW2)}, s{sW2OFF} offen lds", f"w2_{n}")]
NB2 = 4
def h_load(n):
    b = B2 + 4*(n % NB2)
    L = [("I", f"buffer_load_dwordx4 {vr(b,4)}, v2, {srd(SH)}, s{sHOFF} offen offset:{(n % 2)*2048} sc1")]
    if n % 2: L.append(("I", f"s_add_u32 s{sHOFF}, s{sHOFF}, 4096"))
    return L
A2 = 128; B2 = 144
def w2_tr(n, nt):
    ab = A2 + 8*(n % 2) + 4*nt
    ad = vTR if n % 3 == 0 else vTR2
    o = slot_base(n)[1] + nt*512
    return [("WV", f"w2_{n}"),
            ("I", f"ds_read_b64_tr_b16 {vr(ab,2)}, v{ad} offset:{o}", f"tr_{n}"),
            ("I", f"ds_read_b64_tr_b16 {vr(ab+2,2)}, v{ad} offset:{o+1024}", f"tr_{n}")]
def f2_mm(n, nt):
    d = ACC2 + 16*nt
    return [("I", mm(d, A2+8*(n % 2)+4*nt, B2+4*(n % NB2), None if n == 0 else d))]
def hpoll():
    I(f"s_mul_i32 s9, s{sKQ}, 11")
    I(f"v_min_u32 v{vT}, 10, v1"); I(f"v_add_u32 v{vT}, s9, v{vT}"); I(f"v_min_u32 v{vT}, 42, v{vT}"); I(f"v_lshlrev_b32 v{vT}, 2, v{vT}")
    I(f"s_lshl_b32 s27, s{sG}, 8"); I(f"s_add_u32 s27, s27, {WS_HFLAG}")
    I(f"buffer_load_dword v171, v{vT}, {srd(SWS)}, s27 offen sc1")
def hcheck():
    L = newlabel("hok")
    I(f"v_cmp_ne_u32 vcc, s{sTAG}, v171")
    I("s_nop 4")
    I(f"s_cbranch_vccz {L}")
    st = a.save()
    poll(lambda: I(f"buffer_load_dword v171, v{vT}, {srd(SWS)}, s27 offen sc1"),
         lambda: I(f"v_cmp_ne_u32 vcc, s{sTAG}, v171"), "ph")
    a.label(L); a.restore(st)
def wo_dma(i):
    return [("I", f"s_add_u32 m0, s{sWOM}, {i*1024}"),
            ("I", f"s_add_u32 s{sWOOFF}, s{sWOOFF}, 8192") if i else ("I", "s_nop 0"),
            ("I", f"buffer_load_dwordx4 v{vWD}, {srd(SWO)}, s{sWOOFF} offen lds", "wo")]
NSTEP = 32
extra = {t: {} for t in range(NSTEP + 1)}
def add(t, pos, L): extra[t].setdefault(pos, []).extend(L)
add(0, 30, [("F", publish_h)])
add(1, 20, [("F", setup1)])
add(1, 44, [("F", setup2)])
add(2, 44, [("F", setup3)])
for n_ in range(12):
    add(n_ // 4, (4, 16, 27, 40)[n_ % 4], [("F", (lambda n_=n_: kv_load(2 + n_ // 2, n_ % 2)))])
    add(3 + n_ // 3, (10, 21, 45)[n_ % 3], [("I", kv_stage(2 + n_ // 2, n_ % 2))])
T0 = 8
add(4, 30, [("F", hpoll)])
add(5, 6, w2_dma(0, 0)); add(5, 30, w2_dma(0, 1))
add(6, 6, [("F", hcheck)])
add(6, 7, h_load(0)); add(6, 30, h_load(1)); add(7, 6, h_load(2))
add(7, 21, w2_tr(0, 0)); add(7, 40, w2_tr(0, 1))
add(7, 10, w2_dma(1, 0)); add(7, 16, w2_dma(1, 1)); add(7, 27, w2_dma(2, 0)); add(7, 34, w2_dma(2, 1))
for n in range(NK2):
    t = T0 + n
    add(t, 20, f2_mm(n, 0))
    if n + 1 < NK2: add(t, 34, w2_tr(n+1, 0))
    add(t, 44, f2_mm(n, 1))
    if n + 1 < NK2: add(t, 45, w2_tr(n+1, 1))
    if n + 3 < NK2:
        add(t, 46, h_load(n+3))
        add(t, 27, [("WL", f"tr_{n}")] + w2_dma(n+3, 0)); add(t+1, 3, w2_dma(n+3, 1))
if OPT.get("nof2", 0):
    for t in range(6, NSTEP): extra[t] = {}
if OPT.get("astamps", 0):
    for k_, t in enumerate((1, 2, 3, 4, 5, 6, 7, 8) if OPT.get("astamps") == 2 else (2, 5, 8, 12, 16, 20, 24, 28)): add(t, 0, [("F", (lambda k_=k_: stamp(k_)))])
PW = 2
PRIO = OPT.get("prio", 1)
if PRIO == 1:
    for t in range(0, NSTEP, PW): add(t, 1, [("I", f"s_setprio {3 - (t // PW) % 4}")])
elif PRIO == 2:
    for t, p_ in ((0,3),(2,2),(4,1),(6,0),(8,3),(12,2),(16,1),(20,0),(24,3),(26,2),(28,1),(30,0)): add(t, 1, [("I", f"s_setprio {p_}")])
elif PRIO == 3:
    def yp():
        L = newlabel("yp"); I(f"s_cmp_lt_u32 s{sW}, 4"); I(f"s_cbranch_scc1 {L}"); I("s_setprio 1"); a.label(L)
    add(0, 1, [("F", yp)])
for t in ((7, 15, 23) if OPT.get("bar15", 1) else (7, 23)): add(t, 8, [("B",)])
for i in range(8): add(23 + (i+1)//2, 30 if i % 2 == 0 else 10, wo_dma(i))

def emit(L):
    for e in L:
        if e[0] == "I": I(e[1], tag=e[2] if len(e) > 2 else None)
        elif e[0] == "WV": a.wait_vm_tag(e[1])
        elif e[0] == "WL": a.wait_lg_tag(e[1])
        elif e[0] == "F": e[1]()
        elif e[0] == "B": a.barrier()
P4FLAG[0] = True
for t in range(NSTEP):
    valu = blk(SA, 0) + blk(SA, 1) + blk(SB, 0) + blk(SB, 1)
    ins = {}
    ins[2] = ([("I", mm(OB, V2, SB+8, OB))] if t > 0 else []) + [("I", rdV(V2, 2*t+1))]
    ins[9] = [("I", mm(SB, KF, QB, CB))] + ([("I", rdK(t+1))] if t+1 < NSTEP else [])
    ins[15] = [("I", mm(OA, V1, SA, OA if t > 0 else None))]
    ins[26] = [("I", mm(OA, V2, SA+8, OA))]
    ins[33] = [("I", mm(SA, KF, QA, CA))] if t+1 < NSTEP else []
    ins[39] = [("I", mm(OB, V1, SB, OB if t > 0 else None))] + ([("I", rdV(V1, 2*t+2))] if t+1 < NSTEP else [])
    for p_, L in extra[t].items():
        ins.setdefault(p_, []); ins[p_] = ins[p_] + L
    for i, v in enumerate(valu):
        if i in ins: emit(ins[i])
        I(v)
I(mm(OB, V2, SB+8, OB))
I("s_setprio 0")

L_k1 = newlabel("k1"); L_kj = newlabel("kj")
I(f"v_add_u32 v24, s{sT0}, v2")
I(f"s_xor_b32 s9, s{sW}, 4"); I("s_lshl_b32 s10, s9, 11"); I(f"s_add_u32 s10, s10, {W2R}"); I("v_add_u32 v25, s10, v2")
I(f"s_lshl_b32 s9, s9, 8"); I(f"s_add_u32 s9, s9, {QX}"); I("v_lshl_add_u32 v29, v1, 2, s9")
I(f"s_lshl_b32 s9, s{sW}, 8"); I(f"s_add_u32 s9, s9, {QX}"); I("v_lshl_add_u32 v28, v1, 2, s9")
a.wait_vm_tag("wo")
stamp(8)
I(f"s_cmp_lg_u32 s{sKH}, 0"); I(f"s_cbranch_scc1 {L_k1}")
hs = a.save()
for q in range(2): I(f"ds_write_b128 v24, {vr(OB+4*q,4)} offset:{q*1024}")
I(f"ds_write_b32 v28, v{OB+8}")
I(f"s_branch {L_kj}")
a.label(L_k1); a.restore(hs)
for q in range(2): I(f"ds_write_b128 v24, {vr(OA+4*q,4)} offset:{q*1024}")
I(f"ds_write_b32 v28, v{OA+8}")
for i in range(9): I(f"v_mov_b32 v{OA+i}, v{OB+i}")
a.label(L_kj); a.flush_state(2)
a.barrier()
for q in range(2): I(f"ds_read_b128 {vr(OB+4*q,4)}, v25 offset:{q*1024}")
I(f"ds_read_b32 v{OB+8}, v29")
WOF = 32
sel4(9, sKQ, WOREG)
I(f"v_lshl_add_u32 v26, v{vHH}, 8, v{vLP}"); I("v_add_u32 v26, s9, v26")
for i in range(9): I(f"v_add_f32 v{OA+i}, v{OA+i}, v{OB+i}")
I(f"v_rcp_f32 v{OA+8}, v{OA+8}")
for p in range(4): I(f"v_pk_mul_f32 {vr(OA+2*p,2)}, {vr(OA+2*p,2)}, {vr(OA+8,2)} op_sel_hi:[1,0]")
for p in range(4): I(f"v_cvt_pk_bf16_f32 v{OB+p}, v{OA+2*p}, v{OA+2*p+1}")
I(f"buffer_store_dwordx4 {vr(OB,4)}, v2, {srd(SO)}, s{sOSLOT} offen sc1")
stamp(9)
for hd in range(8):
    for nt in range(2):
        I(f"ds_read_b64_tr_b16 {vr(WOF+8*hd+4*nt,2)}, v26 offset:{hd*2048 + nt*512}")
        I(f"ds_read_b64_tr_b16 {vr(WOF+8*hd+4*nt+2,2)}, v26 offset:{hd*2048 + nt*512 + 1024}")
XB = 240
for d in range(4):
    I(f"v_lshlrev_b32 v{XB+2*d}, 16, v{XRES+d}"); I(f"v_and_b32 v{XB+1+2*d}, 0xffff0000, v{XRES+d}")
    I(f"v_lshlrev_b32 v{XB+8+2*d}, 16, v{BB2+d}"); I(f"v_and_b32 v{XB+9+2*d}, 0xffff0000, v{BB2+d}")
for p in range(4): I(f"v_pk_add_f32 {vr(XB+2*p,2)}, {vr(XB+2*p,2)}, {vr(XB+8+2*p,2)}")
AREA = [24576, VL + 48*2*VS, None]
def area_addr(dst, j, wreg):
    I(f"s_lshl_b32 s10, {wreg}, 11")
    if j < 2: I(f"s_add_u32 s10, s10, {AREA[j]}")
    else:
        I(f"s_cmp_ge_u32 {wreg}, 4"); I("s_cselect_b32 s11, 49152, 0"); I("s_add_u32 s10, s10, s11")
    I(f"v_add_u32 v{dst}, s10, v2")
for dl in range(1, 4):
    I(f"s_add_u32 s9, s{sW}, {2*dl}"); I("s_and_b32 s9, s9, 7"); area_addr(12 + dl, dl - 1, "s9")
    area_addr(16 + dl, dl - 1, f"s{sW}")
OF = 96
I(f"s_lshl_b32 s26, s{sKQ}, 14"); I(f"s_lshl_b32 s10, s{sTT}, 10"); I("s_add_u32 s26, s26, s10")
for k_ in range(1, 4): I(f"v_add_u32 v{3+k_}, {k_*4096}, v2")
def oload():
    for hd in range(8):
        ad = "v2" if hd < 2 else f"v{3 + hd//2}"
        I(f"buffer_load_dwordx4 {vr(OF+4*hd,4)}, {ad}, {srd(SO)}, s26 offen offset:{(hd%2)*2048} sc1")
stamp(10)
L_orep = newlabel("orep"); L_ook = newlabel("ook")
FB = 128
I(f"s_mov_b32 s{sCNT}, 0x4000")
a.label(L_orep); a.vm = []
oload()
for hd in range(8):
    o_ = OF + 4*hd
    for nt in range(2):
        I(mm(FB+16*nt, WOF+8*hd+4*nt, o_, ACC2+16*nt if hd == 0 else FB+16*nt))
    if hd == 0:
        I(f"v_max3_u32 v8, v{o_}, v{o_+1}, v{o_+2}"); I(f"v_mov_b32 v9, v{o_+3}")
    else:
        I(f"v_max3_u32 v8, v8, v{o_}, v{o_+1}"); I(f"v_max3_u32 v9, v9, v{o_+2}, v{o_+3}")
I("v_max_u32 v8, v8, v9")
I("v_cmp_eq_u32 vcc, -1, v8")
I("s_nop 4")
I(f"s_cbranch_vccz {L_ook}")
I("s_nop 15")
I(f"s_sub_u32 s{sCNT}, s{sCNT}, 1"); I(f"s_cmp_lg_u32 s{sCNT}, 0"); I(f"s_cbranch_scc1 {L_orep}")
a.label(L_ook)
stamp(11)
FA = 160
L_j = newlabel("rsj"); Ls = [newlabel(f"rs{k_}") for k_ in range(4)]
for k_ in range(1, 4):
    I(f"s_cmp_eq_u32 s{sKQ}, {k_}"); I(f"s_cbranch_scc1 {Ls[k_]}")
hs = a.save()
for k_ in range(4):
    a.label(Ls[k_]); a.restore(hs)
    for dl in range(1, 4):
        ch = (k_ + dl) % 4
        for q in range(2): I(f"ds_write_b128 v{12+dl}, {vr(FB+8*ch+4*q,4)} offset:{q*1024}")
    for p in range(4): I(f"v_pk_mov_b32 {vr(FA+2*p,2)}, {vr(FB+8*k_+2*p,2)}, {vr(FB+8*k_+2*p,2)} op_sel:[0,1]")
    if k_ < 3: I(f"s_branch {L_j}")
a.label(L_j); a.flush_state(2)
a.barrier()
for dl in range(1, 4):
    for q in range(2): I(f"ds_read_b128 {vr(32+8*(dl-1)+4*q,4)}, v{16+dl} offset:{q*1024}")
for p in range(4): I(f"v_pk_add_f32 {vr(FA+2*p,2)}, {vr(FA+2*p,2)}, {vr(32+2*p,2)}")
for p in range(4): I(f"v_pk_add_f32 {vr(40+2*p,2)}, {vr(40+2*p,2)}, {vr(48+2*p,2)}")
for p in range(4): I(f"v_pk_add_f32 {vr(FA+2*p,2)}, {vr(FA+2*p,2)}, {vr(40+2*p,2)}")
for i in range(4): I(f"v_permlane32_swap_b32 v{FA+i}, v{FA+4+i}")
for p in range(4): I(f"v_pk_add_f32 {vr(FA+2*p,2)}, {vr(FA+2*p,2)}, {vr(XB+2*p,2)}")
for p in range(4): I(f"v_cvt_pk_bf16_f32 v{56+p}, v{FA+2*p}, v{FA+2*p+1}")
I(f"buffer_store_dwordx4 v[56:59], v{vOUT}, {srd(SOUT)}, 0 offen")
stamp(12)
if OPT["stamps"] or OPT.get("dbg", 0): a.waitcnt(vm=0)
stamp(13)
a.raw("L_end:")
a.raw("    s_endpgm")

ref = open(f"cdna_kernels/{NAME}.s.ref").read()
head = ref[:ref.index("; Override launch geometry")]
out = head + f"""; Generated by gen/gen.py (hand-written generator).  One workgroup of 8 waves per CU.
; @launch grid=(256,1,1) block=(512,1,1) lds={LDS_BYTES}
.amdgcn_target "amdgcn-amd-amdhsa--gfx950"
.text
.globl {NAME}_kernel
.p2align 8
.type {NAME}_kernel,@function
{NAME}_kernel:
""" + a.text() + f""".section .rodata,"a"
.p2align 6
.amdhsa_kernel {NAME}_kernel
  .amdhsa_next_free_vgpr 256
  .amdhsa_next_free_sgpr 102
  .amdhsa_accum_offset 256
  .amdhsa_group_segment_fixed_size 0
  .amdhsa_kernarg_size 104
  .amdhsa_user_sgpr_count 2
  .amdhsa_user_sgpr_kernarg_segment_ptr 1
  .amdhsa_system_sgpr_workgroup_id_x 1
.end_amdhsa_kernel
"""
path = OPT_OUT if (OPT_OUT := next((x for x in sys.argv[1:] if x.endswith(".s")), None)) else f"cdna_kernels/{NAME}.s"
open(path, "w").write(out)
print("wrote", path, "lines", len(a.out), "nops", a.nops)
```

```python
import sys, math, struct
sys.path.insert(0, "gen")
from asmlib import Asm

NAME = "parallel_sum__grouped_kv_mqa__dense_activation_gelu__prompt"
OPT = dict(stop=99, stamps=False)
for a_ in sys.argv[1:]:
    if "=" in a_:
        k_, v_ = a_.split("="); OPT[k_] = int(v_)

def fbits(x): return "0x%08x" % struct.unpack("<I", struct.pack("<f", x))[0]

WS_EPOCH = 0
WS_KVFLAG = 0x1000
WS_HFLAG = 0x2000
WS_K = 0x10000
WS_V = 0x20000
WS_H = 0x100000
H_STRIDE = 0x2C000
WS_O = 0x800000
WS_DBG = 0xA00000
WS_SIZE = 0x1000000
XC = 0; XCS = 1040
RING2 = 66560
KL = 0; VL = 65536; VS = 272
QX = 135168
W2R = 143360
MISC = 159744
RSTD = MISC; KMAX = MISC + 256
LDS_BYTES = 163840
SX, SW, SKVW, SWS, SH, SO, SW2, SWO, SB1, SB2, SOUT = 44, 48, 52, 56, 60, 64, 68, 72, 76, 80, 84
SB2 = SB1
def srd(n): return f"s[{n}:{n+3}]"
sW, sG, sC, sTAG, sKSTR, sOFF, sT0, sT1, sT2, sTILE = 3, 4, 5, 6, 7, 8, 16, 17, 18, 12
sONES, sSELLO, sSELHI, sCNT = 13, 14, 15, 42
sC0, sC1 = 88, 90
sTB, sKIND, sFT, sTT, sKH, sNT2, sTT2 = 92, 93, 94, 95, 96, 97, 98
sEX = 100

a = Asm(); I = a.I
def vr(b, n): return f"v[{b}:{b+n-1}]"
lblc = [0]
def newlabel(p):
    lblc[0] += 1
    return f"L_{p}_{lblc[0]}"

P4FLAG = [False]
DBGMAP = {3: 1, 7: 2, 8: 3, 9: 4, 11: 5, 13: 6, 0: 7}
def dbgstamp(slot, src=None):
    L = newlabel("dbg")
    a.waitcnt(lg=0)
    I(f"s_cmp_gt_u32 s{SDBG+2}, 0"); I(f"s_cbranch_scc0 {L}")
    st = a.save()
    if src is None:
        I("s_memrealtime s[100:101]"); a.waitcnt(lg=0)
        I("v_mov_b32 v3, s100")
    I(f"buffer_store_dword {src or 'v3'}, off, s[{SDBG}:{SDBG+3}], s42 offset:{4*slot}".replace("s42", "0"))
    a.label(L); a.restore(st)
SDBG = 80
def stamp(idx):
    if OPT.get("dbg", 0):
        if idx in DBGMAP and DBGREADY[0]: dbgstamp(DBGMAP[idx])
        return
    if not OPT["stamps"]: return
    if OPT.get("astamps", 0) and idx < 7 and not P4FLAG[0]: return
    a.waitcnt(lg=0)
    for k_, op in enumerate(("s_memtime", "s_memrealtime")):
        I(f"{op} s[100:101]")
        a.waitcnt(lg=0)
        I("v_mov_b32 v3, s100")
        I(f"s_lshl_b32 s100, s2, 3"); I(f"s_add_u32 s100, s100, s{sW}"); I("s_lshl_b32 s100, s100, 7")
        I(f"s_add_u32 s100, s100, {WS_DBG + 4*idx + 64*k_}")
        I(f"buffer_store_dword v3, off, {srd(SWS)}, s100")

DBGREADY = [False]
def mk_srd(n, lo, hi, nbytes):
    I(f"s_mov_b32 s{n}, s{lo}"); I(f"s_mov_b32 s{n+1}, s{hi}")
    I(f"s_mov_b32 s{n+2}, {nbytes}"); I(f"s_mov_b32 s{n+3}, 0x00020000")


NE_OLD = OPT.get("ne_old", 8)
T0 = OPT.get("t0", 8)
TBAR = OPT.get("tbar", 18)
NSLOT = 8
KVPOLL = OPT.get("kvpoll", 22)
NMU = MISC + 256; KMAX = MISC + 512; LCNT = MISC + 576; CSL = MISC + 1024
I("s_cmp_ge_u32 s2, 256")
I("s_cbranch_scc1 L_end")
if OPT["stamps"]:
    I("s_memrealtime s[26:27]"); I("s_memtime s[38:39]"); a.waitcnt(lg=0); I("s_mov_b32 s19, s26"); I("s_mov_b32 s101, s38")
    I("v_mov_b32 v126, s19"); I("v_mov_b32 v127, s101")
if OPT.get("dbg", 0):
    I("s_memrealtime s[26:27]"); a.waitcnt(lg=0); I("v_mov_b32 v126, s26")
I("s_load_dwordx16 s[16:31], s[0:1], 0")
I("s_load_dwordx8 s[32:39], s[0:1], 64")
I("s_load_dwordx2 s[40:41], s[0:1], 96")
I("v_lshrrev_b32 v3, 6, v0")
I("v_and_b32 v1, 63, v0")
I(f"v_readfirstlane_b32 s{sW}, v3")
I("v_lshlrev_b32 v2, 4, v1")
if OPT.get("map", 1) == 0:
    I("s_and_b32 s9, s2, 7"); I("s_lshl_b32 s9, s9, 2"); I("s_bfe_u32 s10, s2, 0x20003"); I(f"s_or_b32 s{sG}, s9, s10")
    I(f"s_lshr_b32 s{sC}, s2, 5")
else:
    I("s_bfe_u32 s9, s2, 0x20001"); I("s_lshl_b32 s9, s9, 3"); I("s_bfe_u32 s10, s2, 0x30003"); I(f"s_or_b32 s{sG}, s9, s10")
    I("s_and_b32 s9, s2, 1"); I("s_lshl_b32 s9, s9, 2"); I("s_lshr_b32 s10, s2, 6"); I(f"s_or_b32 s{sC}, s9, s10")
XR = 128; T = 64
I("v_lshrrev_b32 v4, 4, v1")
I("v_and_b32 v5, 15, v1")
I(f"s_lshl_b32 s9, s{sC}, 1"); I(f"s_add_u32 s9, s9, s{sW}"); I("s_and_b32 s9, s9, 7"); I("s_lshl_b32 s9, s9, 3")
I("v_add_u32 v20, s9, v4")
I("v_lshlrev_b32 v21, 10, v20"); I("v_lshl_add_u32 v21, v5, 4, v21")
I(f"s_lshl_b32 s9, s{sG}, 16"); I("s_add_u32 s10, s9, 4096")
I(f"s_mov_b32 s{SX+2}, {2048*1024}"); I(f"s_mov_b32 s{SX+3}, 0x00020000")
I(f"s_mov_b32 s{SX}, s16"); I(f"s_mov_b32 s{SX+1}, s17")
for k_ in range(2):
    for i in range(4):
        I(f"buffer_load_dwordx4 {vr(XR+16*k_+4*i,4)}, v21, {srd(SX)}, s{9+k_} offen offset:{i*256}")
I(f"s_cmp_lt_u32 s{sC}, 4")
I("s_cselect_b32 s9, s20, s22"); I("s_cselect_b32 s10, s21, s23")
mk_srd(SKVW, 9, 10, 16384)
I(f"s_lshl_b32 s9, s{sW}, 11"); I(f"s_add_u32 m0, s9, {W2R}")
I("s_nop 0")
I(f"buffer_load_dwordx4 v2, {srd(SKVW)}, s9 offen lds", tag="x")
I(f"buffer_load_dwordx4 v2, {srd(SKVW)}, s9 offen offset:1024 lds", tag="x")
I(f"s_mov_b32 s{sONES}, 0x3f803f80")
I(f"s_mul_i32 s9, s{sC}, 5"); I(f"s_min_u32 s10, s{sC}, 3"); I("s_add_u32 s9, s9, s10")
I(f"s_add_u32 s9, s9, s{sW}"); I(f"s_sub_u32 s{sTILE}, s9, 2")
I(f"s_lshl_b32 s9, s{sC}, 1"); I(f"s_add_u32 s9, s9, s{sW}")
I(f"s_cmp_lt_u32 s{sW}, 2"); I(f"s_cselect_b32 s{sTILE}, s9, s{sTILE}")
I("s_mov_b32 s11, 2752"); I("s_cselect_b32 s11, 1024, s11")
I(f"s_mov_b32 s{SW+2}, {512*2752}"); I(f"s_cselect_b32 s{SW+2}, {512*1024}, s{SW+2}")
I(f"s_cselect_b32 s{SW}, s18, s28"); I(f"s_cselect_b32 s{SW+1}, s19, s29")
I(f"s_mov_b32 s{SW+3}, 0x00020000")
I(f"s_cmp_ge_u32 s{sC}, 3"); I("s_cselect_b32 s9, 1, 0"); I(f"s_cmp_eq_u32 s{sW}, 7"); I("s_cselect_b32 s9, s9, 0")
I("s_cmp_eq_u32 s9, 1"); I(f"s_cselect_b32 s{sTILE}, 63, s{sTILE}"); I(f"s_cselect_b32 s{SW+2}, 0, s{SW+2}")
if OPT.get("now", 0): I(f"s_mov_b32 s{SW+2}, 0")
I(f"s_lshl_b32 s{sKSTR}, s11, 4")
I("v_lshrrev_b32 v11, 2, v1")
I("v_mul_lo_u32 v11, v11, s11")
I("v_and_b32 v15, 3, v1")
I("v_lshl_add_u32 v11, v15, 4, v11")
I(f"s_lshl_b32 s9, s{sTILE}, 6")
I("v_add_u32 v11, s9, v11")
sWB = [26, 27, 38, 39]; sRING = 99; sQ = 19
if OPT.get("dbg", 0):
    I(f"s_lshl_b32 s9, s2, 3"); I(f"s_or_b32 s9, s9, s{sW}")
    I(f"s_cmp_eq_u32 s9, {133*8+4}"); I("s_cselect_b32 s10, 32, 0"); I("s_add_u32 s38, s38, s10"); I("s_addc_u32 s39, s39, 0")
    mk_srd(SDBG, 38, 39, 0); DBGREADY[0] = True
    I(f"s_cmp_eq_u32 s9, {133*8+4}"); I(f"s_cselect_b32 s{SDBG+2}, 32, 0"); I("s_cmp_eq_u32 s9, 0"); I(f"s_cselect_b32 s{SDBG+2}, 32, s{SDBG+2}")
    dbgstamp(0, "v126")
I(f"s_and_b32 s{sQ}, s{sG}, 3")
if OPT.get("noxor", 0): I(f"s_mov_b32 s{sQ}, 0")
I(f"s_lshl_b32 s10, s{sKSTR}, 3")
for b in range(4):
    I(f"s_xor_b32 s9, s{sQ}, {b}"); I(f"s_mul_i32 s{sWB[b]}, s9, s10")
I(f"s_lshl_b32 s{sRING}, s{sW}, 13"); I(f"s_add_u32 s{sRING}, s{sRING}, {RING2}")
def wslot(s): return (s % NSLOT)*1024
def wdma(s):
    I(f"s_add_u32 m0, s{sRING}, {wslot(s)}")
    if s % 8 == 0: I(f"s_mov_b32 s{sOFF}, s{sWB[s//8]}")
    else: I(f"s_add_u32 s{sOFF}, s{sOFF}, s{sKSTR}")
    I(f"buffer_load_dwordx4 v11, {srd(SW)}, s{sOFF} offen lds", tag=f"w_{s}")
NEARLY = OPT.get("nearly", 4)
for s in range(NEARLY): wdma(s)
mk_srd(SWS, 40, 41, WS_SIZE)
I(f"s_load_dword s{sTAG}, s[40:41], {WS_EPOCH}")
I(f"s_and_b32 s9, s{sC}, 3"); I(f"s_lshl_b32 s10, s{sG}, 2"); I(f"s_add_u32 s{sTB}, s9, s10"); I(f"s_lshr_b32 s{sKIND}, s{sC}, 2")
I(f"s_bfe_u32 s{sFT}, s{sW}, 0x10001"); I(f"s_and_b32 s{sTT}, s{sW}, 1"); I(f"s_lshr_b32 s{sKH}, s{sW}, 2")
I(f"s_lshl_b32 s9, s{sG}, 16"); I(f"s_add_u32 s9, s9, {WS_O}")
I("s_add_u32 s9, s40, s9"); I("s_addc_u32 s10, s41, 0")
mk_srd(SO, 9, 10, 65536)
sOSLOT = 43
I(f"s_lshl_b32 s9, s{sC}, 2"); I(f"s_lshl_b32 s10, s{sFT}, 1"); I("s_add_u32 s9, s9, s10"); I(f"s_add_u32 s9, s9, s{sKH}")
I("s_lshl_b32 s9, s9, 1"); I(f"s_add_u32 s9, s9, s{sTT}"); I(f"s_lshl_b32 s{sOSLOT}, s9, 10")
if OPT["stamps"]:
    I(f"s_lshl_b32 s100, s2, 3"); I(f"s_add_u32 s100, s100, s{sW}"); I("s_lshl_b32 s100, s100, 7")
    I(f"s_add_u32 s100, s100, {WS_DBG + 4*15}")
    I(f"buffer_store_dword v127, off, {srd(SWS)}, s100")
    I(f"buffer_store_dword v126, off, {srd(SWS)}, s100 offset:64")
ACC = 96
I("v_and_b32 v15, 3, v1"); I("v_lshlrev_b32 v13, 3, v15")
I("v_bfe_u32 v15, v1, 2, 2"); I("v_lshl_add_u32 v13, v15, 6, v13")
I("v_bfe_u32 v15, v1, 4, 1"); I("v_lshl_add_u32 v13, v15, 5, v13")
I("v_mov_b32 v17, v13")
I("v_lshrrev_b32 v16, 5, v1")
I("v_lshl_add_u32 v13, v16, 9, v13"); I(f"v_add_u32 v13, s{sRING}, v13")
I("v_and_b32 v18, 31, v1")
I(f"v_mul_u32_u24 v14, {XCS}, v18"); I("v_lshl_add_u32 v14, v16, 4, v14")
vB = [6, 7, 8, 9]
for b in range(4):
    I(f"s_xor_b32 s9, s{sQ}, {b}"); I("s_lshl_b32 s9, s9, 8"); I(f"v_add_u32 v{vB[b]}, s9, v14")
SEL = 88; CSA = 92
I("v_xor_b32 v15, v4, v1"); I("v_and_b32 v15, 1, v15"); I("v_cmp_eq_u32 vcc, 0, v15"); I(f"v_mov_b32 v15, s{sONES}")
for i in range(4): I(f"v_cndmask_b32 v{SEL+i}, 0, v15, vcc")
stamp(0)
I(f"v_mul_u32_u24 v21, {XCS}, v20"); I("v_lshl_add_u32 v21, v5, 4, v21")
I("v_lshlrev_b32 v20, 2, v20"); I(f"v_add_u32 v20, {RSTD}, v20")
for k_ in range(2):
    X = XR + 16*k_; t = T + 8*k_
    for i in range(16):
        if i % 4 == 0: I(f"ds_write_b128 v21, {vr(X+i,4)} offset:{k_*4*XCS + (i//4)*256}")
        I(f"v_dot2_f32_bf16 v{t}, v{X+i}, s{sONES}, {'0' if i == 0 else f'v{t}'}")
        I(f"v_dot2_f32_bf16 v{t+2}, v{X+i}, v{X+i}, {'0' if i == 0 else f'v{t+2}'}")
for k_ in range(2):
    pass
regs = [[T, T+1], [T+2, T+3], [T+8, T+9], [T+10, T+11]]
for ro in (8, 4, 2, 1):
    for rr in regs:
        I(f"v_add_f32_dpp v{rr[1]}, v{rr[0]}, v{rr[0]} row_ror:{ro} row_mask:0xf bank_mask:0xf"); rr.reverse()
for k_ in range(2):
    t = T + 8*k_
    I(f"v_mul_f32 v{t+4}, {fbits(-1.0/512)}, v{t}")
    I(f"v_mul_f32 v{t+5}, {fbits(1.0/512)}, v{t+2}")
for k_ in range(2):
    t = T + 8*k_
    I(f"v_fma_f32 v{t+5}, -v{t+4}, v{t+4}, v{t+5}")
    I(f"ds_write_b32 v20, v{t+4} offset:{256 + 16*k_}")
    I(f"v_max_f32 v{t+5}, 0, v{t+5}")
    I(f"v_add_f32 v{t+5}, {fbits(1e-5)}, v{t+5}")
    I(f"v_rsq_f32 v{t+5}, v{t+5}")
for k_ in range(2): I(f"ds_write_b32 v20, v{T+8*k_+5} offset:{16*k_}")
stamp(5)
for s in range(NEARLY, NSLOT): wdma(s)
a.wait_vm_tag("x")
a.barrier()
I(f"s_mul_i32 s{sTAG}, s{sTAG}, 0x9E3779B1")
I(f"s_add_u32 s{sTAG}, s{sTAG}, 0x7F4A7C15")
stamp(3)
L_kv = newlabel("kv"); L_k = newlabel("kloop")
I(f"s_cmp_lg_u32 s{sW}, 0"); I(f"s_cbranch_scc1 {L_k}")
stB = a.save()
WR = 128
I("s_setprio 3")
L_kvV = newlabel("kvV"); L_kvpub = newlabel("kvpub")
I(f"s_and_b32 s9, s{sC}, 3"); I("s_lshl_b32 s9, s9, 4")
I("v_add_u32 v20, s9, v5")
I(f"v_mul_u32_u24 v21, {XCS}, v20")
I("v_lshl_add_u32 v21, v4, 4, v21")
I("v_lshrrev_b32 v22, 2, v5")
I("v_lshl_add_u32 v22, v4, 3, v22")
I("v_lshlrev_b32 v22, 5, v22")
I("v_and_b32 v15, 3, v1")
I("v_lshl_add_u32 v22, v15, 3, v22")
I(f"v_add_u32 v22, {W2R}, v22")
for s in range(16):
    I(f"ds_read_b128 {vr(WR+8*s,4)}, v21 offset:{s*64}")
    I(f"ds_read_b64_tr_b16 {vr(WR+8*s+4,2)}, v22 offset:{s*1024}")
    I(f"ds_read_b64_tr_b16 {vr(WR+8*s+6,2)}, v22 offset:{s*1024+128}")
for i in range(4): I(f"v_mov_b32 v{68+i}, -1")
for i in range(4): I(f"v_mov_b32 v{64+i}, s{sONES}")
I("v_add_u32 v23, 0x1000, v2")
I(f"s_lshl_b32 s9, s{sC}, 13")
for i in range(8):
    I(f"buffer_store_dwordx4 v[68:71], {'v2' if i < 4 else 'v23'}, {srd(SO)}, s9 offen offset:{(i%4)*1024} sc1")
KD = 72; KC = 76
def kv_mm(kind):
    for s in range(16):
        b = WR + 8*s
        x_, w_ = vr(b, 4), vr(b+4, 4)
        c_ = "0" if s == 0 else vr(KD, 4); cc = "0" if s == 0 else vr(KC, 4)
        I(f"v_mfma_f32_16x16x32_bf16 {vr(KD,4)}, {w_ if kind == 0 else x_}, {x_ if kind == 0 else w_}, {c_}")
        I(f"v_mfma_f32_16x16x32_bf16 {vr(KC,4)}, {w_ if kind == 0 else 'v[64:67]'}, {'v[64:67]' if kind == 0 else w_}, {cc}")
I("v_bfe_u32 v24, v1, 4, 1"); I("v_lshrrev_b32 v25, 5, v1")
I(f"s_cmp_lg_u32 s{sKIND}, 0")
I(f"s_cbranch_scc1 {L_kvV}")
st_kv = a.save()
I("v_lshlrev_b32 v26, 2, v20"); I(f"v_add_u32 v26, {RSTD}, v26")
I(f"s_lshr_b32 s9, s{sTB}, 1"); I("s_lshl_b32 s9, s9, 10"); I(f"s_and_b32 s10, s{sTB}, 1"); I("s_lshl_b32 s10, s10, 8")
I("s_add_u32 s9, s9, s10"); I(f"s_add_u32 s9, s9, {WS_K}")
I("v_lshlrev_b32 v24, 9, v24"); I("v_lshl_add_u32 v24, v5, 4, v24"); I("v_lshl_add_u32 v24, v25, 3, v24")
I("ds_read_b32 v27, v26"); I("ds_read_b32 v28, v26 offset:256")
kv_mm(0)
for r in range(4): I(f"v_fmac_f32 v{KD+r}, v28, v{KC+r}")
for r in range(4): I(f"v_mul_f32 v{KD+r}, v{KD+r}, v27")
I(f"v_cvt_pk_bf16_f32 v30, v{KD}, v{KD+1}"); I(f"v_cvt_pk_bf16_f32 v31, v{KD+2}, v{KD+3}")
I(f"buffer_store_dwordx2 v[30:31], v24, {srd(SWS)}, s9 offen sc1")
I("v_dot2_f32_bf16 v22, v30, v30, 0"); I("v_dot2_f32_bf16 v22, v31, v31, v22")
I("v_mov_b32 v23, v22"); I("v_permlane32_swap_b32 v22, v23"); I("v_add_f32 v22, v22, v23")
I("v_mov_b32 v23, v22"); I("v_permlane16_swap_b32 v22, v23"); I("v_add_f32 v22, v22, v23")
for ro in (8, 4, 2, 1):
    I(f"v_max_f32_dpp v23, v22, v22 row_ror:{ro} row_mask:0xf bank_mask:0xf"); I("v_mov_b32 v22, v23")
I("v_mov_b32 v63, v22")
I(f"s_branch {L_kvpub}")
a.label(L_kvV); a.restore(st_kv)
I(f"s_and_b32 s9, s{sC}, 3"); I("s_lshl_b32 s9, s9, 6"); I(f"s_add_u32 s9, s9, {RSTD}")
I("v_lshl_add_u32 v26, v4, 4, s9")
I(f"s_lshl_b32 s9, s{sTB}, 9"); I(f"s_add_u32 s9, s9, {WS_V}")
I("v_lshlrev_b32 v24, 8, v24"); I("v_lshl_add_u32 v24, v5, 4, v24"); I("v_lshl_add_u32 v24, v25, 3, v24")
I("ds_read_b128 v[80:83], v26"); I("ds_read_b128 v[84:87], v26 offset:256")
kv_mm(1)
for r in range(4): I(f"v_fmac_f32 v{KD+r}, v{84+r}, v{KC+r}")
for r in range(4): I(f"v_mul_f32 v{KD+r}, v{KD+r}, v{80+r}")
I(f"v_cvt_pk_bf16_f32 v30, v{KD}, v{KD+1}"); I(f"v_cvt_pk_bf16_f32 v31, v{KD+2}, v{KD+3}")
I(f"buffer_store_dwordx2 v[30:31], v24, {srd(SWS)}, s9 offen sc1")
I("v_mov_b32 v63, 0")
a.label(L_kvpub); a.flush_state(2)
I(f"v_mov_b32 v62, s{sTAG}")
I(f"s_lshl_b32 s9, s{sTB}, 1"); I(f"s_add_u32 s9, s9, s{sKIND}"); I("s_lshl_b32 s9, s9, 3"); I(f"s_add_u32 s9, s9, {WS_KVFLAG}")
a.force_wait(vm=0)
I("s_mov_b64 exec, 1")
I(f"buffer_store_dwordx2 v[62:63], off, {srd(SWS)}, s9 sc1")
I("s_mov_b64 exec, -1")
I("s_setprio 0")
stamp(1)
a.label(L_k); a.restore(stB); a.flush_state(3); a.lg = []
stamp(2)

NBUF = 3
AF = 128; BF = 140
def p2_readB(s):
    bb = BF + 8*(s % NBUF)
    I(f"ds_read_b128 {vr(bb,4)}, v{vB[s//8]} offset:{(s%8)*32}")
    I(f"ds_read_b128 {vr(bb+4,4)}, v{vB[s//8]} offset:{32*XCS + (s%8)*32}")
def p2_readA(s):
    ab = AF + 4*(s % NBUF)
    a.wait_vm_tag(f"w_{s}")
    I(f"ds_read_b64_tr_b16 {vr(ab,2)}, v13 offset:{wslot(s)}")
    I(f"ds_read_b64_tr_b16 {vr(ab+2,2)}, v13 offset:{wslot(s)+256}")
def p2_mma(s, tt):
    ab = AF + 4*(s % NBUF); bb = BF + 8*(s % NBUF)
    c_ = "0" if s == 0 else vr(ACC+16*tt, 16)
    I(f"v_mfma_f32_32x32x16_bf16 {vr(ACC+16*tt,16)}, {vr(ab,4)}, {vr(bb+4*tt,4)}, {c_}")
def p2_cs(s):
    ab = AF + 4*(s % NBUF)
    I(f"v_mfma_f32_16x16x32_bf16 {vr(CSA,4)}, {vr(ab,4)}, {vr(SEL,4)}, {'0' if s == 0 else vr(CSA,4)}")

def poll(load_fn, check_fn, name, sleep=2):
    L = newlabel(name); Ld = newlabel(name + "ok")
    I(f"s_mov_b32 s{sCNT}, 0x4000")
    a.label(L)
    load_fn()
    a.force_wait(vm=0)
    check_fn()
    I("s_nop 4")
    I(f"s_cbranch_vccz {Ld}")
    if sleep: I(f"s_sleep {sleep}")
    I(f"s_sub_u32 s{sCNT}, s{sCNT}, 1")
    I(f"s_cmp_lg_u32 s{sCNT}, 0")
    I(f"s_cbranch_scc1 {L}")
    a.label(Ld)
KVS = 192
sR = 20
def kv_flag_load():
    I(f"s_add_u32 s{sR}, s{sC}, s{sG}"); I(f"s_and_b32 s{sR}, s{sR}, 7"); I(f"s_xor_b32 s{sR}, s{sR}, s{sW}")
    I("v_bfe_u32 v19, v1, 2, 1"); I("v_lshlrev_b32 v19, 10, v19")
    I("v_bfe_u32 v56, v1, 3, 2"); I("v_lshl_add_u32 v19, v56, 8, v19")
    I("v_and_b32 v56, 3, v1"); I("v_lshl_add_u32 v19, v56, 3, v19")
    I(f"s_lshl_b32 s21, s{sR}, 5"); I(f"s_add_u32 s21, s21, {WS_KVFLAG}")
    I(f"buffer_load_dwordx2 v[60:61], v19, {srd(SWS)}, s21 offen sc1")
def kv_fetch():
    L = newlabel("kvok")
    I(f"v_cmp_ne_u32 vcc, s{sTAG}, v60")
    I("s_nop 4")
    I(f"s_cbranch_vccz {L}")
    st = a.save()
    poll(lambda: I(f"buffer_load_dwordx2 v[60:61], v19, {srd(SWS)}, s21 offen sc1"),
         lambda: I(f"v_cmp_ne_u32 vcc, s{sTAG}, v60"), "pkv")
    a.label(L); a.restore(st)
    I(f"s_lshl_b32 s9, s{sR}, 10"); I(f"s_add_u32 s23, s9, {WS_V}"); I(f"s_add_u32 s22, s9, {WS_K}")
    I("v_add_u32 v191, 0x8000, v2")
def kv_load(i, which):
    so = "s22" if which == 0 else "s23"
    I(f"buffer_load_dwordx4 {vr(KVS+8*i+4*which,4)}, {'v2' if i % 2 == 0 else 'v191'}, {srd(SWS)}, {so} offen sc1")
    if i % 2 == 1: I(f"s_add_u32 {so}, {so}, 8192")
def kv_publish(nyounger):
    L = newlabel("nopub")
    I(f"s_cmp_lg_u32 s{sW}, 0"); I(f"s_cbranch_scc1 {L}")
    st = a.save()
    a.raw(f"    s_waitcnt vmcnt({nyounger})")
    I(f"v_mov_b32 v62, s{sTAG}")
    I(f"s_lshl_b32 s9, s{sTB}, 1"); I(f"s_add_u32 s9, s9, s{sKIND}"); I("s_lshl_b32 s9, s9, 3"); I(f"s_add_u32 s9, s9, {WS_KVFLAG}")
    I("s_mov_b64 exec, 1")
    I(f"buffer_store_dwordx2 v[62:63], off, {srd(SWS)}, s9 sc1")
    I("s_mov_b64 exec, -1")
    a.label(L); a.restore(st)
p2_readB(0); p2_readA(0); p2_readB(1); p2_readA(1)
mk_srd(SB1, 30, 31, 2752)
PUBK = OPT.get("pubk", 3)
for s in range(32):
    p2_mma(s, 0)
    PX = OPT.get("p2x", 0)
    if s + NSLOT < 32 and not PX & 2: wdma(s + NSLOT)
    if not PX & 4: p2_cs(s)
    if s + 2 < 32 and not PX & 1: p2_readB(s + 2)
    p2_mma(s, 1)
    if s + 2 < 32: p2_readA(s + 2)
    if s == 16:
        I(f"s_lshl_b32 s9, s{sTILE}, 6")
        I("v_lshl_add_u32 v10, v16, 3, s9")
        for q in range(4):
            I(f"buffer_load_dwordx2 {vr(24+2*q,2)}, v10, {srd(SB1)}, 0 offen offset:{16*q}")
    if s == 28:
        I("v_lshlrev_b32 v10, 2, v18"); I(f"v_add_u32 v10, {RSTD}, v10")
        for tt in range(2):
            I(f"ds_read_b32 v{20+2*tt}, v10 offset:{128*tt}"); I(f"ds_read_b32 v{64+2*tt}, v10 offset:{256 + 128*tt}")
stamp(4)
I(f"s_add_u32 s{sR}, s{sC}, s{sG}"); I(f"s_and_b32 s{sR}, s{sR}, 7"); I(f"s_xor_b32 s{sR}, s{sR}, s{sW}")
I(f"s_lshl_b32 s9, s{sR}, 10"); I(f"s_add_u32 s23, s9, {WS_V + 8192}"); I(f"s_add_u32 s22, s9, {WS_K + 8192}")
I("v_add_u32 v191, 0x8000, v2")
I(f"s_lshl_b32 s11, s{sW}, 7"); I(f"s_add_u32 s11, s11, {CSL}")
I("v_lshlrev_b32 v10, 6, v5"); I("v_lshl_add_u32 v10, v4, 4, v10"); I("v_add_u32 v10, s11, v10")
I("v_cmp_gt_u32 vcc, 2, v5")
I(f"s_and_saveexec_b64 s[26:27], vcc")
I(f"ds_write_b128 v10, {vr(CSA,4)}")
I("s_mov_b64 exec, s[26:27]")
I("v_lshl_add_u32 v10, v16, 4, s11")
CS = 72
for q in range(4): I(f"ds_read_b128 {vr(CS+4*q,4)}, v10 offset:{32*q}")
I(f"s_mul_i32 s9, s{sG}, {H_STRIDE}"); I(f"s_add_u32 s9, s9, {WS_H}")
I("s_add_u32 s9, s40, s9"); I("s_addc_u32 s10, s41, 0")
mk_srd(SH, 9, 10, 86*2048)
L_epf = newlabel("epffn"); L_epdone = newlabel("epdone")
I(f"s_cmp_ge_u32 s{sW}, 2")
I(f"s_cbranch_scc1 {L_epf}")
st_ep = a.save()
QS = 0.25 * math.log2(math.e)
I(f"v_mul_f32 v20, {fbits(QS)}, v20"); I(f"v_mul_f32 v22, {fbits(QS)}, v22")
I(f"s_lshl_b32 s9, s{sW}, 12"); I(f"s_add_u32 s9, s9, {QX}")
I("v_add_u32 v19, s9, v2")
for tt in range(2):
    rs = 20 + 2*tt; nm = 64 + 2*tt
    for p in range(8):
        r = ACC + 16*tt + 2*p
        I(f"v_pk_fma_f32 {vr(r,2)}, {vr(CS+2*p,2)}, {vr(nm,2)}, {vr(r,2)} op_sel_hi:[1,0,1]")
    for p in range(8):
        r = ACC + 16*tt + 2*p
        I(f"v_pk_mul_f32 {vr(r,2)}, {vr(r,2)}, {vr(rs,2)} op_sel_hi:[1,0]")
    for p in range(8):
        r = ACC + 16*tt + 2*p
        I(f"v_cvt_pk_bf16_f32 v{32+8*tt+p}, v{r}, v{r+1}")
    for x in range(2):
        I(f"ds_write_b128 v19, {vr(32+8*tt+4*x,4)} offset:{(tt*2+x)*1024}")
I("v_lshlrev_b32 v19, 5, v1")
def all_flags():
    I(f"buffer_load_dwordx4 v[48:51], v19, {srd(SWS)}, 0 offen offset:{WS_KVFLAG - 16}".replace(f"offset:{WS_KVFLAG - 16}", "") .replace(", 0 offen", ", s21 offen") + "sc1")
    I(f"buffer_load_dwordx4 v[52:55], v19, {srd(SWS)}, s21 offen offset:16 sc1")
def all_check():
    for r_ in (48, 50, 52, 54): I(f"v_xor_b32 v{r_}, s{sTAG}, v{r_}")
    I("v_or3_b32 v48, v48, v50, v52"); I("v_or_b32 v48, v48, v54"); I("v_cmp_ne_u32 vcc, 0, v48")
I(f"s_mov_b32 s21, {WS_KVFLAG}")
poll(all_flags, all_check, "pkv", sleep=OPT.get("kvsleep", 4))
I(f"s_lshl_b32 s9, s{sW}, 15"); I(f"s_add_u32 s10, s9, {WS_V}"); I(f"s_add_u32 s9, s9, {WS_K}")
I("v_add_u32 v56, 0x1000, v2")
for i in range(8):
    I(f"buffer_load_dwordx4 {vr(KVS+4*i,4)}, {'v2' if i < 4 else 'v56'}, {srd(SWS)}, s9 offen offset:{(i%4)*1024} sc1")
    I(f"buffer_load_dwordx4 {vr(KVS+32+4*i,4)}, {'v2' if i < 4 else 'v56'}, {srd(SWS)}, s10 offen offset:{(i%4)*1024} sc1")
I("v_max3_f32 v61, v49, v51, v53"); I("v_max_f32 v61, v61, v55")
for ro in (8, 4, 2, 1):
    I(f"v_max_f32_dpp v60, v61, v61 row_ror:{ro} row_mask:0xf bank_mask:0xf"); I("v_mov_b32 v61, v60")
I("v_permlane16_swap_b32 v60, v61"); I("v_max_f32 v61, v60, v61"); I("v_mov_b32 v60, v61")
I("v_permlane32_swap_b32 v60, v61"); I("v_max_f32 v61, v60, v61")
I(f"v_mov_b32 v60, {KMAX}")
I(f"ds_write_b32 v60, v61")
I(f"s_branch {L_epdone}")
a.label(L_epf); a.restore(st_ep)
C0 = -2.0 * math.sqrt(2.0/math.pi) * math.log2(math.e)
C1 = C0 * 0.044715
I(f"s_mov_b32 s{sC1}, {fbits(C1)}"); I(f"s_mov_b32 s{sC1+1}, {fbits(C1)}")
B1 = 32
for q in range(4):
    for d in range(2):
        I(f"v_lshlrev_b32 v{B1+4*q+2*d}, 16, v{24+2*q+d}")
        I(f"v_and_b32 v{B1+4*q+2*d+1}, 0xffff0000, v{24+2*q+d}")
I(f"v_mov_b32 v48, {fbits(C0)}"); I(f"v_mov_b32 v49, {fbits(C0)}")
I(f"s_lshl_b32 s9, s{sTILE}, 12")
def gelu8(r, rs, nm, cs, b, outr):
    t = 52
    for p in range(4): I(f"v_pk_fma_f32 {vr(r+2*p,2)}, {vr(cs+2*p,2)}, {vr(nm,2)}, {vr(r+2*p,2)} op_sel_hi:[1,0,1]")
    for p in range(4): I(f"v_pk_fma_f32 {vr(r+2*p,2)}, {vr(r+2*p,2)}, {vr(rs,2)}, {vr(b+2*p,2)} op_sel_hi:[1,0,1]")
    for p in range(4): I(f"v_pk_mul_f32 {vr(t+2*p,2)}, {vr(r+2*p,2)}, {vr(r+2*p,2)}")
    for p in range(4): I(f"v_pk_fma_f32 {vr(t+2*p,2)}, {vr(t+2*p,2)}, s[{sC1}:{sC1+1}], v[48:49]")
    for p in range(4): I(f"v_pk_mul_f32 {vr(t+2*p,2)}, {vr(t+2*p,2)}, {vr(r+2*p,2)}")
    for i in range(8): I(f"v_exp_f32 v{t+i}, v{t+i}")
    for p in range(4): I(f"v_pk_add_f32 {vr(t+2*p,2)}, {vr(t+2*p,2)}, 1.0 op_sel_hi:[1,0]")
    for i in range(8): I(f"v_rcp_f32 v{t+i}, v{t+i}")
    for p in range(4): I(f"v_pk_mul_f32 {vr(t+2*p,2)}, {vr(t+2*p,2)}, {vr(r+2*p,2)}")
    for p in range(4): I(f"v_cvt_pk_bf16_f32 v{outr+p}, v{t+2*p}, v{t+2*p+1}")
def gelu8s(r, rs, nm, cs, b, outr):
    t = 52
    for i in range(8): I(f"v_fmac_f32 v{r+i}, v{cs+i}, v{nm}")
    for i in range(8): I(f"v_fma_f32 v{r+i}, v{r+i}, v{rs}, v{b+i}")
    for i in range(8): I(f"v_mul_f32 v{t+i}, v{r+i}, v{r+i}")
    for i in range(8): I(f"v_fma_f32 v{t+i}, v{t+i}, s{sC1}, v48")
    for i in range(8): I(f"v_mul_f32 v{t+i}, v{t+i}, v{r+i}")
    for i in range(8): I(f"v_exp_f32 v{t+i}, v{t+i}")
    for i in range(8): I(f"v_add_f32 v{t+i}, 1.0, v{t+i}")
    for i in range(8): I(f"v_rcp_f32 v{t+i}, v{t+i}")
    for i in range(8): I(f"v_mul_f32 v{t+i}, v{t+i}, v{r+i}")
    for p in range(4): I(f"v_cvt_pk_bf16_f32 v{outr+p}, v{t+2*p}, v{t+2*p+1}")
def gelu_all(fn):
    for tt in range(2):
        for u in range(2):
            o_ = 128 + 4*(2*tt+u)
            fn(ACC+16*tt+8*u, 20+2*tt, 64+2*tt, CS+8*u, B1+8*u, o_)
            I(f"buffer_store_dwordx4 {vr(o_,4)}, v2, {srd(SH)}, s9 offen offset:{u*2048 + tt*1024} sc1", tag="hst")
GM = OPT.get("gelu", 0)
if GM == 0: gelu_all(gelu8)
elif GM == 1: gelu_all(gelu8s)
else:
    L_gy = newlabel("gy")
    I(f"s_cmp_ge_u32 s{sW}, 4"); I(f"s_cbranch_scc1 {L_gy}")
    st = a.save()
    gelu_all(gelu8s); I(f"s_branch {L_epdone}")
    a.label(L_gy); a.restore(st)
    gelu_all(gelu8)
a.label(L_epdone); a.flush_state(2); a.lg = []
stamp(6)

vSK, vSV = 184, 186
I(f"s_lshl_b32 s11, s{sR}, 10"); I(f"v_add_u32 v{vSK}, s11, v2"); I(f"v_add_u32 v{vSK+1}, 0x8000, v{vSK}")
I(f"s_mul_i32 s11, s{sR}, {4*VS}"); I(f"s_add_u32 s11, s11, {VL}")
I(f"v_mul_u32_u24 v25, {VS}, v4"); I("v_lshl_add_u32 v25, v5, 4, v25"); I(f"v_add_u32 v{vSV}, s11, v25"); I(f"v_add_u32 v{vSV+1}, {32*4*VS}, v{vSV}")
def kv_stage(i, which):
    if which == 0: return f"ds_write_b128 v{vSK + i % 2}, {vr(KVS+8*i,4)} offset:{(i//2)*8192}"
    return f"ds_write_b128 v{vSV + i % 2}, {vr(KVS+8*i+4,4)} offset:{(i//2)*8*4*VS}"
I(f"s_mul_i32 s11, s{sW}, {16*2*VS}"); I(f"s_add_u32 s11, s11, {VL}")
I(f"v_mul_u32_u24 v26, {VS}, v18"); I("v_add_u32 v26, s11, v26")
for i in range(4): I(f"v_mov_b32 v{28+i}, s{sONES}")
QA, QB, KF, V1, V2 = 4, 8, 12, 16, 20
CA, CB, SA, SB, OA, OB = 32, 48, 64, 80, 96, 112
ACC2, A2, B2, XRES, BB2 = 192, 128, 136, 160, 164
vKA, vVA, vTR = 24, 25, 26
vLP, vHH, vJJ = 188, 189, 190
I("v_mov_b32 v160, v17"); I("v_mov_b32 v161, v16"); I("v_mov_b32 v162, v18")
I(f"s_and_b32 s11, s{sW}, 3"); I("s_lshl_b32 s11, s11, 11"); I(f"s_add_u32 s11, s11, {QX}")
I("v_add_u32 v165, s11, v2")
I(f"v_mov_b32 v167, {KMAX}")
a.barrier()
I(f"ds_write_b128 v26, v[28:31] offset:256")
I(f"ds_read_b128 {vr(QA,4)}, v165"); I(f"ds_read_b128 {vr(QB,4)}, v165 offset:1024")
I(f"ds_read_b32 v168, v167")
L_nst = newlabel("nostage")
I(f"s_cmp_ge_u32 s{sW}, 2"); I(f"s_cbranch_scc1 {L_nst}")
st = a.save()
I(f"s_lshl_b32 s11, s{sW}, 15"); I("v_add_u32 v176, s11, v2")
I(f"s_mul_i32 s11, s{sW}, {32*4*VS}"); I(f"s_add_u32 s11, s11, {VL}"); I("v_add_u32 v177, s11, v25")
for i in range(8):
    a.force_wait(vm=14 - 2*i)
    I(f"ds_write_b128 v176, {vr(KVS+4*i,4)} offset:{i*1024}")
    I(f"ds_write_b128 v177, {vr(KVS+32+4*i,4)} offset:{i*4*VS}")
a.label(L_nst); a.restore(st)
for (q, t) in ((QA, 176), (QB, 178)):
    I(f"v_dot2_f32_bf16 v{t}, v{q}, v{q}, 0")
    for i in range(1, 4): I(f"v_dot2_f32_bf16 v{t}, v{q+i}, v{q+i}, v{t}")
for t in (176, 178):
    I(f"v_mov_b32 v{t+1}, v{t}"); I(f"v_permlane32_swap_b32 v{t}, v{t+1}"); I(f"v_add_f32 v{t}, v{t}, v{t+1}")
    I(f"v_mul_f32 v{t}, v{t}, v168"); I(f"v_sqrt_f32 v{t}, v{t}")
I("v_max_f32 v180, v176, v178")
for i in range(16):
    I(f"v_sub_f32 v{CA+i}, 0, v176"); I(f"v_sub_f32 v{CB+i}, 0, v178")
I(f"v_cmp_nge_f32 vcc, {fbits(50.0)}, v180")
I(f"s_lshl_b32 s11, s{sKH}, 15"); I(f"v_add_u32 v163, s11, v2")
I(f"s_mul_i32 s11, s{sKH}, {64*2*VS}"); I(f"s_add_u32 s11, s11, {VL}")
I(f"v_min_u32 v164, 16, v162"); I(f"v_lshlrev_b32 v164, 4, v164")
I(f"v_mul_u32_u24 v183, {VS}, v161"); I(f"v_add3_u32 v164, v164, v183, s11")
if OPT.get("zrows", 1):
    I("v_and_b32 v183, 27, v162"); I("v_cmp_lt_u32 s[20:21], 16, v183")
    I("v_mov_b32 v183, 0x80000"); I("v_cndmask_b32 v164, v164, v183, s[20:21]")
def publish_h():
    L = newlabel("nohf"); L2 = newlabel("noep")
    a.wait_vm_tag("hst")
    vm_keep = [dict(o) for o in a.vm]
    I(f"v_mov_b32 v171, s{sTAG}")
    I("s_mov_b64 exec, 1")
    I(f"s_cmp_lt_u32 s{sW}, 2"); I(f"s_cbranch_scc1 {L}")
    I(f"s_lshl_b32 s9, s{sG}, 8"); I(f"s_lshl_b32 s10, s{sTILE}, 2"); I("s_add_u32 s9, s9, s10"); I(f"s_add_u32 s9, s9, {WS_HFLAG}")
    I(f"buffer_store_dword v171, off, {srd(SWS)}, s9 sc1")
    a.label(L)
    I("s_or_b32 s11, s2, s%d" % sW); I("s_cmp_lg_u32 s11, 0"); I(f"s_cbranch_scc1 {L2}")
    I(f"buffer_store_dword v171, off, {srd(SWS)}, 0 offset:{WS_EPOCH} sc1")
    a.label(L2)
    I("s_mov_b64 exec, -1")
    a.vm = vm_keep
a.barrier()
I(f"v_mov_b32 v{vKA}, v163"); I(f"v_mov_b32 v{vVA}, v164")
I(f"v_mov_b32 v{vLP}, v160"); I(f"v_mov_b32 v{vHH}, v161"); I(f"v_mov_b32 v{vJJ}, v162")
I(f"ds_read_b128 {vr(KF,4)}, v{vKA} offset:{KL}")
L_fast = newlabel("fast"); L_slow = newlabel("slowloop")
I(f"s_cbranch_vccz {L_fast}")
st_f = a.save()
I(f"v_mov_b32 v176, {fbits(-3.0e38)}"); I(f"v_mov_b32 v178, {fbits(-3.0e38)}")
I(f"s_mov_b32 s10, {WS_K}"); I("s_mov_b32 s11, 64")
a.label(L_slow); a.flush_state(16)
I(f"buffer_load_dwordx4 {vr(V1,4)}, v2, {srd(SWS)}, s10 offen sc1")
a.force_wait(vm=0)
I(f"v_mfma_f32_32x32x16_bf16 {vr(SA,16)}, {vr(V1,4)}, {vr(QA,4)}, 0")
I(f"v_mfma_f32_32x32x16_bf16 {vr(SB,16)}, {vr(V1,4)}, {vr(QB,4)}, 0")
I("s_add_u32 s10, s10, 1024")
for (S_, t) in ((SA, 176), (SB, 178)):
    for i in range(8): I(f"v_max3_f32 v{t}, v{t}, v{S_+2*i}, v{S_+2*i+1}")
I("s_sub_u32 s11, s11, 1"); I("s_cmp_lg_u32 s11, 0"); I(f"s_cbranch_scc1 {L_slow}")
for t in (176, 178):
    I(f"v_mov_b32 v{t+1}, v{t}"); I(f"v_permlane32_swap_b32 v{t}, v{t+1}"); I(f"v_max_f32 v{t}, v{t}, v{t+1}")
for i in range(16):
    I(f"v_sub_f32 v{CA+i}, 0, v176"); I(f"v_sub_f32 v{CB+i}, 0, v178")
I("s_nop 15")
a.label(L_fast); a.restore(st_f)
stamp(7)

def mm(d, x, y, c):
    cs = "0" if c is None else vr(c, 16)
    return f"v_mfma_f32_32x32x16_bf16 {vr(d,16)}, {vr(x,4)}, {vr(y,4)}, {cs}"
def blk(S_, h):
    b = S_ + 8*h
    return [f"v_exp_f32 v{b+i}, v{b+i}" for i in range(8)] + [f"v_cvt_pk_bf16_f32 v{b+i}, v{b+2*i}, v{b+2*i+1}" for i in range(4)]
def rdK(t): return f"ds_read_b128 {vr(KF,4)}, v{vKA} offset:{KL + t*1024}"
def rdV(reg, u): return f"ds_read_b128 {vr(reg,4)}, v{vVA} offset:{u*2*VS}"
I(rdV(V1, 0))
I(mm(SA, KF, QA, CA))

vWD, vOUT, vTR2, vT = 30, 31, 27, 28
sW2OFF, sHOFF, sWOM, sWOOFF, sRB = sT1, sT2, sKSTR, sOFF, 21
sKQ = sNT2
RINGREG = [0, 32768, VL, VL + 64*2*VS]
WOREG = [8192, 32768 + 8192, VL + 16*2*VS, VL + 80*2*VS]
NK2 = 22
def sel4(dst, idx, tab):
    I(f"s_mov_b32 s{dst}, {tab[0]}")
    for k_ in range(1, 4):
        I(f"s_cmp_eq_u32 s{idx}, {k_}"); I(f"s_cselect_b32 s{dst}, {tab[k_]}, s{dst}")
def setup1():
    I(f"s_lshr_b32 s{sKQ}, s{sW}, 1")
    I(f"s_lshl_b32 s11, s{sW}, 11"); I(f"s_add_u32 s{sT0}, s11, {W2R}")
    sel4(sRB, sKQ, RINGREG); I(f"s_lshl_b32 s9, s{sTT}, 12"); I(f"s_add_u32 s{sRB}, s{sRB}, s9")
    I(f"v_lshl_add_u32 v{vT}, v{vHH}, 8, v{vLP}"); I(f"v_add_u32 v{vTR}, s{sT0}, v{vT}"); I(f"v_add_u32 v{vTR2}, s{sRB}, v{vT}")
    I(f"v_lshrrev_b32 v{vWD}, 2, v{vJJ}"); I(f"v_lshlrev_b32 v{vWD}, 10, v{vWD}")
    I(f"v_lshl_add_u32 v{vWD}, v{vHH}, 6, v{vWD}"); I(f"v_and_b32 v{vT}, 3, v1"); I(f"v_lshl_add_u32 v{vWD}, v{vT}, 4, v{vWD}")
    I(f"s_lshl_b32 s11, s{sC}, 7"); I(f"v_add_u32 v{vWD}, s11, v{vWD}")
    mk_srd(SW2, 32, 33, 1376*1024)
    I(f"s_mul_i32 s{sW2OFF}, s{sKQ}, {NK2*16384}"); I(f"s_mul_i32 s{sHOFF}, s{sKQ}, {NK2*2048}")
    I(f"s_lshl_b32 s9, s{sTT}, 10"); I(f"s_add_u32 s{sHOFF}, s{sHOFF}, s9")
    I(f"v_lshlrev_b32 v{vT}, 10, v1"); I(f"v_add_u32 v{vT}, s11, v{vT}")
    I(f"s_mul_i32 s9, s{sTT}, {176*1024}"); I(f"s_add_u32 s9, s9, s{sW2OFF}")
    for i in range(3 if OPT.get("touchw", 0) else 0):
        I(f"buffer_load_dword v{172+i}, v{vT}, {srd(SW2)}, s9 offen")
        if i < 2: I("s_add_u32 s9, s9, 65536")
def setup2():
    mk_srd(SWO, 24, 25, 512*1024)
    I(f"s_lshl_b32 s{sWOOFF}, s{sW}, 16")
    if OPT.get("touchw", 0): I(f"buffer_load_dword v175, v{vT}, {srd(SWO)}, s{sWOOFF} offen")
    sel4(sWOM, sKQ, WOREG)
    I(f"s_lshl_b32 s9, s{sTT}, 13"); I(f"s_add_u32 s{sWOM}, s{sWOM}, s9")
def setup3():
    mk_srd(SB2, 34, 35, 1024)
    mk_srd(SOUT, 36, 37, 2048*1024)
    I(f"s_lshl_b32 s11, s{sC}, 7"); I(f"s_lshl_b32 s9, s{sKQ}, 5"); I("s_add_u32 s11, s11, s9")
    I(f"v_lshl_add_u32 v{vT}, v{vHH}, 4, s11")
    I(f"buffer_load_dwordx4 {vr(BB2,4)}, v{vT}, {srd(SB2)}, 0 offen")
    I(f"s_lshl_b32 s9, s{sG}, 6"); I(f"s_lshl_b32 s10, s{sTT}, 5"); I("s_add_u32 s9, s9, s10")
    I(f"v_add_u32 v{vOUT}, s9, v{vJJ}"); I(f"v_lshl_add_u32 v{vOUT}, v{vOUT}, 10, v{vT}")
    I(f"buffer_load_dwordx4 {vr(XRES,4)}, v{vOUT}, {srd(SX)}, 0 offen")
    if OPT.get("touchout", 0): I(f"buffer_load_dword v174, v{vOUT}, {srd(SOUT)}, 0 offen")
def slot_base(n): return (f"s{sT0}", 0) if n % 3 == 0 else (f"s{sRB}", (n % 3 - 1)*2048)
def w2_dma(n, hf):
    b, o = slot_base(n)
    return [("I", f"s_add_u32 m0, {b}, {o + hf*1024}"),
            ("I", f"s_add_u32 s{sW2OFF}, s{sW2OFF}, 8192") if (n, hf) != (0, 0) else ("I", "s_nop 0"),
            ("I", f"buffer_load_dwordx4 v{vWD}, {srd(SW2)}, s{sW2OFF} offen lds", f"w2_{n}")]
NB2 = 4
def h_load(n):
    b = B2 + 4*(n % NB2)
    L = [("I", f"buffer_load_dwordx4 {vr(b,4)}, v2, {srd(SH)}, s{sHOFF} offen offset:{(n % 2)*2048} sc1")]
    if n % 2: L.append(("I", f"s_add_u32 s{sHOFF}, s{sHOFF}, 4096"))
    return L
A2 = 128; B2 = 144
def w2_tr(n, nt):
    ab = A2 + 8*(n % 2) + 4*nt
    ad = vTR if n % 3 == 0 else vTR2
    o = slot_base(n)[1] + nt*512
    return [("WV", f"w2_{n}"),
            ("I", f"ds_read_b64_tr_b16 {vr(ab,2)}, v{ad} offset:{o}", f"tr_{n}"),
            ("I", f"ds_read_b64_tr_b16 {vr(ab+2,2)}, v{ad} offset:{o+1024}", f"tr_{n}")]
def f2_mm(n, nt):
    d = ACC2 + 16*nt
    return [("I", mm(d, A2+8*(n % 2)+4*nt, B2+4*(n % NB2), None if n == 0 else d))]
def hpoll():
    I(f"s_mul_i32 s9, s{sKQ}, 11")
    I(f"v_min_u32 v{vT}, 10, v1"); I(f"v_add_u32 v{vT}, s9, v{vT}"); I(f"v_min_u32 v{vT}, 42, v{vT}"); I(f"v_lshlrev_b32 v{vT}, 2, v{vT}")
    I(f"s_lshl_b32 s27, s{sG}, 8"); I(f"s_add_u32 s27, s27, {WS_HFLAG}")
    I(f"buffer_load_dword v171, v{vT}, {srd(SWS)}, s27 offen sc1")
def hcheck():
    L = newlabel("hok")
    I(f"v_cmp_ne_u32 vcc, s{sTAG}, v171")
    I("s_nop 4")
    I(f"s_cbranch_vccz {L}")
    st = a.save()
    poll(lambda: I(f"buffer_load_dword v171, v{vT}, {srd(SWS)}, s27 offen sc1"),
         lambda: I(f"v_cmp_ne_u32 vcc, s{sTAG}, v171"), "ph")
    a.label(L); a.restore(st)
def wo_dma(i):
    return [("I", f"s_add_u32 m0, s{sWOM}, {i*1024}"),
            ("I", f"s_add_u32 s{sWOOFF}, s{sWOOFF}, 8192") if i else ("I", "s_nop 0"),
            ("I", f"buffer_load_dwordx4 v{vWD}, {srd(SWO)}, s{sWOOFF} offen lds", "wo")]
NSTEP = 32
extra = {t: {} for t in range(NSTEP + 1)}
def add(t, pos, L): extra[t].setdefault(pos, []).extend(L)
add(0, 30, [("F", publish_h)])
add(1, 20, [("F", setup1)])
add(1, 44, [("F", setup2)])
add(2, 44, [("F", setup3)])
for n_ in range(12):
    add(n_ // 4, (4, 16, 27, 40)[n_ % 4], [("F", (lambda n_=n_: kv_load(2 + n_ // 2, n_ % 2)))])
    add(3 + n_ // 3, (10, 21, 45)[n_ % 3], [("I", kv_stage(2 + n_ // 2, n_ % 2))])
T0 = 8
add(4, 30, [("F", hpoll)])
add(5, 6, w2_dma(0, 0)); add(5, 30, w2_dma(0, 1))
add(6, 6, [("F", hcheck)])
add(6, 7, h_load(0)); add(6, 30, h_load(1)); add(7, 6, h_load(2))
add(7, 21, w2_tr(0, 0)); add(7, 40, w2_tr(0, 1))
add(7, 10, w2_dma(1, 0)); add(7, 16, w2_dma(1, 1)); add(7, 27, w2_dma(2, 0)); add(7, 34, w2_dma(2, 1))
for n in range(NK2):
    t = T0 + n
    add(t, 20, f2_mm(n, 0))
    if n + 1 < NK2: add(t, 34, w2_tr(n+1, 0))
    add(t, 44, f2_mm(n, 1))
    if n + 1 < NK2: add(t, 45, w2_tr(n+1, 1))
    if n + 3 < NK2:
        add(t, 46, h_load(n+3))
        add(t, 27, [("WL", f"tr_{n}")] + w2_dma(n+3, 0)); add(t+1, 3, w2_dma(n+3, 1))
if OPT.get("nof2", 0):
    for t in range(6, NSTEP): extra[t] = {}
if OPT.get("astamps", 0):
    for k_, t in enumerate((1, 2, 3, 4, 5, 6, 7, 8) if OPT.get("astamps") == 2 else (2, 5, 8, 12, 16, 20, 24, 28)): add(t, 0, [("F", (lambda k_=k_: stamp(k_)))])
PW = 2
PRIO = OPT.get("prio", 2)
if PRIO == 1:
    for t in range(0, NSTEP, PW): add(t, 1, [("I", f"s_setprio {3 - (t // PW) % 4}")])
elif PRIO == 2:
    for t, p_ in ((0,3),(2,2),(4,1),(6,0),(8,3),(12,2),(16,1),(20,0),(24,3),(26,2),(28,1),(30,0)): add(t, 1, [("I", f"s_setprio {p_}")])
elif PRIO == 3:
    def yp():
        L = newlabel("yp"); I(f"s_cmp_lt_u32 s{sW}, 4"); I(f"s_cbranch_scc1 {L}"); I("s_setprio 1"); a.label(L)
    add(0, 1, [("F", yp)])
for t in ((7, 15, 23) if OPT.get("bar15", 0) else (7, 23)): add(t, 8, [("B",)])
for i in range(8): add(23 + (i+1)//2, 30 if i % 2 == 0 else 10, wo_dma(i))

def emit(L):
    for e in L:
        if e[0] == "I": I(e[1], tag=e[2] if len(e) > 2 else None)
        elif e[0] == "WV": a.wait_vm_tag(e[1])
        elif e[0] == "WL": a.wait_lg_tag(e[1])
        elif e[0] == "F": e[1]()
        elif e[0] == "B": a.barrier()
P4FLAG[0] = True
for t in range(NSTEP):
    valu = blk(SA, 0) + blk(SA, 1) + blk(SB, 0) + blk(SB, 1)
    ins = {}
    ins[2] = ([("I", mm(OB, V2, SB+8, OB))] if t > 0 else []) + [("I", rdV(V2, 2*t+1))]
    ins[9] = [("I", mm(SB, KF, QB, CB))] + ([("I", rdK(t+1))] if t+1 < NSTEP else [])
    ins[15] = [("I", mm(OA, V1, SA, OA if t > 0 else None))]
    ins[26] = [("I", mm(OA, V2, SA+8, OA))]
    ins[33] = [("I", mm(SA, KF, QA, CA))] if t+1 < NSTEP else []
    ins[39] = [("I", mm(OB, V1, SB, OB if t > 0 else None))] + ([("I", rdV(V1, 2*t+2))] if t+1 < NSTEP else [])
    for p_, L in extra[t].items():
        ins.setdefault(p_, []); ins[p_] = ins[p_] + L
    for i, v in enumerate(valu):
        if i in ins: emit(ins[i])
        I(v)
I(mm(OB, V2, SB+8, OB))
I("s_setprio 0")

L_k1 = newlabel("k1"); L_kj = newlabel("kj")
I(f"v_add_u32 v24, s{sT0}, v2")
I(f"s_xor_b32 s9, s{sW}, 4"); I("s_lshl_b32 s10, s9, 11"); I(f"s_add_u32 s10, s10, {W2R}"); I("v_add_u32 v25, s10, v2")
I(f"s_lshl_b32 s9, s9, 8"); I(f"s_add_u32 s9, s9, {QX}"); I("v_lshl_add_u32 v29, v1, 2, s9")
I(f"s_lshl_b32 s9, s{sW}, 8"); I(f"s_add_u32 s9, s9, {QX}"); I("v_lshl_add_u32 v28, v1, 2, s9")
a.wait_vm_tag("wo")
stamp(8)
I(f"s_cmp_lg_u32 s{sKH}, 0"); I(f"s_cbranch_scc1 {L_k1}")
hs = a.save()
for q in range(2): I(f"ds_write_b128 v24, {vr(OB+4*q,4)} offset:{q*1024}")
I(f"ds_write_b32 v28, v{OB+8}")
I(f"s_branch {L_kj}")
a.label(L_k1); a.restore(hs)
for q in range(2): I(f"ds_write_b128 v24, {vr(OA+4*q,4)} offset:{q*1024}")
I(f"ds_write_b32 v28, v{OA+8}")
for i in range(9): I(f"v_mov_b32 v{OA+i}, v{OB+i}")
a.label(L_kj); a.flush_state(2)
a.barrier()
for q in range(2): I(f"ds_read_b128 {vr(OB+4*q,4)}, v25 offset:{q*1024}")
I(f"ds_read_b32 v{OB+8}, v29")
WOF = 32
sel4(9, sKQ, WOREG)
I(f"v_lshl_add_u32 v26, v{vHH}, 8, v{vLP}"); I("v_add_u32 v26, s9, v26")
for i in range(9): I(f"v_add_f32 v{OA+i}, v{OA+i}, v{OB+i}")
I(f"v_rcp_f32 v{OA+8}, v{OA+8}")
for p in range(4): I(f"v_pk_mul_f32 {vr(OA+2*p,2)}, {vr(OA+2*p,2)}, {vr(OA+8,2)} op_sel_hi:[1,0]")
for p in range(4): I(f"v_cvt_pk_bf16_f32 v{OB+p}, v{OA+2*p}, v{OA+2*p+1}")
I(f"buffer_store_dwordx4 {vr(OB,4)}, v2, {srd(SO)}, s{sOSLOT} offen sc1")
stamp(9)
for hd in range(8):
    for nt in range(2):
        I(f"ds_read_b64_tr_b16 {vr(WOF+8*hd+4*nt,2)}, v26 offset:{hd*2048 + nt*512}")
        I(f"ds_read_b64_tr_b16 {vr(WOF+8*hd+4*nt+2,2)}, v26 offset:{hd*2048 + nt*512 + 1024}")
XB = 240
for d in range(4):
    I(f"v_lshlrev_b32 v{XB+2*d}, 16, v{XRES+d}"); I(f"v_and_b32 v{XB+1+2*d}, 0xffff0000, v{XRES+d}")
    I(f"v_lshlrev_b32 v{XB+8+2*d}, 16, v{BB2+d}"); I(f"v_and_b32 v{XB+9+2*d}, 0xffff0000, v{BB2+d}")
for p in range(4): I(f"v_pk_add_f32 {vr(XB+2*p,2)}, {vr(XB+2*p,2)}, {vr(XB+8+2*p,2)}")
AREA = [24576, VL + 48*2*VS, None]
def area_addr(dst, j, wreg):
    I(f"s_lshl_b32 s10, {wreg}, 11")
    if j < 2: I(f"s_add_u32 s10, s10, {AREA[j]}")
    else:
        I(f"s_cmp_ge_u32 {wreg}, 4"); I("s_cselect_b32 s11, 49152, 0"); I("s_add_u32 s10, s10, s11")
    I(f"v_add_u32 v{dst}, s10, v2")
for dl in range(1, 4):
    I(f"s_add_u32 s9, s{sW}, {2*dl}"); I("s_and_b32 s9, s9, 7"); area_addr(12 + dl, dl - 1, "s9")
    area_addr(16 + dl, dl - 1, f"s{sW}")
OF = 96
I(f"s_lshl_b32 s26, s{sKQ}, 14"); I(f"s_lshl_b32 s10, s{sTT}, 10"); I("s_add_u32 s26, s26, s10")
for k_ in range(1, 4): I(f"v_add_u32 v{3+k_}, {k_*4096}, v2")
def oload():
    for hd in range(8):
        ad = "v2" if hd < 2 else f"v{3 + hd//2}"
        I(f"buffer_load_dwordx4 {vr(OF+4*hd,4)}, {ad}, {srd(SO)}, s26 offen offset:{(hd%2)*2048} sc1")
stamp(10)
L_orep = newlabel("orep"); L_ook = newlabel("ook")
FB = 128
I(f"s_mov_b32 s{sCNT}, 0x4000")
a.label(L_orep); a.vm = []
oload()
for hd in range(8):
    o_ = OF + 4*hd
    for nt in range(2):
        I(mm(FB+16*nt, WOF+8*hd+4*nt, o_, ACC2+16*nt if hd == 0 else FB+16*nt))
    if hd == 0:
        I(f"v_max3_u32 v8, v{o_}, v{o_+1}, v{o_+2}"); I(f"v_mov_b32 v9, v{o_+3}")
    else:
        I(f"v_max3_u32 v8, v8, v{o_}, v{o_+1}"); I(f"v_max3_u32 v9, v9, v{o_+2}, v{o_+3}")
I("v_max_u32 v8, v8, v9")
I("v_cmp_eq_u32 vcc, -1, v8")
I("s_nop 4")
I(f"s_cbranch_vccz {L_ook}")
I("s_nop 15")
I(f"s_sub_u32 s{sCNT}, s{sCNT}, 1"); I(f"s_cmp_lg_u32 s{sCNT}, 0"); I(f"s_cbranch_scc1 {L_orep}")
a.label(L_ook)
stamp(11)
FA = 160
L_j = newlabel("rsj"); Ls = [newlabel(f"rs{k_}") for k_ in range(4)]
for k_ in range(1, 4):
    I(f"s_cmp_eq_u32 s{sKQ}, {k_}"); I(f"s_cbranch_scc1 {Ls[k_]}")
hs = a.save()
for k_ in range(4):
    a.label(Ls[k_]); a.restore(hs)
    for dl in range(1, 4):
        ch = (k_ + dl) % 4
        for q in range(2): I(f"ds_write_b128 v{12+dl}, {vr(FB+8*ch+4*q,4)} offset:{q*1024}")
    for p in range(4): I(f"v_pk_mov_b32 {vr(FA+2*p,2)}, {vr(FB+8*k_+2*p,2)}, {vr(FB+8*k_+2*p,2)} op_sel:[0,1]")
    if k_ < 3: I(f"s_branch {L_j}")
a.label(L_j); a.flush_state(2)
a.barrier()
for dl in range(1, 4):
    for q in range(2): I(f"ds_read_b128 {vr(32+8*(dl-1)+4*q,4)}, v{16+dl} offset:{q*1024}")
for p in range(4): I(f"v_pk_add_f32 {vr(FA+2*p,2)}, {vr(FA+2*p,2)}, {vr(32+2*p,2)}")
for p in range(4): I(f"v_pk_add_f32 {vr(40+2*p,2)}, {vr(40+2*p,2)}, {vr(48+2*p,2)}")
for p in range(4): I(f"v_pk_add_f32 {vr(FA+2*p,2)}, {vr(FA+2*p,2)}, {vr(40+2*p,2)}")
for i in range(4): I(f"v_permlane32_swap_b32 v{FA+i}, v{FA+4+i}")
for p in range(4): I(f"v_pk_add_f32 {vr(FA+2*p,2)}, {vr(FA+2*p,2)}, {vr(XB+2*p,2)}")
for p in range(4): I(f"v_cvt_pk_bf16_f32 v{56+p}, v{FA+2*p}, v{FA+2*p+1}")
I(f"buffer_store_dwordx4 v[56:59], v{vOUT}, {srd(SOUT)}, 0 offen " + ["", "sc1", "sc0 sc1", "nt", "sc1 nt"][OPT.get("ost", 0)])
stamp(12)
if OPT["stamps"] or OPT.get("dbg", 0): a.waitcnt(vm=0)
stamp(13)
a.raw("L_end:")
a.raw("    s_endpgm")

ref = open(f"cdna_kernels/{NAME}.s.ref").read()
head = ref[:ref.index("; Override launch geometry")]
out = head + f"""; Generated by gen/gen.py (hand-written generator).  One workgroup of 8 waves per CU.
; @launch grid=(256,1,1) block=(512,1,1) lds={LDS_BYTES}
.amdgcn_target "amdgcn-amd-amdhsa--gfx950"
.text
.globl {NAME}_kernel
.p2align 8
.type {NAME}_kernel,@function
{NAME}_kernel:
""" + a.text() + f""".section .rodata,"a"
.p2align 6
.amdhsa_kernel {NAME}_kernel
  .amdhsa_next_free_vgpr 256
  .amdhsa_next_free_sgpr 102
  .amdhsa_accum_offset 256
  .amdhsa_group_segment_fixed_size 0
  .amdhsa_kernarg_size 104
  .amdhsa_user_sgpr_count 2
  .amdhsa_user_sgpr_kernarg_segment_ptr 1
  .amdhsa_system_sgpr_workgroup_id_x 1
.end_amdhsa_kernel
"""
path = OPT_OUT if (OPT_OUT := next((x for x in sys.argv[1:] if x.endswith(".s")), None)) else f"cdna_kernels/{NAME}.s"
open(path, "w").write(out)
print("wrote", path, "lines", len(a.out), "nops", a.nops)
```

```python
import sys, math, struct
sys.path.insert(0, "gen")
from asmlib import Asm

NAME = "parallel_sum__grouped_kv_mqa__dense_activation_gelu__prompt"
OPT = dict(stop=99, stamps=False)
for a_ in sys.argv[1:]:
    if "=" in a_:
        k_, v_ = a_.split("="); OPT[k_] = int(v_)

def fbits(x): return "0x%08x" % struct.unpack("<I", struct.pack("<f", x))[0]

WS_EPOCH = 0
WS_KVFLAG = 0x1000
WS_HFLAG = 0x2000
WS_K = 0x10000
WS_V = 0x20000
WS_H = 0x100000
H_STRIDE = 0x2C000
WS_O = 0x800000
WS_DBG = 0xA00000
WS_SIZE = 0x1000000
XC = 0; XCS = 1040
RING2 = 66560
KL = 0; VL = 65536; VS = 272
QX = 135168
W2R = 143360
MISC = 159744
RSTD = MISC; KMAX = MISC + 256
LDS_BYTES = 163840
SX, SW, SKVW, SWS, SH, SO, SW2, SWO, SB1, SB2, SOUT = 44, 48, 52, 56, 60, 64, 68, 72, 76, 80, 84
SB2 = SB1
def srd(n): return f"s[{n}:{n+3}]"
sW, sG, sC, sTAG, sKSTR, sOFF, sT0, sT1, sT2, sTILE = 3, 4, 5, 6, 7, 8, 16, 17, 18, 12
sONES, sSELLO, sSELHI, sCNT = 13, 14, 15, 42
sC0, sC1 = 88, 90
sTB, sKIND, sFT, sTT, sKH, sNT2, sTT2 = 92, 93, 94, 95, 96, 97, 98
sEX = 100

a = Asm(); I = a.I
def vr(b, n): return f"v[{b}:{b+n-1}]"
lblc = [0]
def newlabel(p):
    lblc[0] += 1
    return f"L_{p}_{lblc[0]}"

P4FLAG = [False]
DBGMAP = {3: 1, 7: 2, 8: 3, 9: 4, 11: 5, 13: 6, 0: 7}
def dbgstamp(slot, src=None):
    L = newlabel("dbg")
    a.waitcnt(lg=0)
    I(f"s_cmp_gt_u32 s{SDBG+2}, 0"); I(f"s_cbranch_scc0 {L}")
    st = a.save()
    if src is None:
        I("s_memrealtime s[100:101]"); a.waitcnt(lg=0)
        I("v_mov_b32 v3, s100")
    I(f"buffer_store_dword {src or 'v3'}, off, s[{SDBG}:{SDBG+3}], s42 offset:{4*slot}".replace("s42", "0"))
    a.label(L); a.restore(st)
SDBG = 80
def stamp(idx):
    if OPT.get("dbg", 0):
        if idx in DBGMAP and DBGREADY[0]: dbgstamp(DBGMAP[idx])
        return
    if not OPT["stamps"]: return
    if OPT.get("lite", 0) and idx not in (7, 8, 13): return
    if OPT.get("astamps", 0) and idx < 7 and not P4FLAG[0]: return
    a.waitcnt(lg=0)
    for k_, op in enumerate(("s_memtime", "s_memrealtime")):
        I(f"{op} s[100:101]")
        a.waitcnt(lg=0)
        I("v_mov_b32 v3, s100")
        I(f"s_lshl_b32 s100, s2, 3"); I(f"s_add_u32 s100, s100, s{sW}"); I("s_lshl_b32 s100, s100, 7")
        I(f"s_add_u32 s100, s100, {WS_DBG + 4*idx + 64*k_}")
        I(f"buffer_store_dword v3, off, {srd(SWS)}, s100")

DBGREADY = [False]
def mk_srd(n, lo, hi, nbytes):
    I(f"s_mov_b32 s{n}, s{lo}"); I(f"s_mov_b32 s{n+1}, s{hi}")
    I(f"s_mov_b32 s{n+2}, {nbytes}"); I(f"s_mov_b32 s{n+3}, 0x00020000")


NE_OLD = OPT.get("ne_old", 8)
T0 = OPT.get("t0", 8)
TBAR = OPT.get("tbar", 18)
NSLOT = 8
KVPOLL = OPT.get("kvpoll", 22)
NMU = MISC + 256; KMAX = MISC + 512; LCNT = MISC + 576; CSL = MISC + 1024
I("s_cmp_ge_u32 s2, 256")
I("s_cbranch_scc1 L_end")
if OPT["stamps"]:
    I("s_memrealtime s[26:27]"); I("s_memtime s[38:39]"); a.waitcnt(lg=0); I("s_mov_b32 s19, s26"); I("s_mov_b32 s101, s38")
    I("v_mov_b32 v126, s19"); I("v_mov_b32 v127, s101")
if OPT.get("dbg", 0):
    I("s_memrealtime s[26:27]"); a.waitcnt(lg=0); I("v_mov_b32 v126, s26")
I("s_load_dwordx16 s[16:31], s[0:1], 0")
I("s_load_dwordx8 s[32:39], s[0:1], 64")
I("s_load_dwordx2 s[40:41], s[0:1], 96")
I("v_lshrrev_b32 v3, 6, v0")
I("v_and_b32 v1, 63, v0")
I(f"v_readfirstlane_b32 s{sW}, v3")
I("v_lshlrev_b32 v2, 4, v1")
if OPT.get("map", 1) == 0:
    I("s_and_b32 s9, s2, 7"); I("s_lshl_b32 s9, s9, 2"); I("s_bfe_u32 s10, s2, 0x20003"); I(f"s_or_b32 s{sG}, s9, s10")
    I(f"s_lshr_b32 s{sC}, s2, 5")
else:
    I("s_bfe_u32 s9, s2, 0x20001"); I("s_lshl_b32 s9, s9, 3"); I("s_bfe_u32 s10, s2, 0x30003"); I(f"s_or_b32 s{sG}, s9, s10")
    I("s_and_b32 s9, s2, 1"); I("s_lshl_b32 s9, s9, 2"); I("s_lshr_b32 s10, s2, 6"); I(f"s_or_b32 s{sC}, s9, s10")
XR = 128; T = 64
I("v_lshrrev_b32 v4, 4, v1")
I("v_and_b32 v5, 15, v1")
I(f"s_lshl_b32 s9, s{sC}, 1"); I(f"s_add_u32 s9, s9, s{sW}"); I("s_and_b32 s9, s9, 7"); I("s_lshl_b32 s9, s9, 3")
I("v_add_u32 v20, s9, v4")
I("v_lshlrev_b32 v21, 10, v20"); I("v_lshl_add_u32 v21, v5, 4, v21")
I(f"s_lshl_b32 s9, s{sG}, 16"); I("s_add_u32 s10, s9, 4096")
I(f"s_mov_b32 s{SX+2}, {2048*1024}"); I(f"s_mov_b32 s{SX+3}, 0x00020000")
I(f"s_mov_b32 s{SX}, s16"); I(f"s_mov_b32 s{SX+1}, s17")
for k_ in range(2):
    for i in range(4):
        I(f"buffer_load_dwordx4 {vr(XR+16*k_+4*i,4)}, v21, {srd(SX)}, s{9+k_} offen offset:{i*256}")
if OPT.get("xbar", 0): I("s_barrier")
if OPT.get("cpf", 0):
    L_cp = newlabel("cpf")
    I(f"s_cmp_lg_u32 s{sW}, 7"); I(f"s_cbranch_scc1 {L_cp}")
    st = a.save()
    a.raw("    s_getpc_b64 s[88:89]"); a.raw("L_pcbase:")
    I("s_lshr_b32 s9, s2, 3"); I(f"s_mul_i32 s9, s9, {1024*OPT.get('cpf')}"); I("v_add_u32 v22, s9, v2")
    I("v_min_u32 v22, CODE_SPAN-16, v22")
    I("global_load_dwordx4 v[244:247], v22, s[88:89]")
    if OPT.get("cpf") == 2:
        I("v_add_u32 v22, 1024, v22"); I("v_min_u32 v22, CODE_SPAN-16, v22")
        I("global_load_dwordx4 v[248:251], v22, s[88:89]")
    a.label(L_cp); a.restore(st)
I(f"s_cmp_lt_u32 s{sC}, 4")
I("s_cselect_b32 s9, s20, s22"); I("s_cselect_b32 s10, s21, s23")
mk_srd(SKVW, 9, 10, 16384)
I(f"s_lshl_b32 s9, s{sW}, 11"); I(f"s_add_u32 m0, s9, {W2R}")
I("s_nop 0")
I(f"buffer_load_dwordx4 v2, {srd(SKVW)}, s9 offen lds", tag="x")
I(f"buffer_load_dwordx4 v2, {srd(SKVW)}, s9 offen offset:1024 lds", tag="x")
I(f"s_mov_b32 s{sONES}, 0x3f803f80")
I(f"s_mul_i32 s9, s{sC}, 5"); I(f"s_min_u32 s10, s{sC}, 3"); I("s_add_u32 s9, s9, s10")
I(f"s_add_u32 s9, s9, s{sW}"); I(f"s_sub_u32 s{sTILE}, s9, 2")
I(f"s_lshl_b32 s9, s{sC}, 1"); I(f"s_add_u32 s9, s9, s{sW}")
I(f"s_cmp_lt_u32 s{sW}, 2"); I(f"s_cselect_b32 s{sTILE}, s9, s{sTILE}")
I("s_mov_b32 s11, 2752"); I("s_cselect_b32 s11, 1024, s11")
I(f"s_mov_b32 s{SW+2}, {512*2752}"); I(f"s_cselect_b32 s{SW+2}, {512*1024}, s{SW+2}")
I(f"s_cselect_b32 s{SW}, s18, s28"); I(f"s_cselect_b32 s{SW+1}, s19, s29")
I(f"s_mov_b32 s{SW+3}, 0x00020000")
I(f"s_cmp_ge_u32 s{sC}, 3"); I("s_cselect_b32 s9, 1, 0"); I(f"s_cmp_eq_u32 s{sW}, 7"); I("s_cselect_b32 s9, s9, 0")
I("s_cmp_eq_u32 s9, 1"); I(f"s_cselect_b32 s{sTILE}, 63, s{sTILE}"); I(f"s_cselect_b32 s{SW+2}, 0, s{SW+2}")
if OPT.get("now", 0): I(f"s_mov_b32 s{SW+2}, 0")
I(f"s_lshl_b32 s{sKSTR}, s11, 4")
I("v_lshrrev_b32 v11, 2, v1")
I("v_mul_lo_u32 v11, v11, s11")
I("v_and_b32 v15, 3, v1")
I("v_lshl_add_u32 v11, v15, 4, v11")
I(f"s_lshl_b32 s9, s{sTILE}, 6")
I("v_add_u32 v11, s9, v11")
sWB = [26, 27, 38, 39]; sRING = 99; sQ = 19
if OPT.get("dbg", 0):
    I(f"s_lshl_b32 s9, s2, 3"); I(f"s_or_b32 s9, s9, s{sW}")
    I(f"s_cmp_eq_u32 s9, {133*8+4}"); I("s_cselect_b32 s10, 32, 0"); I("s_add_u32 s38, s38, s10"); I("s_addc_u32 s39, s39, 0")
    mk_srd(SDBG, 38, 39, 0); DBGREADY[0] = True
    I(f"s_cmp_eq_u32 s9, {133*8+4}"); I(f"s_cselect_b32 s{SDBG+2}, 32, 0"); I("s_cmp_eq_u32 s9, 0"); I(f"s_cselect_b32 s{SDBG+2}, 32, s{SDBG+2}")
    dbgstamp(0, "v126")
I(f"s_and_b32 s{sQ}, s{sG}, 3")
if OPT.get("noxor", 0): I(f"s_mov_b32 s{sQ}, 0")
I(f"s_lshl_b32 s10, s{sKSTR}, 3")
for b in range(4):
    I(f"s_xor_b32 s9, s{sQ}, {b}"); I(f"s_mul_i32 s{sWB[b]}, s9, s10")
VW = 17408; VE = VL + 3*VW
I(f"s_lshl_b32 s{sRING}, s{sW}, 13"); I(f"s_add_u32 s{sRING}, s{sRING}, {RING2 - 16384}")
I(f"s_cmp_eq_u32 s{sW}, 0"); I(f"s_cselect_b32 s{sRING}, {VE}, s{sRING}")
I(f"s_cmp_eq_u32 s{sW}, 1"); I(f"s_cselect_b32 s{sRING}, {VE + 8704}, s{sRING}")
def wslot(s): return (s % NSLOT)*1024
def wdma(s):
    I(f"s_add_u32 m0, s{sRING}, {wslot(s)}")
    if s % 8 == 0: I(f"s_mov_b32 s{sOFF}, s{sWB[s//8]}")
    else: I(f"s_add_u32 s{sOFF}, s{sOFF}, s{sKSTR}")
    I(f"buffer_load_dwordx4 v11, {srd(SW)}, s{sOFF} offen lds", tag=f"w_{s}")
NEARLY = OPT.get("nearly", 4)
for s in range(NEARLY): wdma(s)
mk_srd(SWS, 40, 41, WS_SIZE)
I(f"s_load_dword s{sTAG}, s[40:41], {WS_EPOCH}")
I(f"s_and_b32 s9, s{sC}, 3"); I(f"s_lshl_b32 s10, s{sG}, 2"); I(f"s_add_u32 s{sTB}, s9, s10"); I(f"s_lshr_b32 s{sKIND}, s{sC}, 2")
I(f"s_bfe_u32 s{sFT}, s{sW}, 0x10001"); I(f"s_and_b32 s{sTT}, s{sW}, 1"); I(f"s_lshr_b32 s{sKH}, s{sW}, 2")
I(f"s_lshl_b32 s9, s{sG}, 16"); I(f"s_add_u32 s9, s9, {WS_O}")
I("s_add_u32 s9, s40, s9"); I("s_addc_u32 s10, s41, 0")
mk_srd(SO, 9, 10, 65536)
sOSLOT = 43
I(f"s_lshl_b32 s9, s{sC}, 2"); I(f"s_lshl_b32 s10, s{sFT}, 1"); I("s_add_u32 s9, s9, s10"); I(f"s_add_u32 s9, s9, s{sKH}")
I("s_lshl_b32 s9, s9, 1"); I(f"s_add_u32 s9, s9, s{sTT}"); I(f"s_lshl_b32 s{sOSLOT}, s9, 10")
if OPT["stamps"]:
    I(f"s_lshl_b32 s100, s2, 3"); I(f"s_add_u32 s100, s100, s{sW}"); I("s_lshl_b32 s100, s100, 7")
    I(f"s_add_u32 s100, s100, {WS_DBG + 4*15}")
    I(f"buffer_store_dword v127, off, {srd(SWS)}, s100")
    I(f"buffer_store_dword v126, off, {srd(SWS)}, s100 offset:64")
I(f"s_mul_i32 s9, s{sG}, {H_STRIDE}"); I(f"s_add_u32 s9, s9, {WS_H}")
I("s_add_u32 s9, s40, s9"); I("s_addc_u32 s10, s41, 0")
mk_srd(SH, 9, 10, 86*2048)
ACC = 96
I("v_and_b32 v15, 3, v1"); I("v_lshlrev_b32 v13, 3, v15")
I("v_bfe_u32 v15, v1, 2, 2"); I("v_lshl_add_u32 v13, v15, 6, v13")
I("v_bfe_u32 v15, v1, 4, 1"); I("v_lshl_add_u32 v13, v15, 5, v13")
I("v_mov_b32 v17, v13")
I("v_lshrrev_b32 v16, 5, v1")
I("v_lshl_add_u32 v13, v16, 9, v13"); I(f"v_add_u32 v13, s{sRING}, v13")
I("v_and_b32 v18, 31, v1")
I(f"v_mul_u32_u24 v14, {XCS}, v18"); I("v_lshl_add_u32 v14, v16, 4, v14")
vB = [6, 7, 8, 9]
for b in range(4):
    I(f"s_xor_b32 s9, s{sQ}, {b}"); I("s_lshl_b32 s9, s9, 8"); I(f"v_add_u32 v{vB[b]}, s9, v14")
SEL = 88; CSA = 92
I("v_xor_b32 v15, v4, v1"); I("v_and_b32 v15, 1, v15"); I("v_cmp_eq_u32 vcc, 0, v15"); I(f"v_mov_b32 v15, s{sONES}")
for i in range(4): I(f"v_cndmask_b32 v{SEL+i}, 0, v15, vcc")
stamp(0)
I(f"v_mul_u32_u24 v21, {XCS}, v20"); I("v_lshl_add_u32 v21, v5, 4, v21")
I("v_lshlrev_b32 v20, 2, v20"); I(f"v_add_u32 v20, {RSTD}, v20")
for k_ in range(2):
    X = XR + 16*k_; t = T + 8*k_
    for i in range(16):
        if i % 4 == 0: I(f"ds_write_b128 v21, {vr(X+i,4)} offset:{k_*4*XCS + (i//4)*256}")
        I(f"v_dot2_f32_bf16 v{t}, v{X+i}, s{sONES}, {'0' if i == 0 else f'v{t}'}")
        I(f"v_dot2_f32_bf16 v{t+2}, v{X+i}, v{X+i}, {'0' if i == 0 else f'v{t+2}'}")
for k_ in range(2):
    pass
regs = [[T, T+1], [T+2, T+3], [T+8, T+9], [T+10, T+11]]
for ro in (8, 4, 2, 1):
    for rr in regs:
        I(f"v_add_f32_dpp v{rr[1]}, v{rr[0]}, v{rr[0]} row_ror:{ro} row_mask:0xf bank_mask:0xf"); rr.reverse()
for k_ in range(2):
    t = T + 8*k_
    I(f"v_mul_f32 v{t+4}, {fbits(-1.0/512)}, v{t}")
    I(f"v_mul_f32 v{t+5}, {fbits(1.0/512)}, v{t+2}")
for k_ in range(2):
    t = T + 8*k_
    I(f"v_fma_f32 v{t+5}, -v{t+4}, v{t+4}, v{t+5}")
    I(f"ds_write_b32 v20, v{t+4} offset:{256 + 16*k_}")
    I(f"v_max_f32 v{t+5}, 0, v{t+5}")
    I(f"v_add_f32 v{t+5}, {fbits(1e-5)}, v{t+5}")
    I(f"v_rsq_f32 v{t+5}, v{t+5}")
for k_ in range(2): I(f"ds_write_b32 v20, v{T+8*k_+5} offset:{16*k_}")
stamp(5)
for s in range(NEARLY, NSLOT): wdma(s)
a.wait_vm_tag("x")
a.barrier()
I(f"s_mul_i32 s{sTAG}, s{sTAG}, 0x9E3779B1")
I(f"s_add_u32 s{sTAG}, s{sTAG}, 0x7F4A7C15")
stamp(3)
L_kv = newlabel("kv"); L_k = newlabel("kloop")
I(f"s_cmp_lg_u32 s{sW}, 0"); I(f"s_cbranch_scc1 {L_k}")
stB = a.save()
WR = 128
I("s_setprio 3")
L_kvV = newlabel("kvV"); L_kvpub = newlabel("kvpub")
I(f"s_and_b32 s9, s{sC}, 3"); I("s_lshl_b32 s9, s9, 4")
I("v_add_u32 v20, s9, v5")
I(f"v_mul_u32_u24 v21, {XCS}, v20")
I("v_lshl_add_u32 v21, v4, 4, v21")
I("v_lshrrev_b32 v22, 2, v5")
I("v_lshl_add_u32 v22, v4, 3, v22")
I("v_lshlrev_b32 v22, 5, v22")
I("v_and_b32 v15, 3, v1")
I("v_lshl_add_u32 v22, v15, 3, v22")
I(f"v_add_u32 v22, {W2R}, v22")
for s in range(16):
    I(f"ds_read_b128 {vr(WR+8*s,4)}, v21 offset:{s*64}")
    I(f"ds_read_b64_tr_b16 {vr(WR+8*s+4,2)}, v22 offset:{s*1024}")
    I(f"ds_read_b64_tr_b16 {vr(WR+8*s+6,2)}, v22 offset:{s*1024+128}")
for i in range(4): I(f"v_mov_b32 v{68+i}, -1")
for i in range(4): I(f"v_mov_b32 v{64+i}, s{sONES}")
I("v_add_u32 v23, 0x1000, v2")
I(f"s_lshl_b32 s9, s{sC}, 13")
for i in range(8):
    I(f"buffer_store_dwordx4 v[68:71], {'v2' if i < 4 else 'v23'}, {srd(SO)}, s9 offen offset:{(i%4)*1024} sc1")
KD = 72; KC = 76
def kv_mm(kind):
    for s in range(16):
        b = WR + 8*s
        x_, w_ = vr(b, 4), vr(b+4, 4)
        c_ = "0" if s == 0 else vr(KD, 4); cc = "0" if s == 0 else vr(KC, 4)
        I(f"v_mfma_f32_16x16x32_bf16 {vr(KD,4)}, {w_ if kind == 0 else x_}, {x_ if kind == 0 else w_}, {c_}")
        I(f"v_mfma_f32_16x16x32_bf16 {vr(KC,4)}, {w_ if kind == 0 else 'v[64:67]'}, {'v[64:67]' if kind == 0 else w_}, {cc}")
I("v_bfe_u32 v24, v1, 4, 1"); I("v_lshrrev_b32 v25, 5, v1")
I(f"s_cmp_lg_u32 s{sKIND}, 0")
I(f"s_cbranch_scc1 {L_kvV}")
st_kv = a.save()
I("v_lshlrev_b32 v26, 2, v20"); I(f"v_add_u32 v26, {RSTD}, v26")
I(f"s_lshr_b32 s9, s{sTB}, 1"); I("s_lshl_b32 s9, s9, 10"); I(f"s_and_b32 s10, s{sTB}, 1"); I("s_lshl_b32 s10, s10, 8")
I("s_add_u32 s9, s9, s10"); I(f"s_add_u32 s9, s9, {WS_K}")
I("v_lshlrev_b32 v24, 9, v24"); I("v_lshl_add_u32 v24, v5, 4, v24"); I("v_lshl_add_u32 v24, v25, 3, v24")
I("ds_read_b32 v27, v26"); I("ds_read_b32 v28, v26 offset:256")
kv_mm(0)
for r in range(4): I(f"v_fmac_f32 v{KD+r}, v28, v{KC+r}")
for r in range(4): I(f"v_mul_f32 v{KD+r}, v{KD+r}, v27")
I(f"v_cvt_pk_bf16_f32 v30, v{KD}, v{KD+1}"); I(f"v_cvt_pk_bf16_f32 v31, v{KD+2}, v{KD+3}")
I(f"buffer_store_dwordx2 v[30:31], v24, {srd(SWS)}, s9 offen sc1")
I("v_dot2_f32_bf16 v22, v30, v30, 0"); I("v_dot2_f32_bf16 v22, v31, v31, v22")
I("v_mov_b32 v23, v22"); I("v_permlane32_swap_b32 v22, v23"); I("v_add_f32 v22, v22, v23")
I("v_mov_b32 v23, v22"); I("v_permlane16_swap_b32 v22, v23"); I("v_add_f32 v22, v22, v23")
for ro in (8, 4, 2, 1):
    I(f"v_max_f32_dpp v23, v22, v22 row_ror:{ro} row_mask:0xf bank_mask:0xf"); I("v_mov_b32 v22, v23")
I("v_mov_b32 v63, v22")
I(f"s_branch {L_kvpub}")
a.label(L_kvV); a.restore(st_kv)
I(f"s_and_b32 s9, s{sC}, 3"); I("s_lshl_b32 s9, s9, 6"); I(f"s_add_u32 s9, s9, {RSTD}")
I("v_lshl_add_u32 v26, v4, 4, s9")
I(f"s_lshl_b32 s9, s{sTB}, 9"); I(f"s_add_u32 s9, s9, {WS_V}")
I("v_lshlrev_b32 v24, 8, v24"); I("v_lshl_add_u32 v24, v5, 4, v24"); I("v_lshl_add_u32 v24, v25, 3, v24")
I("ds_read_b128 v[80:83], v26"); I("ds_read_b128 v[84:87], v26 offset:256")
kv_mm(1)
for r in range(4): I(f"v_fmac_f32 v{KD+r}, v{84+r}, v{KC+r}")
for r in range(4): I(f"v_mul_f32 v{KD+r}, v{KD+r}, v{80+r}")
I(f"v_cvt_pk_bf16_f32 v30, v{KD}, v{KD+1}"); I(f"v_cvt_pk_bf16_f32 v31, v{KD+2}, v{KD+3}")
I(f"buffer_store_dwordx2 v[30:31], v24, {srd(SWS)}, s9 offen sc1")
I("v_mov_b32 v63, 0")
a.label(L_kvpub); a.flush_state(2)
I(f"v_mov_b32 v62, s{sTAG}")
I(f"s_lshl_b32 s9, s{sTB}, 1"); I(f"s_add_u32 s9, s9, s{sKIND}"); I("s_lshl_b32 s9, s9, 3"); I(f"s_add_u32 s9, s9, {WS_KVFLAG}")
a.force_wait(vm=0)
I("s_mov_b64 exec, 1")
I(f"buffer_store_dwordx2 v[62:63], off, {srd(SWS)}, s9 sc1")
I("s_mov_b64 exec, -1")
I("s_setprio 0")
stamp(1)
a.label(L_k); a.restore(stB); a.flush_state(3); a.lg = []
stamp(2)

NBUF = 3
AF = 128; BF = 140
def p2_readB(s):
    bb = BF + 8*(s % NBUF)
    I(f"ds_read_b128 {vr(bb,4)}, v{vB[s//8]} offset:{(s%8)*32}")
    I(f"ds_read_b128 {vr(bb+4,4)}, v{vB[s//8]} offset:{32*XCS + (s%8)*32}")
def p2_readA(s):
    ab = AF + 4*(s % NBUF)
    a.wait_vm_tag(f"w_{s}")
    I(f"ds_read_b64_tr_b16 {vr(ab,2)}, v13 offset:{wslot(s)}")
    I(f"ds_read_b64_tr_b16 {vr(ab+2,2)}, v13 offset:{wslot(s)+256}")
def p2_mma(s, tt):
    ab = AF + 4*(s % NBUF); bb = BF + 8*(s % NBUF)
    c_ = "0" if s == 0 else vr(ACC+16*tt, 16)
    I(f"v_mfma_f32_32x32x16_bf16 {vr(ACC+16*tt,16)}, {vr(ab,4)}, {vr(bb+4*tt,4)}, {c_}")
def p2_cs(s):
    ab = AF + 4*(s % NBUF)
    I(f"v_mfma_f32_16x16x32_bf16 {vr(CSA,4)}, {vr(ab,4)}, {vr(SEL,4)}, {'0' if s == 0 else vr(CSA,4)}")

def poll(load_fn, check_fn, name, sleep=2):
    L = newlabel(name); Ld = newlabel(name + "ok")
    I(f"s_mov_b32 s{sCNT}, 0x4000")
    a.label(L)
    load_fn()
    a.force_wait(vm=0)
    check_fn()
    I("s_nop 4")
    I(f"s_cbranch_vccz {Ld}")
    if sleep: I(f"s_sleep {sleep}")
    I(f"s_sub_u32 s{sCNT}, s{sCNT}, 1")
    I(f"s_cmp_lg_u32 s{sCNT}, 0")
    I(f"s_cbranch_scc1 {L}")
    a.label(Ld)
KVS = 192
sR = 20
def kv_flag_load():
    I(f"s_add_u32 s{sR}, s{sC}, s{sG}"); I(f"s_and_b32 s{sR}, s{sR}, 7"); I(f"s_xor_b32 s{sR}, s{sR}, s{sW}")
    I("v_bfe_u32 v19, v1, 2, 1"); I("v_lshlrev_b32 v19, 10, v19")
    I("v_bfe_u32 v56, v1, 3, 2"); I("v_lshl_add_u32 v19, v56, 8, v19")
    I("v_and_b32 v56, 3, v1"); I("v_lshl_add_u32 v19, v56, 3, v19")
    I(f"s_lshl_b32 s21, s{sR}, 5"); I(f"s_add_u32 s21, s21, {WS_KVFLAG}")
    I(f"buffer_load_dwordx2 v[60:61], v19, {srd(SWS)}, s21 offen sc1")
def kv_fetch():
    L = newlabel("kvok")
    I(f"v_cmp_ne_u32 vcc, s{sTAG}, v60")
    I("s_nop 4")
    I(f"s_cbranch_vccz {L}")
    st = a.save()
    poll(lambda: I(f"buffer_load_dwordx2 v[60:61], v19, {srd(SWS)}, s21 offen sc1"),
         lambda: I(f"v_cmp_ne_u32 vcc, s{sTAG}, v60"), "pkv")
    a.label(L); a.restore(st)
    I(f"s_lshl_b32 s9, s{sR}, 10"); I(f"s_add_u32 s23, s9, {WS_V}"); I(f"s_add_u32 s22, s9, {WS_K}")
    I("v_add_u32 v191, 0x8000, v2")
def kv_load(i, which):
    so = "s22" if which == 0 else "s23"
    I(f"buffer_load_dwordx4 {vr(KVS+8*i+4*which,4)}, {'v2' if i % 2 == 0 else 'v191'}, {srd(SWS)}, {so} offen sc1")
    if i % 2 == 1: I(f"s_add_u32 {so}, {so}, 8192")
def kv_publish(nyounger):
    L = newlabel("nopub")
    I(f"s_cmp_lg_u32 s{sW}, 0"); I(f"s_cbranch_scc1 {L}")
    st = a.save()
    a.raw(f"    s_waitcnt vmcnt({nyounger})")
    I(f"v_mov_b32 v62, s{sTAG}")
    I(f"s_lshl_b32 s9, s{sTB}, 1"); I(f"s_add_u32 s9, s9, s{sKIND}"); I("s_lshl_b32 s9, s9, 3"); I(f"s_add_u32 s9, s9, {WS_KVFLAG}")
    I("s_mov_b64 exec, 1")
    I(f"buffer_store_dwordx2 v[62:63], off, {srd(SWS)}, s9 sc1")
    I("s_mov_b64 exec, -1")
    a.label(L); a.restore(st)
L_skip2 = newlabel("skip2")
if OPT.get("skipd", 1):
    I(f"s_cmp_eq_u32 s{sTILE}, 63"); I(f"s_cbranch_scc1 {L_skip2}")
p2_readB(0); p2_readA(0); p2_readB(1); p2_readA(1)
mk_srd(SB1, 30, 31, 2752)
PUBK = OPT.get("pubk", 3)
for s in range(32):
    p2_mma(s, 0)
    PX = OPT.get("p2x", 0)
    if s + NSLOT < 32 and not PX & 2: wdma(s + NSLOT)
    if not PX & 4: p2_cs(s)
    if s + 2 < 32 and not PX & 1: p2_readB(s + 2)
    p2_mma(s, 1)
    if s + 2 < 32: p2_readA(s + 2)
    if s == 16:
        I(f"s_lshl_b32 s9, s{sTILE}, 6")
        I("v_lshl_add_u32 v10, v16, 3, s9")
        for q in range(4):
            I(f"buffer_load_dwordx2 {vr(24+2*q,2)}, v10, {srd(SB1)}, 0 offen offset:{16*q}")
    if s == 28:
        I("v_lshlrev_b32 v10, 2, v18"); I(f"v_add_u32 v10, {RSTD}, v10")
        for tt in range(2):
            I(f"ds_read_b32 v{20+2*tt}, v10 offset:{128*tt}"); I(f"ds_read_b32 v{64+2*tt}, v10 offset:{256 + 128*tt}")
stamp(4)
I(f"s_lshl_b32 s11, s{sW}, 7"); I(f"s_add_u32 s11, s11, {CSL}")
I("v_lshlrev_b32 v10, 6, v5"); I("v_lshl_add_u32 v10, v4, 4, v10"); I("v_add_u32 v10, s11, v10")
I("v_cmp_gt_u32 vcc, 2, v5")
I(f"s_and_saveexec_b64 s[26:27], vcc")
I(f"ds_write_b128 v10, {vr(CSA,4)}")
I("s_mov_b64 exec, s[26:27]")
I("v_lshl_add_u32 v10, v16, 4, s11")
CS = 72
for q in range(4): I(f"ds_read_b128 {vr(CS+4*q,4)}, v10 offset:{32*q}")
L_epf = newlabel("epffn"); L_epdone = newlabel("epdone")
I(f"s_cmp_ge_u32 s{sW}, 2")
I(f"s_cbranch_scc1 {L_epf}")
st_ep = a.save()
if OPT.get("qfirst", 1):
    QORDER = ("poll", "math")
else:
    QORDER = ("math", "poll")
def q_math():
    QS = 0.25 * math.log2(math.e)
    I(f"v_mul_f32 v20, {fbits(QS)}, v20"); I(f"v_mul_f32 v22, {fbits(QS)}, v22")
    I(f"s_lshl_b32 s9, s{sW}, 12"); I(f"s_add_u32 s9, s9, {QX}")
    I("v_add_u32 v59, s9, v2")
    for tt in range(2):
        rs = 20 + 2*tt; nm = 64 + 2*tt
        for p in range(8):
            r = ACC + 16*tt + 2*p
            I(f"v_pk_fma_f32 {vr(r,2)}, {vr(CS+2*p,2)}, {vr(nm,2)}, {vr(r,2)} op_sel_hi:[1,0,1]")
        for p in range(8):
            r = ACC + 16*tt + 2*p
            I(f"v_pk_mul_f32 {vr(r,2)}, {vr(r,2)}, {vr(rs,2)} op_sel_hi:[1,0]")
        for p in range(8):
            r = ACC + 16*tt + 2*p
            I(f"v_cvt_pk_bf16_f32 v{32+8*tt+p}, v{r}, v{r+1}")
        for x in range(2):
            I(f"ds_write_b128 v59, {vr(32+8*tt+4*x,4)} offset:{(tt*2+x)*1024}")
def q_poll():
    I("v_lshlrev_b32 v19, 5, v1")
    def all_flags():
        I(f"buffer_load_dwordx4 v[48:51], v19, {srd(SWS)}, 0 offen offset:{WS_KVFLAG - 16}".replace(f"offset:{WS_KVFLAG - 16}", "") .replace(", 0 offen", ", s21 offen") + "sc1")
        I(f"buffer_load_dwordx4 v[52:55], v19, {srd(SWS)}, s21 offen offset:16 sc1")
    def all_check():
        for r_ in (48, 50, 52, 54): I(f"v_xor_b32 v{r_}, s{sTAG}, v{r_}")
        I("v_or3_b32 v48, v48, v50, v52"); I("v_or_b32 v48, v48, v54"); I("v_cmp_ne_u32 vcc, 0, v48")
    I(f"s_mov_b32 s21, {WS_KVFLAG}")
    poll(all_flags, all_check, "pkv", sleep=OPT.get("kvsleep", 4))
    I(f"s_lshl_b32 s9, s{sW}, 15"); I(f"s_add_u32 s10, s9, {WS_V}"); I(f"s_add_u32 s9, s9, {WS_K}")
    I("v_add_u32 v56, 0x1000, v2")
    for i in range(8):
        I(f"buffer_load_dwordx4 {vr(KVS+4*i,4)}, {'v2' if i < 4 else 'v56'}, {srd(SWS)}, s9 offen offset:{(i%4)*1024} sc1")
        I(f"buffer_load_dwordx4 {vr(KVS+32+4*i,4)}, {'v2' if i < 4 else 'v56'}, {srd(SWS)}, s10 offen offset:{(i%4)*1024} sc1")
for o_ in QORDER: (q_math if o_ == "math" else q_poll)()
I("v_max3_f32 v61, v49, v51, v53"); I("v_max_f32 v61, v61, v55")
for ro in (8, 4, 2, 1):
    I(f"v_max_f32_dpp v60, v61, v61 row_ror:{ro} row_mask:0xf bank_mask:0xf"); I("v_mov_b32 v61, v60")
I("v_permlane16_swap_b32 v60, v61"); I("v_max_f32 v61, v60, v61"); I("v_mov_b32 v60, v61")
I("v_permlane32_swap_b32 v60, v61"); I("v_max_f32 v61, v60, v61")
CM = MISC + 2048
I(f"s_lshl_b32 s9, s{sW}, 10"); I(f"s_add_u32 s9, s9, {CM}"); I("v_lshl_add_u32 v60, v1, 2, s9")
for n_ in range(4):
    q = 32 + 4*n_; t = 48 + 2*n_
    I(f"v_dot2_f32_bf16 v{t}, v{q}, v{q}, 0")
    for i in range(1, 4): I(f"v_dot2_f32_bf16 v{t}, v{q+i}, v{q+i}, v{t}")
for n_ in range(4):
    t = 48 + 2*n_
    I(f"v_mov_b32 v{t+1}, v{t}"); I(f"v_permlane32_swap_b32 v{t}, v{t+1}"); I(f"v_add_f32 v{t}, v{t}, v{t+1}")
    I(f"v_mul_f32 v{t}, v{t}, v61"); I(f"v_sqrt_f32 v{t}, v{t}")
    I(f"ds_write_b32 v60, v{t} offset:{256*n_}")
I(f"s_lshl_b32 s11, s{sW}, 13"); I(f"s_add_u32 s11, s11, {W2R}"); I("v_add_u32 v56, s11, v2")
I(f"v_mul_u32_u24 v57, {VS}, v4"); I("v_lshl_add_u32 v57, v5, 4, v57"); I(f"v_add_u32 v57, s{sRING}, v57")
I(f"v_mul_u32_u24 v58, {VS}, v18"); I(f"v_add_u32 v58, s{sRING}, v58")
for i in range(4): I(f"v_mov_b32 v{64+i}, s{sONES}")
I("ds_write_b128 v58, v[64:67] offset:256")
for i in range(8):
    I(f"ds_write_b128 v56, {vr(KVS+4*i,4)} offset:{i*1024}")
    I(f"ds_write_b128 v57, {vr(KVS+32+4*i,4)} offset:{i*4*VS}")
I(f"s_branch {L_epdone}")
a.label(L_epf); a.restore(st_ep)
C0 = -2.0 * math.sqrt(2.0/math.pi) * math.log2(math.e)
C1 = C0 * 0.044715
I(f"s_mov_b32 s{sC1}, {fbits(C1)}"); I(f"s_mov_b32 s{sC1+1}, {fbits(C1)}")
B1 = 32
for q in range(4):
    for d in range(2):
        I(f"v_lshlrev_b32 v{B1+4*q+2*d}, 16, v{24+2*q+d}")
        I(f"v_and_b32 v{B1+4*q+2*d+1}, 0xffff0000, v{24+2*q+d}")
I(f"v_mov_b32 v48, {fbits(C0)}"); I(f"v_mov_b32 v49, {fbits(C0)}")
I(f"s_lshl_b32 s9, s{sTILE}, 12")
def gelu8(r, rs, nm, cs, b, outr):
    t = 52
    for p in range(4): I(f"v_pk_fma_f32 {vr(r+2*p,2)}, {vr(cs+2*p,2)}, {vr(nm,2)}, {vr(r+2*p,2)} op_sel_hi:[1,0,1]")
    for p in range(4): I(f"v_pk_fma_f32 {vr(r+2*p,2)}, {vr(r+2*p,2)}, {vr(rs,2)}, {vr(b+2*p,2)} op_sel_hi:[1,0,1]")
    for p in range(4): I(f"v_pk_mul_f32 {vr(t+2*p,2)}, {vr(r+2*p,2)}, {vr(r+2*p,2)}")
    for p in range(4): I(f"v_pk_fma_f32 {vr(t+2*p,2)}, {vr(t+2*p,2)}, s[{sC1}:{sC1+1}], v[48:49]")
    for p in range(4): I(f"v_pk_mul_f32 {vr(t+2*p,2)}, {vr(t+2*p,2)}, {vr(r+2*p,2)}")
    for i in range(8): I(f"v_exp_f32 v{t+i}, v{t+i}")
    for p in range(4): I(f"v_pk_add_f32 {vr(t+2*p,2)}, {vr(t+2*p,2)}, 1.0 op_sel_hi:[1,0]")
    for i in range(8): I(f"v_rcp_f32 v{t+i}, v{t+i}")
    for p in range(4): I(f"v_pk_mul_f32 {vr(t+2*p,2)}, {vr(t+2*p,2)}, {vr(r+2*p,2)}")
    for p in range(4): I(f"v_cvt_pk_bf16_f32 v{outr+p}, v{t+2*p}, v{t+2*p+1}")
def gelu8s(r, rs, nm, cs, b, outr):
    t = 52
    for i in range(8): I(f"v_fmac_f32 v{r+i}, v{cs+i}, v{nm}")
    for i in range(8): I(f"v_fma_f32 v{r+i}, v{r+i}, v{rs}, v{b+i}")
    for i in range(8): I(f"v_mul_f32 v{t+i}, v{r+i}, v{r+i}")
    for i in range(8): I(f"v_fma_f32 v{t+i}, v{t+i}, s{sC1}, v48")
    for i in range(8): I(f"v_mul_f32 v{t+i}, v{t+i}, v{r+i}")
    for i in range(8): I(f"v_exp_f32 v{t+i}, v{t+i}")
    for i in range(8): I(f"v_add_f32 v{t+i}, 1.0, v{t+i}")
    for i in range(8): I(f"v_rcp_f32 v{t+i}, v{t+i}")
    for i in range(8): I(f"v_mul_f32 v{t+i}, v{t+i}, v{r+i}")
    for p in range(4): I(f"v_cvt_pk_bf16_f32 v{outr+p}, v{t+2*p}, v{t+2*p+1}")
def gelu_all(fn):
    for tt in range(2):
        for u in range(2):
            o_ = 128 + 4*(2*tt+u)
            fn(ACC+16*tt+8*u, 20+2*tt, 64+2*tt, CS+8*u, B1+8*u, o_)
            I(f"buffer_store_dwordx4 {vr(o_,4)}, v2, {srd(SH)}, s9 offen offset:{u*2048 + tt*1024} sc1", tag="hst")
GM = OPT.get("gelu", 0)
if GM == 0: gelu_all(gelu8)
elif GM == 1: gelu_all(gelu8s)
else:
    L_gy = newlabel("gy")
    I(f"s_cmp_ge_u32 s{sW}, 4"); I(f"s_cbranch_scc1 {L_gy}")
    st = a.save()
    gelu_all(gelu8s); I(f"s_branch {L_epdone}")
    a.label(L_gy); a.restore(st)
    gelu_all(gelu8)
a.label(L_epdone); a.flush_state(2); a.lg = []
a.label(L_skip2)
I(f"s_add_u32 s{sR}, s{sC}, s{sG}"); I(f"s_and_b32 s{sR}, s{sR}, 7"); I(f"s_xor_b32 s{sR}, s{sR}, s{sW}")
I(f"s_lshl_b32 s9, s{sR}, 10"); I(f"s_add_u32 s23, s9, {WS_V + 8192}"); I(f"s_add_u32 s22, s9, {WS_K + 8192}")
I("v_add_u32 v191, 0x8000, v2")
stamp(6)

vSK, vSV = 184, 186
I(f"s_lshl_b32 s11, s{sR}, 10"); I(f"v_add_u32 v{vSK}, s11, v2"); I(f"v_add_u32 v{vSK+1}, 0x8000, v{vSK}")
I(f"s_mul_i32 s11, s{sR}, {4*VS}"); I(f"s_add_u32 s11, s11, {VL}")
I(f"v_mul_u32_u24 v25, {VS}, v4"); I("v_lshl_add_u32 v25, v5, 4, v25"); I(f"v_add_u32 v{vSV}, s11, v25"); I(f"v_add_u32 v{vSV+1}, 8704, v{vSV}")
def kv_stage(i, which):
    if which == 0: return f"ds_write_b128 v{vSK + i % 2}, {vr(KVS+8*i,4)} offset:{(i//2)*8192}"
    return f"ds_write_b128 v{vSV + i % 2}, {vr(KVS+8*i+4,4)} offset:{(i//2)*VW}"
I(f"s_mul_i32 s11, s{sW}, {16*VS}"); I(f"s_add_u32 s11, s11, {VL + VW}")
I(f"v_mul_u32_u24 v183, {VS}, v5"); I("v_add_u32 v183, s11, v183")
for i in range(4): I(f"v_mov_b32 v{176+i}, s{sONES}")
QA, QB, KF, V1, V2 = 4, 8, 12, 16, 20
CA, CB, SA, SB, OA, OB = 32, 48, 64, 80, 96, 112
ACC2, A2, B2, XRES, BB2 = 192, 128, 136, 160, 164
vKA, vVA, vTR, vKE = 24, 25, 26, 29
vLP, vHH, vJJ = 188, 189, 190
I(f"v_mov_b32 v{vLP}, v17"); I(f"v_mov_b32 v{vHH}, v16"); I(f"v_mov_b32 v{vJJ}, v18")
I(f"s_and_b32 s11, s{sW}, 3"); I("s_lshl_b32 s9, s11, 11"); I(f"s_add_u32 s9, s9, {QX}"); I("v_add_u32 v165, s9, v2")
I("s_lshl_b32 s9, s11, 9"); I(f"s_add_u32 s9, s9, {MISC + 2048}"); I("v_lshl_add_u32 v166, v1, 2, s9")
I(f"s_lshl_b32 s11, s{sKH}, 15"); I(f"v_add_u32 v{vKA}, s11, v2")
I(f"s_lshl_b32 s11, s{sKH}, 13"); I(f"s_add_u32 s11, s11, {W2R}"); I(f"v_add_u32 v{vKE}, s11, v2")
I(f"s_mul_i32 s11, s{sKH}, 8704"); I(f"s_add_u32 s11, s11, {VL}")
I(f"v_min_u32 v{vVA}, 16, v18"); I(f"v_lshlrev_b32 v{vVA}, 4, v{vVA}")
I(f"v_mul_u32_u24 v167, {VS}, v16"); I(f"v_add3_u32 v{vVA}, v{vVA}, v167, s11")
if OPT.get("zrows", 1):
    I("v_and_b32 v167, 27, v18"); I("v_cmp_lt_u32 s[20:21], 16, v167")
    I("v_mov_b32 v167, 0x80000"); I(f"v_cndmask_b32 v{vVA}, v{vVA}, v167, s[20:21]")
def rdK(t): return f"ds_read_b128 {vr(KF,4)}, v{vKE if t < 8 else vKA} offset:{t*1024}"
def rdV(reg, u):
    t = u // 2
    return f"ds_read_b128 {vr(reg,4)}, v{vVA} offset:{(3 if t < 8 else t // 8)*VW + (t % 8)*4*VS + (u % 2)*2*VS}"
a.barrier()
I("ds_read_b32 v180, v166"); I("ds_read_b32 v182, v166 offset:256")
I(f"ds_read_b128 {vr(QA,4)}, v165"); I(rdK(0)); I(f"ds_read_b128 {vr(QB,4)}, v165 offset:1024")
I(f"ds_write_b128 v183, v[176:179] offset:256")
for i in range(16): I(f"v_sub_f32 v{CA+i}, 0, v180")
I("v_max_f32 v181, v180, v182")
I(f"v_cmp_nge_f32 vcc, {fbits(50.0)}, v181")
for i in range(16): I(f"v_sub_f32 v{CB+i}, 0, v182")
def publish_h():
    L = newlabel("nohf"); L2 = newlabel("noep")
    a.force_wait(vm=0)
    vm_keep = []
    I(f"v_mov_b32 v171, s{sTAG}")
    I("s_mov_b64 exec, 1")
    I(f"s_cmp_lt_u32 s{sW}, 2"); I(f"s_cbranch_scc1 {L}")
    I(f"s_lshl_b32 s9, s{sG}, 8"); I(f"s_lshl_b32 s10, s{sTILE}, 2"); I("s_add_u32 s9, s9, s10"); I(f"s_add_u32 s9, s9, {WS_HFLAG}")
    I(f"buffer_store_dword v171, off, {srd(SWS)}, s9 sc1")
    a.label(L)
    I("s_or_b32 s11, s2, s%d" % sW); I("s_cmp_lg_u32 s11, 0"); I(f"s_cbranch_scc1 {L2}")
    I(f"buffer_store_dword v171, off, {srd(SWS)}, 0 offset:{WS_EPOCH} sc1")
    a.label(L2)
    I("s_mov_b64 exec, -1")
    a.vm = vm_keep
L_fast = newlabel("fast"); L_slow = newlabel("slowloop")
I(f"s_cbranch_vccz {L_fast}")
st_f = a.save()
I(f"v_mov_b32 v176, {fbits(-3.0e38)}"); I(f"v_mov_b32 v178, {fbits(-3.0e38)}")
I(f"s_mov_b32 s10, {WS_K}"); I("s_mov_b32 s11, 64")
a.label(L_slow); a.flush_state(16)
I(f"buffer_load_dwordx4 {vr(V1,4)}, v2, {srd(SWS)}, s10 offen sc1")
a.force_wait(vm=0)
I(f"v_mfma_f32_32x32x16_bf16 {vr(SA,16)}, {vr(V1,4)}, {vr(QA,4)}, 0")
I(f"v_mfma_f32_32x32x16_bf16 {vr(SB,16)}, {vr(V1,4)}, {vr(QB,4)}, 0")
I("s_add_u32 s10, s10, 1024")
for (S_, t) in ((SA, 176), (SB, 178)):
    for i in range(8): I(f"v_max3_f32 v{t}, v{t}, v{S_+2*i}, v{S_+2*i+1}")
I("s_sub_u32 s11, s11, 1"); I("s_cmp_lg_u32 s11, 0"); I(f"s_cbranch_scc1 {L_slow}")
for t in (176, 178):
    I(f"v_mov_b32 v{t+1}, v{t}"); I(f"v_permlane32_swap_b32 v{t}, v{t+1}"); I(f"v_max_f32 v{t}, v{t}, v{t+1}")
for i in range(16):
    I(f"v_sub_f32 v{CA+i}, 0, v176"); I(f"v_sub_f32 v{CB+i}, 0, v178")
I("s_nop 15")
a.label(L_fast); a.restore(st_f)
stamp(7)

def mm(d, x, y, c):
    cs = "0" if c is None else vr(c, 16)
    return f"v_mfma_f32_32x32x16_bf16 {vr(d,16)}, {vr(x,4)}, {vr(y,4)}, {cs}"
def blk(S_, h):
    b = S_ + 8*h
    return [f"v_exp_f32 v{b+i}, v{b+i}" for i in range(8)] + [f"v_cvt_pk_bf16_f32 v{b+i}, v{b+2*i}, v{b+2*i+1}" for i in range(4)]
I(rdV(V1, 0))
I(mm(SA, KF, QA, CA))

vWD, vOUT, vTR2, vT = 30, 31, 27, 28
sW2OFF, sHOFF, sWOM, sWOOFF, sRB = sT1, sT2, sKSTR, sOFF, 21
sKQ = sNT2
WOREG = [8192, 32768 + 8192, VL + VW, VL + VW + 16384]
sRA2 = 38; vTR3 = 181
NK2 = 22
def sel4(dst, idx, tab):
    I(f"s_mov_b32 s{dst}, {tab[0]}")
    for k_ in range(1, 4):
        I(f"s_cmp_eq_u32 s{idx}, {k_}"); I(f"s_cselect_b32 s{dst}, {tab[k_]}, s{dst}")
def setup1():
    I(f"s_lshr_b32 s{sKQ}, s{sW}, 1")
    I(f"s_lshl_b32 s11, s{sW}, 11"); I(f"s_add_u32 s{sT0}, s11, {W2R}"); I(f"s_add_u32 s{sRB}, s11, {VL}")
    I(f"s_and_b32 s9, s{sW}, 3"); I("s_lshl_b32 s9, s9, 11"); I(f"s_lshl_b32 s10, s{sKH}, 15"); I(f"s_add_u32 s{sRA2}, s9, s10")
    I(f"v_lshl_add_u32 v{vT}, v{vHH}, 8, v{vLP}"); I(f"v_add_u32 v{vTR}, s{sRA2}, v{vT}"); I(f"v_add_u32 v{vTR2}, s{sRB}, v{vT}"); I(f"v_add_u32 v{vTR3}, s{sT0}, v{vT}")
    I(f"v_lshrrev_b32 v{vWD}, 2, v{vJJ}"); I(f"v_lshlrev_b32 v{vWD}, 10, v{vWD}")
    I(f"v_lshl_add_u32 v{vWD}, v{vHH}, 6, v{vWD}"); I(f"v_and_b32 v{vT}, 3, v1"); I(f"v_lshl_add_u32 v{vWD}, v{vT}, 4, v{vWD}")
    I(f"s_lshl_b32 s11, s{sC}, 7"); I(f"v_add_u32 v{vWD}, s11, v{vWD}")
    mk_srd(SW2, 32, 33, 1376*1024)
    I(f"s_mul_i32 s{sW2OFF}, s{sKQ}, {NK2*16384}"); I(f"s_mul_i32 s{sHOFF}, s{sKQ}, {NK2*2048}")
    I(f"s_lshl_b32 s9, s{sTT}, 10"); I(f"s_add_u32 s{sHOFF}, s{sHOFF}, s9")
    I(f"v_lshlrev_b32 v{vT}, 10, v1"); I(f"v_add_u32 v{vT}, s11, v{vT}")
    I(f"s_mul_i32 s9, s{sTT}, {176*1024}"); I(f"s_add_u32 s9, s9, s{sW2OFF}")
    for i in range(3 if OPT.get("touchw", 0) else 0):
        I(f"buffer_load_dword v{172+i}, v{vT}, {srd(SW2)}, s9 offen")
        if i < 2: I("s_add_u32 s9, s9, 65536")
def setup2():
    mk_srd(SWO, 24, 25, 512*1024)
    I(f"s_lshl_b32 s{sWOOFF}, s{sW}, 16")
    if OPT.get("touchw", 0): I(f"buffer_load_dword v175, v{vT}, {srd(SWO)}, s{sWOOFF} offen")
    sel4(sWOM, sKQ, WOREG)
    I(f"s_lshl_b32 s9, s{sTT}, 13"); I(f"s_add_u32 s{sWOM}, s{sWOM}, s9")
def setup3():
    mk_srd(SB2, 34, 35, 1024)
    mk_srd(SOUT, 36, 37, 2048*1024)
    I(f"s_lshl_b32 s11, s{sC}, 7"); I(f"s_lshl_b32 s9, s{sKQ}, 5"); I("s_add_u32 s11, s11, s9")
    I(f"v_lshl_add_u32 v{vT}, v{vHH}, 4, s11")
    I(f"buffer_load_dwordx4 {vr(BB2,4)}, v{vT}, {srd(SB2)}, 0 offen")
    I(f"s_lshl_b32 s9, s{sG}, 6"); I(f"s_lshl_b32 s10, s{sTT}, 5"); I("s_add_u32 s9, s9, s10")
    I(f"v_add_u32 v{vOUT}, s9, v{vJJ}"); I(f"v_lshl_add_u32 v{vOUT}, v{vOUT}, 10, v{vT}")
    I(f"buffer_load_dwordx4 {vr(XRES,4)}, v{vOUT}, {srd(SX)}, 0 offen")
    if OPT.get("touchout", 0): I(f"buffer_load_dword v174, v{vOUT}, {srd(SOUT)}, 0 offen")
def slot_base(n): return ((f"s{sRA2}", f"s{sRB}", f"s{sT0}")[n % 3], 0)
def w2_dma(n, hf):
    b, o = slot_base(n)
    return [("I", f"s_add_u32 m0, {b}, {o + hf*1024}"),
            ("I", f"s_add_u32 s{sW2OFF}, s{sW2OFF}, 8192") if (n, hf) != (0, 0) else ("I", "s_nop 0"),
            ("I", f"buffer_load_dwordx4 v{vWD}, {srd(SW2)}, s{sW2OFF} offen lds", f"w2_{n}")]
NB2 = 4
def h_load(n):
    b = B2 + 4*(n % NB2)
    L = [("I", f"buffer_load_dwordx4 {vr(b,4)}, v2, {srd(SH)}, s{sHOFF} offen offset:{(n % 2)*2048} sc1")]
    if n % 2: L.append(("I", f"s_add_u32 s{sHOFF}, s{sHOFF}, 4096"))
    return L
A2 = 128; B2 = 144
def w2_tr(n, nt):
    ab = A2 + 8*(n % 2) + 4*nt
    ad = (vTR, vTR2, vTR3)[n % 3]
    o = slot_base(n)[1] + nt*512
    return [("WV", f"w2_{n}"),
            ("I", f"ds_read_b64_tr_b16 {vr(ab,2)}, v{ad} offset:{o}", f"tr_{n}"),
            ("I", f"ds_read_b64_tr_b16 {vr(ab+2,2)}, v{ad} offset:{o+1024}", f"tr_{n}")]
def f2_mm(n, nt):
    d = ACC2 + 16*nt
    return [("I", mm(d, A2+8*(n % 2)+4*nt, B2+4*(n % NB2), None if n == 0 else d))]
def hpoll():
    I(f"s_mul_i32 s9, s{sKQ}, 11")
    I(f"v_min_u32 v{vT}, 10, v1"); I(f"v_add_u32 v{vT}, s9, v{vT}"); I(f"v_min_u32 v{vT}, 42, v{vT}"); I(f"v_lshlrev_b32 v{vT}, 2, v{vT}")
    I(f"s_lshl_b32 s27, s{sG}, 8"); I(f"s_add_u32 s27, s27, {WS_HFLAG}")
    I(f"buffer_load_dword v171, v{vT}, {srd(SWS)}, s27 offen sc1")
def hcheck():
    L = newlabel("hok")
    I(f"v_cmp_ne_u32 vcc, s{sTAG}, v171")
    I("s_nop 4")
    I(f"s_cbranch_vccz {L}")
    st = a.save()
    poll(lambda: I(f"buffer_load_dword v171, v{vT}, {srd(SWS)}, s27 offen sc1"),
         lambda: I(f"v_cmp_ne_u32 vcc, s{sTAG}, v171"), "ph")
    a.label(L); a.restore(st)
def wo_dma(i):
    return [("I", f"s_add_u32 m0, s{sWOM}, {i*1024}"),
            ("I", f"s_add_u32 s{sWOOFF}, s{sWOOFF}, 8192") if i else ("I", "s_nop 0"),
            ("I", f"buffer_load_dwordx4 v{vWD}, {srd(SWO)}, s{sWOOFF} offen lds", "wo")]
NSTEP = 32
extra = {t: {} for t in range(NSTEP + 1)}
def add(t, pos, L): extra[t].setdefault(pos, []).extend(L)
add(0, 3, [("F", publish_h)])
add(1, 20, [("F", setup1)])
add(1, 44, [("F", setup2)])
add(2, 44, [("F", setup3)])
for n_ in range(12):
    add(n_ // 4, (4, 16, 27, 40)[n_ % 4], [("F", (lambda n_=n_: kv_load(2 + n_ // 2, n_ % 2)))])
    if n_ < 8: add(3 + n_ // 2, (10, 45)[n_ % 2], [("I", kv_stage(2 + n_ // 2, n_ % 2))])
    else: add(8 + (n_ - 8) // 2, (10, 40)[n_ % 2], [("I", kv_stage(2 + n_ // 2, n_ % 2))])
T0 = 8
add(4, 30, [("F", hpoll)])
add(5, 6, w2_dma(0, 0)); add(5, 30, w2_dma(0, 1))
add(6, 6, [("F", hcheck)])
add(6, 7, h_load(0)); add(6, 30, h_load(1)); add(7, 6, h_load(2))
add(7, 21, w2_tr(0, 0)); add(7, 40, w2_tr(0, 1))
add(7, 10, w2_dma(1, 0)); add(7, 16, w2_dma(1, 1)); add(7, 27, w2_dma(2, 0)); add(7, 34, w2_dma(2, 1))
for n in range(NK2):
    t = T0 + n
    add(t, 20, f2_mm(n, 0))
    if n + 1 < NK2: add(t, 34, w2_tr(n+1, 0))
    add(t, 44, f2_mm(n, 1))
    if n + 1 < NK2: add(t, 45, w2_tr(n+1, 1))
    if n + 3 < NK2:
        add(t, 46, h_load(n+3))
        add(t, 27, [("WL", f"tr_{n}")] + w2_dma(n+3, 0)); add(t+1, 3, w2_dma(n+3, 1))
if OPT.get("nof2", 0):
    for t in range(6, NSTEP): extra[t] = {}
if OPT.get("astamps", 0):
    for k_, t in enumerate((1, 2, 3, 4, 5, 6, 7, 8) if OPT.get("astamps") == 2 else (2, 5, 8, 12, 16, 20, 24, 28)): add(t, 0, [("F", (lambda k_=k_: stamp(k_)))])
PW = 2
PRIO = OPT.get("prio", 1)
if PRIO == 1:
    for t in range(0, NSTEP, PW): add(t, 1, [("I", f"s_setprio {3 - (t // PW) % 4}")])
elif PRIO == 2:
    for t, p_ in ((0,3),(2,2),(4,1),(6,0),(8,3),(12,2),(16,1),(20,0),(24,3),(26,2),(28,1),(30,0)): add(t, 1, [("I", f"s_setprio {p_}")])
elif PRIO == 3:
    def yp():
        L = newlabel("yp"); I(f"s_cmp_lt_u32 s{sW}, 4"); I(f"s_cbranch_scc1 {L}"); I("s_setprio 1"); a.label(L)
    add(0, 1, [("F", yp)])
for t in ((7, 15, 23) if OPT.get("bar15", 1) else (7, 23)): add(t, 8, [("B",)])
for i in range(8): add(23 + (i+1)//2, 30 if i % 2 == 0 else 10, wo_dma(i))

def emit(L):
    for e in L:
        if e[0] == "I": I(e[1], tag=e[2] if len(e) > 2 else None)
        elif e[0] == "WV": a.wait_vm_tag(e[1])
        elif e[0] == "WL": a.wait_lg_tag(e[1])
        elif e[0] == "F": e[1]()
        elif e[0] == "B": a.barrier()
P4FLAG[0] = True
for t in range(NSTEP):
    valu = blk(SA, 0) + blk(SA, 1) + blk(SB, 0) + blk(SB, 1)
    ins = {}
    ins[2] = ([("I", mm(OB, V2, SB+8, OB))] if t > 0 else []) + [("I", rdV(V2, 2*t+1))]
    ins[9] = [("I", mm(SB, KF, QB, CB))] + ([("I", rdK(t+1))] if t+1 < NSTEP else [])
    ins[15] = [("I", mm(OA, V1, SA, OA if t > 0 else None))]
    ins[26] = [("I", mm(OA, V2, SA+8, OA))]
    ins[33] = [("I", mm(SA, KF, QA, CA))] if t+1 < NSTEP else []
    ins[39] = [("I", mm(OB, V1, SB, OB if t > 0 else None))] + ([("I", rdV(V1, 2*t+2))] if t+1 < NSTEP else [])
    for p_, L in extra[t].items():
        ins.setdefault(p_, []); ins[p_] = ins[p_] + L
    for i, v in enumerate(valu):
        if i in ins: emit(ins[i])
        I(v)
I(mm(OB, V2, SB+8, OB))
I("s_setprio 0")

L_k1 = newlabel("k1"); L_kj = newlabel("kj")
I(f"v_add_u32 v24, s{sT0}, v2")
I(f"s_xor_b32 s9, s{sW}, 4"); I("s_lshl_b32 s10, s9, 11"); I(f"s_add_u32 s10, s10, {W2R}"); I("v_add_u32 v25, s10, v2")
I(f"s_lshl_b32 s9, s9, 8"); I(f"s_add_u32 s9, s9, {QX}"); I("v_lshl_add_u32 v29, v1, 2, s9")
I(f"s_lshl_b32 s9, s{sW}, 8"); I(f"s_add_u32 s9, s9, {QX}"); I("v_lshl_add_u32 v28, v1, 2, s9")
a.wait_vm_tag("wo")
stamp(8)
I(f"s_cmp_lg_u32 s{sKH}, 0"); I(f"s_cbranch_scc1 {L_k1}")
hs = a.save()
for q in range(2): I(f"ds_write_b128 v24, {vr(OB+4*q,4)} offset:{q*1024}")
I(f"ds_write_b32 v28, v{OB+8}")
I(f"s_branch {L_kj}")
a.label(L_k1); a.restore(hs)
for q in range(2): I(f"ds_write_b128 v24, {vr(OA+4*q,4)} offset:{q*1024}")
I(f"ds_write_b32 v28, v{OA+8}")
for i in range(9): I(f"v_mov_b32 v{OA+i}, v{OB+i}")
a.label(L_kj); a.flush_state(2)
a.barrier()
for q in range(2): I(f"ds_read_b128 {vr(OB+4*q,4)}, v25 offset:{q*1024}")
I(f"ds_read_b32 v{OB+8}, v29")
WOF = 32
sel4(9, sKQ, WOREG)
I(f"v_lshl_add_u32 v26, v{vHH}, 8, v{vLP}"); I("v_add_u32 v26, s9, v26")
for i in range(9): I(f"v_add_f32 v{OA+i}, v{OA+i}, v{OB+i}")
I(f"v_rcp_f32 v{OA+8}, v{OA+8}")
for p in range(4): I(f"v_pk_mul_f32 {vr(OA+2*p,2)}, {vr(OA+2*p,2)}, {vr(OA+8,2)} op_sel_hi:[1,0]")
for p in range(4): I(f"v_cvt_pk_bf16_f32 v{OB+p}, v{OA+2*p}, v{OA+2*p+1}")
I(f"buffer_store_dwordx4 {vr(OB,4)}, v2, {srd(SO)}, s{sOSLOT} offen sc1")
stamp(9)
for hd in range(8):
    for nt in range(2):
        I(f"ds_read_b64_tr_b16 {vr(WOF+8*hd+4*nt,2)}, v26 offset:{hd*2048 + nt*512}")
        I(f"ds_read_b64_tr_b16 {vr(WOF+8*hd+4*nt+2,2)}, v26 offset:{hd*2048 + nt*512 + 1024}")
XB = 240
for d in range(4):
    I(f"v_lshlrev_b32 v{XB+2*d}, 16, v{XRES+d}"); I(f"v_and_b32 v{XB+1+2*d}, 0xffff0000, v{XRES+d}")
    I(f"v_lshlrev_b32 v{XB+8+2*d}, 16, v{BB2+d}"); I(f"v_and_b32 v{XB+9+2*d}, 0xffff0000, v{BB2+d}")
for p in range(4): I(f"v_pk_add_f32 {vr(XB+2*p,2)}, {vr(XB+2*p,2)}, {vr(XB+8+2*p,2)}")
AREA = [24576, VE, None]
def area_addr(dst, j, wreg):
    I(f"s_lshl_b32 s10, {wreg}, 11")
    if j < 2: I(f"s_add_u32 s10, s10, {AREA[j]}")
    else:
        I(f"s_cmp_ge_u32 {wreg}, 4"); I("s_cselect_b32 s11, 49152, 0"); I("s_add_u32 s10, s10, s11")
    I(f"v_add_u32 v{dst}, s10, v2")
for dl in range(1, 4):
    I(f"s_add_u32 s9, s{sW}, {2*dl}"); I("s_and_b32 s9, s9, 7"); area_addr(12 + dl, dl - 1, "s9")
    area_addr(16 + dl, dl - 1, f"s{sW}")
OF = 96
I(f"s_lshl_b32 s26, s{sKQ}, 14"); I(f"s_lshl_b32 s10, s{sTT}, 10"); I("s_add_u32 s26, s26, s10")
for k_ in range(1, 4): I(f"v_add_u32 v{3+k_}, {k_*4096}, v2")
def oload():
    for hd in range(8):
        ad = "v2" if hd < 2 else f"v{3 + hd//2}"
        I(f"buffer_load_dwordx4 {vr(OF+4*hd,4)}, {ad}, {srd(SO)}, s26 offen offset:{(hd%2)*2048} sc1")
stamp(10)
L_orep = newlabel("orep"); L_ook = newlabel("ook")
FB = 128
I(f"s_mov_b32 s{sCNT}, 0x4000")
a.label(L_orep); a.vm = []
oload()
for hd in range(8):
    o_ = OF + 4*hd
    for nt in range(2):
        I(mm(FB+16*nt, WOF+8*hd+4*nt, o_, ACC2+16*nt if hd == 0 else FB+16*nt))
    if hd == 0:
        I(f"v_max3_u32 v8, v{o_}, v{o_+1}, v{o_+2}"); I(f"v_mov_b32 v9, v{o_+3}")
    else:
        I(f"v_max3_u32 v8, v8, v{o_}, v{o_+1}"); I(f"v_max3_u32 v9, v9, v{o_+2}, v{o_+3}")
I("v_max_u32 v8, v8, v9")
I("v_cmp_eq_u32 vcc, -1, v8")
I("s_nop 4")
I(f"s_cbranch_vccz {L_ook}")
I("s_nop 15")
I(f"s_sub_u32 s{sCNT}, s{sCNT}, 1"); I(f"s_cmp_lg_u32 s{sCNT}, 0"); I(f"s_cbranch_scc1 {L_orep}")
a.label(L_ook)
stamp(11)
FA = 160
L_j = newlabel("rsj"); Ls = [newlabel(f"rs{k_}") for k_ in range(4)]
for k_ in range(1, 4):
    I(f"s_cmp_eq_u32 s{sKQ}, {k_}"); I(f"s_cbranch_scc1 {Ls[k_]}")
hs = a.save()
for k_ in range(4):
    a.label(Ls[k_]); a.restore(hs)
    for dl in range(1, 4):
        ch = (k_ + dl) % 4
        for q in range(2): I(f"ds_write_b128 v{12+dl}, {vr(FB+8*ch+4*q,4)} offset:{q*1024}")
    for p in range(4): I(f"v_pk_mov_b32 {vr(FA+2*p,2)}, {vr(FB+8*k_+2*p,2)}, {vr(FB+8*k_+2*p,2)} op_sel:[0,1]")
    if k_ < 3: I(f"s_branch {L_j}")
a.label(L_j); a.flush_state(2)
a.barrier()
for dl in range(1, 4):
    for q in range(2): I(f"ds_read_b128 {vr(32+8*(dl-1)+4*q,4)}, v{16+dl} offset:{q*1024}")
for p in range(4): I(f"v_pk_add_f32 {vr(FA+2*p,2)}, {vr(FA+2*p,2)}, {vr(32+2*p,2)}")
for p in range(4): I(f"v_pk_add_f32 {vr(40+2*p,2)}, {vr(40+2*p,2)}, {vr(48+2*p,2)}")
for p in range(4): I(f"v_pk_add_f32 {vr(FA+2*p,2)}, {vr(FA+2*p,2)}, {vr(40+2*p,2)}")
for i in range(4): I(f"v_permlane32_swap_b32 v{FA+i}, v{FA+4+i}")
for p in range(4): I(f"v_pk_add_f32 {vr(FA+2*p,2)}, {vr(FA+2*p,2)}, {vr(XB+2*p,2)}")
for p in range(4): I(f"v_cvt_pk_bf16_f32 v{56+p}, v{FA+2*p}, v{FA+2*p+1}")
I(f"buffer_store_dwordx4 v[56:59], v{vOUT}, {srd(SOUT)}, 0 offen " + ["", "sc1", "sc0 sc1", "nt", "sc1 nt"][OPT.get("ost", 0)])
stamp(12)
if OPT["stamps"] or OPT.get("dbg", 0): a.waitcnt(vm=0)
stamp(13)
a.raw("L_end:")
a.raw("    s_endpgm")
a.raw("L_codeend:")
if OPT.get("cpf", 0): a.raw(".set CODE_SPAN, L_codeend - L_pcbase")

ref = open(f"cdna_kernels/{NAME}.s.ref").read()
head = ref[:ref.index("; Override launch geometry")]
out = head + f"""; Written with my own generator script (gen/gen.py).  One workgroup of 8 waves per CU, 256 workgroups, one launch.
;  Workgroup (g, c): token tile g (64 tokens), member c (4 heads / ~5.4 FFN feature tiles / 64 output columns).
;  P0  raw x rows + row statistics -> LDS.  LayerNorm is folded into the epilogues: xn@W = rstd*(x@W - mean*colsum(W)).
;  P2  K/V projection of 16 tokens (published through d_ws), Q tiles, FFN1 + GELU (H published through d_ws).
;  P4  attention S^T = K Q^T - m (MFMA C operand), exp2, O^T += V^T P^T (a ones row of V^T gives the row sums);
;      FFN2 is interleaved.  m is the Cauchy-Schwarz bound |q|*max|k| >= row max; it is used only when a run-time check
;      shows m <= 50 (log2 units, so no exp2 argument leaves [-100, 0]); otherwise the true row max is computed first.
;  P5  O exchanged through d_ws, output projection on top of the FFN2 accumulators, + x + b2.
;  Hand-offs: write-through (sc1) stores, drained before the flag; flags carry a per-launch tag derived from an epoch word
;  in d_ws; every spin is bounded.
; @launch grid=(256,1,1) block=(512,1,1) lds={LDS_BYTES}
.amdgcn_target "amdgcn-amd-amdhsa--gfx950"
.text
.globl {NAME}_kernel
.p2align 8
.type {NAME}_kernel,@function
{NAME}_kernel:
""" + a.text() + f""".section .rodata,"a"
.p2align 6
.amdhsa_kernel {NAME}_kernel
  .amdhsa_next_free_vgpr 256
  .amdhsa_next_free_sgpr 102
  .amdhsa_accum_offset 256
  .amdhsa_group_segment_fixed_size 0
  .amdhsa_kernarg_size 104
  .amdhsa_user_sgpr_count 2
  .amdhsa_user_sgpr_kernarg_segment_ptr 1
  .amdhsa_system_sgpr_workgroup_id_x 1
.end_amdhsa_kernel
"""
path = OPT_OUT if (OPT_OUT := next((x for x in sys.argv[1:] if x.endswith(".s")), None)) else f"cdna_kernels/{NAME}.s"
open(path, "w").write(out)
print("wrote", path, "lines", len(a.out), "nops", a.nops)
```

```python
import sys, math, struct
sys.path.insert(0, "gen")
from asmlib import Asm

NAME = "parallel_sum__grouped_kv_mqa__dense_activation_gelu__prompt"
OPT = dict(stop=99, stamps=False)
for a_ in sys.argv[1:]:
    if "=" in a_:
        k_, v_ = a_.split("="); OPT[k_] = int(v_)

def fbits(x): return "0x%08x" % struct.unpack("<I", struct.pack("<f", x))[0]

WS_EPOCH = 0
WS_KVFLAG = 0x1000
WS_HFLAG = 0x2000
WS_K = 0x10000
WS_V = 0x20000
WS_H = 0x100000
H_STRIDE = 0x2C000
WS_O = 0x800000
WS_DBG = 0xA00000
WS_SIZE = 0x1000000
XC = 0; XCS = 1040
RING2 = 66560
KL = 0; VL = 65536; VS = 272
QX = 135168
W2R = 143360
MISC = 159744
RSTD = MISC; KMAX = MISC + 256
LDS_BYTES = 163840
SX, SW, SKVW, SWS, SH, SO, SW2, SWO, SB1, SB2, SOUT = 44, 48, 52, 56, 60, 64, 68, 72, 76, 80, 84
SB2 = SB1
def srd(n): return f"s[{n}:{n+3}]"
sW, sG, sC, sTAG, sKSTR, sOFF, sT0, sT1, sT2, sTILE = 3, 4, 5, 6, 7, 8, 16, 17, 18, 12
sONES, sSELLO, sSELHI, sCNT = 13, 14, 15, 42
sC0, sC1 = 88, 90
sTB, sKIND, sFT, sTT, sKH, sNT2, sTT2 = 92, 93, 94, 95, 96, 97, 98
sEX = 100

a = Asm(); I = a.I
def vr(b, n): return f"v[{b}:{b+n-1}]"
lblc = [0]
def newlabel(p):
    lblc[0] += 1
    return f"L_{p}_{lblc[0]}"

P4FLAG = [False]
DBGMAP = {3: 1, 7: 2, 8: 3, 9: 4, 11: 5, 13: 6, 0: 7}
def dbgstamp(slot, src=None):
    L = newlabel("dbg")
    a.waitcnt(lg=0)
    I(f"s_cmp_gt_u32 s{SDBG+2}, 0"); I(f"s_cbranch_scc0 {L}")
    st = a.save()
    if src is None:
        I("s_memrealtime s[100:101]"); a.waitcnt(lg=0)
        I("v_mov_b32 v3, s100")
    I(f"buffer_store_dword {src or 'v3'}, off, s[{SDBG}:{SDBG+3}], s42 offset:{4*slot}".replace("s42", "0"))
    a.label(L); a.restore(st)
SDBG = 80
def stamp(idx):
    if OPT.get("dbg", 0):
        if idx in DBGMAP and DBGREADY[0]: dbgstamp(DBGMAP[idx])
        return
    if not OPT["stamps"]: return
    if OPT.get("lite", 0) and idx not in (7, 8, 13): return
    if OPT.get("astamps", 0) and idx < 7 and not P4FLAG[0]: return
    a.waitcnt(lg=0)
    for k_, op in enumerate(("s_memtime", "s_memrealtime")):
        I(f"{op} s[100:101]")
        a.waitcnt(lg=0)
        I("v_mov_b32 v3, s100")
        I(f"s_lshl_b32 s100, s2, 3"); I(f"s_add_u32 s100, s100, s{sW}"); I("s_lshl_b32 s100, s100, 7")
        I(f"s_add_u32 s100, s100, {WS_DBG + 4*idx + 64*k_}")
        I(f"buffer_store_dword v3, off, {srd(SWS)}, s100")

DBGREADY = [False]
def mk_srd(n, lo, hi, nbytes):
    I(f"s_mov_b32 s{n}, s{lo}"); I(f"s_mov_b32 s{n+1}, s{hi}")
    I(f"s_mov_b32 s{n+2}, {nbytes}"); I(f"s_mov_b32 s{n+3}, 0x00020000")


NE_OLD = OPT.get("ne_old", 8)
T0 = OPT.get("t0", 8)
TBAR = OPT.get("tbar", 18)
NSLOT = 8
KVPOLL = OPT.get("kvpoll", 22)
NMU = MISC + 256; KMAX = MISC + 512; LCNT = MISC + 576; CSL = MISC + 1024
I("s_cmp_ge_u32 s2, 256")
I("s_cbranch_scc1 L_end")
if OPT["stamps"]:
    I("s_memrealtime s[26:27]"); I("s_memtime s[38:39]"); a.waitcnt(lg=0); I("s_mov_b32 s19, s26"); I("s_mov_b32 s101, s38")
    I("v_mov_b32 v126, s19"); I("v_mov_b32 v127, s101")
if OPT.get("dbg", 0):
    I("s_memrealtime s[26:27]"); a.waitcnt(lg=0); I("v_mov_b32 v126, s26")
I("s_load_dwordx16 s[16:31], s[0:1], 0")
I("s_load_dwordx8 s[32:39], s[0:1], 64")
I("s_load_dwordx2 s[40:41], s[0:1], 96")
I("v_lshrrev_b32 v3, 6, v0")
I("v_and_b32 v1, 63, v0")
I(f"v_readfirstlane_b32 s{sW}, v3")
I("v_lshlrev_b32 v2, 4, v1")
if OPT.get("map", 1) == 0:
    I("s_and_b32 s9, s2, 7"); I("s_lshl_b32 s9, s9, 2"); I("s_bfe_u32 s10, s2, 0x20003"); I(f"s_or_b32 s{sG}, s9, s10")
    I(f"s_lshr_b32 s{sC}, s2, 5")
else:
    I("s_bfe_u32 s9, s2, 0x20001"); I("s_lshl_b32 s9, s9, 3"); I("s_bfe_u32 s10, s2, 0x30003"); I(f"s_or_b32 s{sG}, s9, s10")
    I("s_and_b32 s9, s2, 1"); I("s_lshl_b32 s9, s9, 2"); I("s_lshr_b32 s10, s2, 6"); I(f"s_or_b32 s{sC}, s9, s10")
XR = 128; T = 64
I("v_lshrrev_b32 v4, 4, v1")
I("v_and_b32 v5, 15, v1")
I(f"s_lshl_b32 s9, s{sC}, 1"); I(f"s_add_u32 s9, s9, s{sW}"); I("s_and_b32 s9, s9, 7"); I("s_lshl_b32 s9, s9, 3")
I("v_add_u32 v20, s9, v4")
I("v_lshlrev_b32 v21, 10, v20"); I("v_lshl_add_u32 v21, v5, 4, v21")
I(f"s_lshl_b32 s9, s{sG}, 16"); I("s_add_u32 s10, s9, 4096")
I(f"s_mov_b32 s{SX+2}, {2048*1024}"); I(f"s_mov_b32 s{SX+3}, 0x00020000")
I(f"s_mov_b32 s{SX}, s16"); I(f"s_mov_b32 s{SX+1}, s17")
for k_ in range(2):
    for i in range(4):
        I(f"buffer_load_dwordx4 {vr(XR+16*k_+4*i,4)}, v21, {srd(SX)}, s{9+k_} offen offset:{i*256}")
if OPT.get("xbar", 1): I("s_barrier")
if OPT.get("cpf", 0):
    L_cp = newlabel("cpf")
    I(f"s_cmp_lg_u32 s{sW}, 7"); I(f"s_cbranch_scc1 {L_cp}")
    st = a.save()
    a.raw("    s_getpc_b64 s[88:89]"); a.raw("L_pcbase:")
    I("s_lshr_b32 s9, s2, 3"); I(f"s_mul_i32 s9, s9, {1024*OPT.get('cpf')}"); I("v_add_u32 v22, s9, v2")
    I("v_min_u32 v22, CODE_SPAN-16, v22")
    I("global_load_dwordx4 v[244:247], v22, s[88:89]")
    if OPT.get("cpf") == 2:
        I("v_add_u32 v22, 1024, v22"); I("v_min_u32 v22, CODE_SPAN-16, v22")
        I("global_load_dwordx4 v[248:251], v22, s[88:89]")
    a.label(L_cp); a.restore(st)
I(f"s_cmp_lt_u32 s{sC}, 4")
I("s_cselect_b32 s9, s20, s22"); I("s_cselect_b32 s10, s21, s23")
mk_srd(SKVW, 9, 10, 16384)
I(f"s_lshl_b32 s9, s{sW}, 11"); I(f"s_add_u32 m0, s9, {W2R}")
I("s_nop 0")
I(f"buffer_load_dwordx4 v2, {srd(SKVW)}, s9 offen lds", tag="x")
I(f"buffer_load_dwordx4 v2, {srd(SKVW)}, s9 offen offset:1024 lds", tag="x")
I(f"s_mov_b32 s{sONES}, 0x3f803f80")
I(f"s_mul_i32 s9, s{sC}, 5"); I(f"s_min_u32 s10, s{sC}, 3"); I("s_add_u32 s9, s9, s10")
I(f"s_add_u32 s9, s9, s{sW}"); I(f"s_sub_u32 s{sTILE}, s9, 2")
I(f"s_lshl_b32 s9, s{sC}, 1"); I(f"s_add_u32 s9, s9, s{sW}")
I(f"s_cmp_lt_u32 s{sW}, 2"); I(f"s_cselect_b32 s{sTILE}, s9, s{sTILE}")
I("s_mov_b32 s11, 2752"); I("s_cselect_b32 s11, 1024, s11")
I(f"s_mov_b32 s{SW+2}, {512*2752}"); I(f"s_cselect_b32 s{SW+2}, {512*1024}, s{SW+2}")
I(f"s_cselect_b32 s{SW}, s18, s28"); I(f"s_cselect_b32 s{SW+1}, s19, s29")
I(f"s_mov_b32 s{SW+3}, 0x00020000")
I(f"s_cmp_ge_u32 s{sC}, 3"); I("s_cselect_b32 s9, 1, 0"); I(f"s_cmp_eq_u32 s{sW}, 7"); I("s_cselect_b32 s9, s9, 0")
I("s_cmp_eq_u32 s9, 1"); I(f"s_cselect_b32 s{sTILE}, 63, s{sTILE}"); I(f"s_cselect_b32 s{SW+2}, 0, s{SW+2}")
if OPT.get("now", 0): I(f"s_mov_b32 s{SW+2}, 0")
I(f"s_lshl_b32 s{sKSTR}, s11, 4")
I("v_lshrrev_b32 v11, 2, v1")
I("v_mul_lo_u32 v11, v11, s11")
I("v_and_b32 v15, 3, v1")
I("v_lshl_add_u32 v11, v15, 4, v11")
I(f"s_lshl_b32 s9, s{sTILE}, 6")
I("v_add_u32 v11, s9, v11")
NXB = OPT.get("nxb", 4); KB = 32 // NXB
sWB = [26, 27, 38, 39, 14, 15, 88, 89][:NXB]; sRING = 99; sQ = 19
if OPT.get("dbg", 0):
    I(f"s_lshl_b32 s9, s2, 3"); I(f"s_or_b32 s9, s9, s{sW}")
    I(f"s_cmp_eq_u32 s9, {133*8+4}"); I("s_cselect_b32 s10, 32, 0"); I("s_add_u32 s38, s38, s10"); I("s_addc_u32 s39, s39, 0")
    mk_srd(SDBG, 38, 39, 0); DBGREADY[0] = True
    I(f"s_cmp_eq_u32 s9, {133*8+4}"); I(f"s_cselect_b32 s{SDBG+2}, 32, 0"); I("s_cmp_eq_u32 s9, 0"); I(f"s_cselect_b32 s{SDBG+2}, 32, s{SDBG+2}")
    dbgstamp(0, "v126")
I(f"s_and_b32 s{sQ}, s{sG}, {NXB-1}")
if OPT.get("noxor", 0): I(f"s_mov_b32 s{sQ}, 0")
I(f"s_mul_i32 s10, s{sKSTR}, {KB}")
for b in range(NXB):
    I(f"s_xor_b32 s9, s{sQ}, {b}"); I(f"s_mul_i32 s{sWB[b]}, s9, s10")
VW = 17408; VE = VL + 3*VW
I(f"s_lshl_b32 s{sRING}, s{sW}, 13"); I(f"s_add_u32 s{sRING}, s{sRING}, {RING2 - 16384}")
I(f"s_cmp_eq_u32 s{sW}, 0"); I(f"s_cselect_b32 s{sRING}, {VE}, s{sRING}")
I(f"s_cmp_eq_u32 s{sW}, 1"); I(f"s_cselect_b32 s{sRING}, {VE + 8704}, s{sRING}")
def wslot(s): return (s % NSLOT)*1024
def wdma(s):
    I(f"s_add_u32 m0, s{sRING}, {wslot(s)}")
    if s % KB == 0: I(f"s_mov_b32 s{sOFF}, s{sWB[s//KB]}")
    else: I(f"s_add_u32 s{sOFF}, s{sOFF}, s{sKSTR}")
    I(f"buffer_load_dwordx4 v11, {srd(SW)}, s{sOFF} offen lds", tag=f"w_{s}")
NEARLY = OPT.get("nearly", 4)
for s in range(NEARLY): wdma(s)
mk_srd(SWS, 40, 41, WS_SIZE)
I(f"s_load_dword s{sTAG}, s[40:41], {WS_EPOCH}")
I(f"s_and_b32 s9, s{sC}, 3"); I(f"s_lshl_b32 s10, s{sG}, 2"); I(f"s_add_u32 s{sTB}, s9, s10"); I(f"s_lshr_b32 s{sKIND}, s{sC}, 2")
I(f"s_bfe_u32 s{sFT}, s{sW}, 0x10001"); I(f"s_and_b32 s{sTT}, s{sW}, 1"); I(f"s_lshr_b32 s{sKH}, s{sW}, 2")
I(f"s_lshl_b32 s9, s{sG}, 16"); I(f"s_add_u32 s9, s9, {WS_O}")
I("s_add_u32 s9, s40, s9"); I("s_addc_u32 s10, s41, 0")
mk_srd(SO, 9, 10, 65536)
sOSLOT = 43
I(f"s_lshl_b32 s9, s{sC}, 2"); I(f"s_lshl_b32 s10, s{sFT}, 1"); I("s_add_u32 s9, s9, s10"); I(f"s_add_u32 s9, s9, s{sKH}")
I("s_lshl_b32 s9, s9, 1"); I(f"s_add_u32 s9, s9, s{sTT}"); I(f"s_lshl_b32 s{sOSLOT}, s9, 10")
if OPT["stamps"]:
    I(f"s_lshl_b32 s100, s2, 3"); I(f"s_add_u32 s100, s100, s{sW}"); I("s_lshl_b32 s100, s100, 7")
    I(f"s_add_u32 s100, s100, {WS_DBG + 4*15}")
    I(f"buffer_store_dword v127, off, {srd(SWS)}, s100")
    I(f"buffer_store_dword v126, off, {srd(SWS)}, s100 offset:64")
I(f"s_mul_i32 s9, s{sG}, {H_STRIDE}"); I(f"s_add_u32 s9, s9, {WS_H}")
I("s_add_u32 s9, s40, s9"); I("s_addc_u32 s10, s41, 0")
mk_srd(SH, 9, 10, 86*2048)
ACC = 96
I("v_and_b32 v15, 3, v1"); I("v_lshlrev_b32 v13, 3, v15")
I("v_bfe_u32 v15, v1, 2, 2"); I("v_lshl_add_u32 v13, v15, 6, v13")
I("v_bfe_u32 v15, v1, 4, 1"); I("v_lshl_add_u32 v13, v15, 5, v13")
I("v_mov_b32 v17, v13")
I("v_lshrrev_b32 v16, 5, v1")
I("v_lshl_add_u32 v13, v16, 9, v13"); I(f"v_add_u32 v13, s{sRING}, v13")
I("v_and_b32 v18, 31, v1")
I(f"v_mul_u32_u24 v14, {XCS}, v18"); I("v_lshl_add_u32 v14, v16, 4, v14")
vB = [6, 7, 8, 9, 52, 53, 54, 55][:NXB]
for b in range(NXB):
    I(f"s_xor_b32 s9, s{sQ}, {b}"); I(f"s_mul_i32 s9, s9, {KB*32}"); I(f"v_add_u32 v{vB[b]}, s9, v14")
SEL = 88; CSA = 92
I("v_xor_b32 v15, v4, v1"); I("v_and_b32 v15, 1, v15"); I("v_cmp_eq_u32 vcc, 0, v15"); I(f"v_mov_b32 v15, s{sONES}")
for i in range(4): I(f"v_cndmask_b32 v{SEL+i}, 0, v15, vcc")
stamp(0)
I(f"v_mul_u32_u24 v21, {XCS}, v20"); I("v_lshl_add_u32 v21, v5, 4, v21")
I("v_lshlrev_b32 v20, 2, v20"); I(f"v_add_u32 v20, {RSTD}, v20")
for k_ in range(2):
    X = XR + 16*k_; t = T + 8*k_
    for i in range(16):
        if i % 4 == 0: I(f"ds_write_b128 v21, {vr(X+i,4)} offset:{k_*4*XCS + (i//4)*256}")
        I(f"v_dot2_f32_bf16 v{t}, v{X+i}, s{sONES}, {'0' if i == 0 else f'v{t}'}")
        I(f"v_dot2_f32_bf16 v{t+2}, v{X+i}, v{X+i}, {'0' if i == 0 else f'v{t+2}'}")
for k_ in range(2):
    pass
regs = [[T, T+1], [T+2, T+3], [T+8, T+9], [T+10, T+11]]
for ro in (8, 4, 2, 1):
    for rr in regs:
        I(f"v_add_f32_dpp v{rr[1]}, v{rr[0]}, v{rr[0]} row_ror:{ro} row_mask:0xf bank_mask:0xf"); rr.reverse()
for k_ in range(2):
    t = T + 8*k_
    I(f"v_mul_f32 v{t+4}, {fbits(-1.0/512)}, v{t}")
    I(f"v_mul_f32 v{t+5}, {fbits(1.0/512)}, v{t+2}")
for k_ in range(2):
    t = T + 8*k_
    I(f"v_fma_f32 v{t+5}, -v{t+4}, v{t+4}, v{t+5}")
    I(f"ds_write_b32 v20, v{t+4} offset:{256 + 16*k_}")
    I(f"v_max_f32 v{t+5}, 0, v{t+5}")
    I(f"v_add_f32 v{t+5}, {fbits(1e-5)}, v{t+5}")
    I(f"v_rsq_f32 v{t+5}, v{t+5}")
for k_ in range(2): I(f"ds_write_b32 v20, v{T+8*k_+5} offset:{16*k_}")
stamp(5)
for s in range(NEARLY, NSLOT): wdma(s)
a.wait_vm_tag("x")
a.barrier()
I(f"s_mul_i32 s{sTAG}, s{sTAG}, 0x9E3779B1")
I(f"s_add_u32 s{sTAG}, s{sTAG}, 0x7F4A7C15")
stamp(3)
L_kv = newlabel("kv"); L_k = newlabel("kloop")
I(f"s_cmp_lg_u32 s{sW}, 0"); I(f"s_cbranch_scc1 {L_k}")
stB = a.save()
WR = 128
I("s_setprio 3")
L_kvV = newlabel("kvV"); L_kvpub = newlabel("kvpub")
I(f"s_and_b32 s9, s{sC}, 3"); I("s_lshl_b32 s9, s9, 4")
I("v_add_u32 v20, s9, v5")
I(f"v_mul_u32_u24 v21, {XCS}, v20")
I("v_lshl_add_u32 v21, v4, 4, v21")
I("v_lshrrev_b32 v22, 2, v5")
I("v_lshl_add_u32 v22, v4, 3, v22")
I("v_lshlrev_b32 v22, 5, v22")
I("v_and_b32 v15, 3, v1")
I("v_lshl_add_u32 v22, v15, 3, v22")
I(f"v_add_u32 v22, {W2R}, v22")
for s in range(16):
    I(f"ds_read_b128 {vr(WR+8*s,4)}, v21 offset:{s*64}")
    I(f"ds_read_b64_tr_b16 {vr(WR+8*s+4,2)}, v22 offset:{s*1024}")
    I(f"ds_read_b64_tr_b16 {vr(WR+8*s+6,2)}, v22 offset:{s*1024+128}")
for i in range(4): I(f"v_mov_b32 v{68+i}, -1")
for i in range(4): I(f"v_mov_b32 v{64+i}, s{sONES}")
I("v_add_u32 v23, 0x1000, v2")
I(f"s_lshl_b32 s9, s{sC}, 13")
for i in range(8):
    I(f"buffer_store_dwordx4 v[68:71], {'v2' if i < 4 else 'v23'}, {srd(SO)}, s9 offen offset:{(i%4)*1024} sc1")
KD = 72; KC = 76
def kv_mm(kind):
    for s in range(16):
        b = WR + 8*s
        x_, w_ = vr(b, 4), vr(b+4, 4)
        c_ = "0" if s == 0 else vr(KD, 4); cc = "0" if s == 0 else vr(KC, 4)
        I(f"v_mfma_f32_16x16x32_bf16 {vr(KD,4)}, {w_ if kind == 0 else x_}, {x_ if kind == 0 else w_}, {c_}")
        I(f"v_mfma_f32_16x16x32_bf16 {vr(KC,4)}, {w_ if kind == 0 else 'v[64:67]'}, {'v[64:67]' if kind == 0 else w_}, {cc}")
I("v_bfe_u32 v24, v1, 4, 1"); I("v_lshrrev_b32 v25, 5, v1")
I(f"s_cmp_lg_u32 s{sKIND}, 0")
I(f"s_cbranch_scc1 {L_kvV}")
st_kv = a.save()
I("v_lshlrev_b32 v26, 2, v20"); I(f"v_add_u32 v26, {RSTD}, v26")
I(f"s_lshr_b32 s9, s{sTB}, 1"); I("s_lshl_b32 s9, s9, 10"); I(f"s_and_b32 s10, s{sTB}, 1"); I("s_lshl_b32 s10, s10, 8")
I("s_add_u32 s9, s9, s10"); I(f"s_add_u32 s9, s9, {WS_K}")
I("v_lshlrev_b32 v24, 9, v24"); I("v_lshl_add_u32 v24, v5, 4, v24"); I("v_lshl_add_u32 v24, v25, 3, v24")
I("ds_read_b32 v27, v26"); I("ds_read_b32 v28, v26 offset:256")
kv_mm(0)
for r in range(4): I(f"v_fmac_f32 v{KD+r}, v28, v{KC+r}")
for r in range(4): I(f"v_mul_f32 v{KD+r}, v{KD+r}, v27")
I(f"v_cvt_pk_bf16_f32 v30, v{KD}, v{KD+1}"); I(f"v_cvt_pk_bf16_f32 v31, v{KD+2}, v{KD+3}")
I(f"buffer_store_dwordx2 v[30:31], v24, {srd(SWS)}, s9 offen sc1")
I("v_dot2_f32_bf16 v22, v30, v30, 0"); I("v_dot2_f32_bf16 v22, v31, v31, v22")
I("v_mov_b32 v23, v22"); I("v_permlane32_swap_b32 v22, v23"); I("v_add_f32 v22, v22, v23")
I("v_mov_b32 v23, v22"); I("v_permlane16_swap_b32 v22, v23"); I("v_add_f32 v22, v22, v23")
for ro in (8, 4, 2, 1):
    I(f"v_max_f32_dpp v23, v22, v22 row_ror:{ro} row_mask:0xf bank_mask:0xf"); I("v_mov_b32 v22, v23")
I("v_mov_b32 v63, v22")
I(f"s_branch {L_kvpub}")
a.label(L_kvV); a.restore(st_kv)
I(f"s_and_b32 s9, s{sC}, 3"); I("s_lshl_b32 s9, s9, 6"); I(f"s_add_u32 s9, s9, {RSTD}")
I("v_lshl_add_u32 v26, v4, 4, s9")
I(f"s_lshl_b32 s9, s{sTB}, 9"); I(f"s_add_u32 s9, s9, {WS_V}")
I("v_lshlrev_b32 v24, 8, v24"); I("v_lshl_add_u32 v24, v5, 4, v24"); I("v_lshl_add_u32 v24, v25, 3, v24")
I("ds_read_b128 v[80:83], v26"); I("ds_read_b128 v[84:87], v26 offset:256")
kv_mm(1)
for r in range(4): I(f"v_fmac_f32 v{KD+r}, v{84+r}, v{KC+r}")
for r in range(4): I(f"v_mul_f32 v{KD+r}, v{KD+r}, v{80+r}")
I(f"v_cvt_pk_bf16_f32 v30, v{KD}, v{KD+1}"); I(f"v_cvt_pk_bf16_f32 v31, v{KD+2}, v{KD+3}")
I(f"buffer_store_dwordx2 v[30:31], v24, {srd(SWS)}, s9 offen sc1")
I("v_mov_b32 v63, 0")
a.label(L_kvpub); a.flush_state(2)
I(f"v_mov_b32 v62, s{sTAG}")
I(f"s_lshl_b32 s9, s{sTB}, 1"); I(f"s_add_u32 s9, s9, s{sKIND}"); I("s_lshl_b32 s9, s9, 3"); I(f"s_add_u32 s9, s9, {WS_KVFLAG}")
a.force_wait(vm=0)
I("s_mov_b64 exec, 1")
I(f"buffer_store_dwordx2 v[62:63], off, {srd(SWS)}, s9 sc1")
I("s_mov_b64 exec, -1")
I("s_setprio 0")
stamp(1)
a.label(L_k); a.restore(stB); a.flush_state(3); a.lg = []
stamp(2)

NBUF = 3
AF = 128; BF = 140
def p2_readB(s):
    bb = BF + 8*(s % NBUF)
    I(f"ds_read_b128 {vr(bb,4)}, v{vB[s//KB]} offset:{(s%KB)*32}")
    I(f"ds_read_b128 {vr(bb+4,4)}, v{vB[s//KB]} offset:{32*XCS + (s%KB)*32}")
def p2_readA(s):
    ab = AF + 4*(s % NBUF)
    a.wait_vm_tag(f"w_{s}")
    I(f"ds_read_b64_tr_b16 {vr(ab,2)}, v13 offset:{wslot(s)}")
    I(f"ds_read_b64_tr_b16 {vr(ab+2,2)}, v13 offset:{wslot(s)+256}")
def p2_mma(s, tt):
    ab = AF + 4*(s % NBUF); bb = BF + 8*(s % NBUF)
    c_ = "0" if s == 0 else vr(ACC+16*tt, 16)
    I(f"v_mfma_f32_32x32x16_bf16 {vr(ACC+16*tt,16)}, {vr(ab,4)}, {vr(bb+4*tt,4)}, {c_}")
def p2_cs(s):
    ab = AF + 4*(s % NBUF)
    I(f"v_mfma_f32_16x16x32_bf16 {vr(CSA,4)}, {vr(ab,4)}, {vr(SEL,4)}, {'0' if s == 0 else vr(CSA,4)}")

def poll(load_fn, check_fn, name, sleep=2):
    L = newlabel(name); Ld = newlabel(name + "ok")
    I(f"s_mov_b32 s{sCNT}, 0x4000")
    a.label(L)
    load_fn()
    a.force_wait(vm=0)
    check_fn()
    I("s_nop 4")
    I(f"s_cbranch_vccz {Ld}")
    if sleep: I(f"s_sleep {sleep}")
    I(f"s_sub_u32 s{sCNT}, s{sCNT}, 1")
    I(f"s_cmp_lg_u32 s{sCNT}, 0")
    I(f"s_cbranch_scc1 {L}")
    a.label(Ld)
KVS = 192
sR = 20
def kv_flag_load():
    I(f"s_add_u32 s{sR}, s{sC}, s{sG}"); I(f"s_and_b32 s{sR}, s{sR}, 7"); I(f"s_xor_b32 s{sR}, s{sR}, s{sW}")
    I("v_bfe_u32 v19, v1, 2, 1"); I("v_lshlrev_b32 v19, 10, v19")
    I("v_bfe_u32 v56, v1, 3, 2"); I("v_lshl_add_u32 v19, v56, 8, v19")
    I("v_and_b32 v56, 3, v1"); I("v_lshl_add_u32 v19, v56, 3, v19")
    I(f"s_lshl_b32 s21, s{sR}, 5"); I(f"s_add_u32 s21, s21, {WS_KVFLAG}")
    I(f"buffer_load_dwordx2 v[60:61], v19, {srd(SWS)}, s21 offen sc1")
def kv_fetch():
    L = newlabel("kvok")
    I(f"v_cmp_ne_u32 vcc, s{sTAG}, v60")
    I("s_nop 4")
    I(f"s_cbranch_vccz {L}")
    st = a.save()
    poll(lambda: I(f"buffer_load_dwordx2 v[60:61], v19, {srd(SWS)}, s21 offen sc1"),
         lambda: I(f"v_cmp_ne_u32 vcc, s{sTAG}, v60"), "pkv")
    a.label(L); a.restore(st)
    I(f"s_lshl_b32 s9, s{sR}, 10"); I(f"s_add_u32 s23, s9, {WS_V}"); I(f"s_add_u32 s22, s9, {WS_K}")
    I("v_add_u32 v191, 0x8000, v2")
def kv_load(i, which):
    so = "s22" if which == 0 else "s23"
    I(f"buffer_load_dwordx4 {vr(KVS+8*i+4*which,4)}, {'v2' if i % 2 == 0 else 'v191'}, {srd(SWS)}, {so} offen sc1")
    if i % 2 == 1: I(f"s_add_u32 {so}, {so}, 8192")
def kv_publish(nyounger):
    L = newlabel("nopub")
    I(f"s_cmp_lg_u32 s{sW}, 0"); I(f"s_cbranch_scc1 {L}")
    st = a.save()
    a.raw(f"    s_waitcnt vmcnt({nyounger})")
    I(f"v_mov_b32 v62, s{sTAG}")
    I(f"s_lshl_b32 s9, s{sTB}, 1"); I(f"s_add_u32 s9, s9, s{sKIND}"); I("s_lshl_b32 s9, s9, 3"); I(f"s_add_u32 s9, s9, {WS_KVFLAG}")
    I("s_mov_b64 exec, 1")
    I(f"buffer_store_dwordx2 v[62:63], off, {srd(SWS)}, s9 sc1")
    I("s_mov_b64 exec, -1")
    a.label(L); a.restore(st)
L_skip2 = newlabel("skip2")
if OPT.get("skipd", 1):
    I(f"s_cmp_eq_u32 s{sTILE}, 63"); I(f"s_cbranch_scc1 {L_skip2}")
p2_readB(0); p2_readA(0); p2_readB(1); p2_readA(1)
mk_srd(SB1, 30, 31, 2752)
PUBK = OPT.get("pubk", 3)
for s in range(32):
    p2_mma(s, 0)
    PX = OPT.get("p2x", 0)
    if s + NSLOT < 32 and not PX & 2: wdma(s + NSLOT)
    if not PX & 4: p2_cs(s)
    if s + 2 < 32 and not PX & 1: p2_readB(s + 2)
    p2_mma(s, 1)
    if s + 2 < 32: p2_readA(s + 2)
    if s == 16:
        I(f"s_lshl_b32 s9, s{sTILE}, 6")
        I("v_lshl_add_u32 v10, v16, 3, s9")
        for q in range(4):
            I(f"buffer_load_dwordx2 {vr(24+2*q,2)}, v10, {srd(SB1)}, 0 offen offset:{16*q}")
    if s == 28:
        I("v_lshlrev_b32 v10, 2, v18"); I(f"v_add_u32 v10, {RSTD}, v10")
        for tt in range(2):
            I(f"ds_read_b32 v{20+2*tt}, v10 offset:{128*tt}"); I(f"ds_read_b32 v{64+2*tt}, v10 offset:{256 + 128*tt}")
stamp(4)
I(f"s_lshl_b32 s11, s{sW}, 7"); I(f"s_add_u32 s11, s11, {CSL}")
I("v_lshlrev_b32 v10, 6, v5"); I("v_lshl_add_u32 v10, v4, 4, v10"); I("v_add_u32 v10, s11, v10")
I("v_cmp_gt_u32 vcc, 2, v5")
I(f"s_and_saveexec_b64 s[26:27], vcc")
I(f"ds_write_b128 v10, {vr(CSA,4)}")
I("s_mov_b64 exec, s[26:27]")
I("v_lshl_add_u32 v10, v16, 4, s11")
CS = 72
for q in range(4): I(f"ds_read_b128 {vr(CS+4*q,4)}, v10 offset:{32*q}")
L_epf = newlabel("epffn"); L_epdone = newlabel("epdone")
I(f"s_cmp_ge_u32 s{sW}, 2")
I(f"s_cbranch_scc1 {L_epf}")
st_ep = a.save()
if OPT.get("qfirst", 1):
    QORDER = ("poll", "math")
else:
    QORDER = ("math", "poll")
def q_math():
    QS = 0.25 * math.log2(math.e)
    I(f"v_mul_f32 v20, {fbits(QS)}, v20"); I(f"v_mul_f32 v22, {fbits(QS)}, v22")
    I(f"s_lshl_b32 s9, s{sW}, 12"); I(f"s_add_u32 s9, s9, {QX}")
    I("v_add_u32 v59, s9, v2")
    for tt in range(2):
        rs = 20 + 2*tt; nm = 64 + 2*tt
        for p in range(8):
            r = ACC + 16*tt + 2*p
            I(f"v_pk_fma_f32 {vr(r,2)}, {vr(CS+2*p,2)}, {vr(nm,2)}, {vr(r,2)} op_sel_hi:[1,0,1]")
        for p in range(8):
            r = ACC + 16*tt + 2*p
            I(f"v_pk_mul_f32 {vr(r,2)}, {vr(r,2)}, {vr(rs,2)} op_sel_hi:[1,0]")
        for p in range(8):
            r = ACC + 16*tt + 2*p
            I(f"v_cvt_pk_bf16_f32 v{32+8*tt+p}, v{r}, v{r+1}")
        for x in range(2):
            I(f"ds_write_b128 v59, {vr(32+8*tt+4*x,4)} offset:{(tt*2+x)*1024}")
def q_poll():
    I("v_lshlrev_b32 v19, 5, v1")
    def all_flags():
        I(f"buffer_load_dwordx4 v[48:51], v19, {srd(SWS)}, 0 offen offset:{WS_KVFLAG - 16}".replace(f"offset:{WS_KVFLAG - 16}", "") .replace(", 0 offen", ", s21 offen") + "sc1")
        I(f"buffer_load_dwordx4 v[52:55], v19, {srd(SWS)}, s21 offen offset:16 sc1")
    def all_check():
        for r_ in (48, 50, 52, 54): I(f"v_xor_b32 v{r_}, s{sTAG}, v{r_}")
        I("v_or3_b32 v48, v48, v50, v52"); I("v_or_b32 v48, v48, v54"); I("v_cmp_ne_u32 vcc, 0, v48")
    I(f"s_mov_b32 s21, {WS_KVFLAG}")
    poll(all_flags, all_check, "pkv", sleep=OPT.get("kvsleep", 4))
    I(f"s_lshl_b32 s9, s{sW}, 15"); I(f"s_add_u32 s10, s9, {WS_V}"); I(f"s_add_u32 s9, s9, {WS_K}")
    I("v_add_u32 v56, 0x1000, v2")
    for i in range(8):
        I(f"buffer_load_dwordx4 {vr(KVS+4*i,4)}, {'v2' if i < 4 else 'v56'}, {srd(SWS)}, s9 offen offset:{(i%4)*1024} sc1")
        I(f"buffer_load_dwordx4 {vr(KVS+32+4*i,4)}, {'v2' if i < 4 else 'v56'}, {srd(SWS)}, s10 offen offset:{(i%4)*1024} sc1")
for o_ in QORDER: (q_math if o_ == "math" else q_poll)()
I("v_max3_f32 v61, v49, v51, v53"); I("v_max_f32 v61, v61, v55")
for ro in (8, 4, 2, 1):
    I(f"v_max_f32_dpp v60, v61, v61 row_ror:{ro} row_mask:0xf bank_mask:0xf"); I("v_mov_b32 v61, v60")
I("v_permlane16_swap_b32 v60, v61"); I("v_max_f32 v61, v60, v61"); I("v_mov_b32 v60, v61")
I("v_permlane32_swap_b32 v60, v61"); I("v_max_f32 v61, v60, v61")
CM = MISC + 2048
I(f"s_lshl_b32 s9, s{sW}, 10"); I(f"s_add_u32 s9, s9, {CM}"); I("v_lshl_add_u32 v60, v1, 2, s9")
for n_ in range(4):
    q = 32 + 4*n_; t = 48 + 2*n_
    I(f"v_dot2_f32_bf16 v{t}, v{q}, v{q}, 0")
    for i in range(1, 4): I(f"v_dot2_f32_bf16 v{t}, v{q+i}, v{q+i}, v{t}")
for n_ in range(4):
    t = 48 + 2*n_
    I(f"v_mov_b32 v{t+1}, v{t}"); I(f"v_permlane32_swap_b32 v{t}, v{t+1}"); I(f"v_add_f32 v{t}, v{t}, v{t+1}")
    I(f"v_mul_f32 v{t}, v{t}, v61"); I(f"v_sqrt_f32 v{t}, v{t}")
    I(f"ds_write_b32 v60, v{t} offset:{256*n_}")
I(f"s_lshl_b32 s11, s{sW}, 13"); I(f"s_add_u32 s11, s11, {W2R}"); I("v_add_u32 v56, s11, v2")
I(f"v_mul_u32_u24 v57, {VS}, v4"); I("v_lshl_add_u32 v57, v5, 4, v57"); I(f"v_add_u32 v57, s{sRING}, v57")
I(f"v_mul_u32_u24 v58, {VS}, v18"); I(f"v_add_u32 v58, s{sRING}, v58")
for i in range(4): I(f"v_mov_b32 v{64+i}, s{sONES}")
I("ds_write_b128 v58, v[64:67] offset:256")
for i in range(8):
    I(f"ds_write_b128 v56, {vr(KVS+4*i,4)} offset:{i*1024}")
    I(f"ds_write_b128 v57, {vr(KVS+32+4*i,4)} offset:{i*4*VS}")
I(f"s_branch {L_epdone}")
a.label(L_epf); a.restore(st_ep)
C0 = -2.0 * math.sqrt(2.0/math.pi) * math.log2(math.e)
C1 = C0 * 0.044715
I(f"s_mov_b32 s{sC1}, {fbits(C1)}"); I(f"s_mov_b32 s{sC1+1}, {fbits(C1)}")
B1 = 32
for q in range(4):
    for d in range(2):
        I(f"v_lshlrev_b32 v{B1+4*q+2*d}, 16, v{24+2*q+d}")
        I(f"v_and_b32 v{B1+4*q+2*d+1}, 0xffff0000, v{24+2*q+d}")
I(f"v_mov_b32 v48, {fbits(C0)}"); I(f"v_mov_b32 v49, {fbits(C0)}")
I(f"s_lshl_b32 s9, s{sTILE}, 12")
def gelu8(r, rs, nm, cs, b, outr):
    t = 52
    for p in range(4): I(f"v_pk_fma_f32 {vr(r+2*p,2)}, {vr(cs+2*p,2)}, {vr(nm,2)}, {vr(r+2*p,2)} op_sel_hi:[1,0,1]")
    for p in range(4): I(f"v_pk_fma_f32 {vr(r+2*p,2)}, {vr(r+2*p,2)}, {vr(rs,2)}, {vr(b+2*p,2)} op_sel_hi:[1,0,1]")
    for p in range(4): I(f"v_pk_mul_f32 {vr(t+2*p,2)}, {vr(r+2*p,2)}, {vr(r+2*p,2)}")
    for p in range(4): I(f"v_pk_fma_f32 {vr(t+2*p,2)}, {vr(t+2*p,2)}, s[{sC1}:{sC1+1}], v[48:49]")
    for p in range(4): I(f"v_pk_mul_f32 {vr(t+2*p,2)}, {vr(t+2*p,2)}, {vr(r+2*p,2)}")
    for i in range(8): I(f"v_exp_f32 v{t+i}, v{t+i}")
    for p in range(4): I(f"v_pk_add_f32 {vr(t+2*p,2)}, {vr(t+2*p,2)}, 1.0 op_sel_hi:[1,0]")
    for i in range(8): I(f"v_rcp_f32 v{t+i}, v{t+i}")
    for p in range(4): I(f"v_pk_mul_f32 {vr(t+2*p,2)}, {vr(t+2*p,2)}, {vr(r+2*p,2)}")
    for p in range(4): I(f"v_cvt_pk_bf16_f32 v{outr+p}, v{t+2*p}, v{t+2*p+1}")
def gelu8s(r, rs, nm, cs, b, outr):
    t = 52
    for i in range(8): I(f"v_fmac_f32 v{r+i}, v{cs+i}, v{nm}")
    for i in range(8): I(f"v_fma_f32 v{r+i}, v{r+i}, v{rs}, v{b+i}")
    for i in range(8): I(f"v_mul_f32 v{t+i}, v{r+i}, v{r+i}")
    for i in range(8): I(f"v_fma_f32 v{t+i}, v{t+i}, s{sC1}, v48")
    for i in range(8): I(f"v_mul_f32 v{t+i}, v{t+i}, v{r+i}")
    for i in range(8): I(f"v_exp_f32 v{t+i}, v{t+i}")
    for i in range(8): I(f"v_add_f32 v{t+i}, 1.0, v{t+i}")
    for i in range(8): I(f"v_rcp_f32 v{t+i}, v{t+i}")
    for i in range(8): I(f"v_mul_f32 v{t+i}, v{t+i}, v{r+i}")
    for p in range(4): I(f"v_cvt_pk_bf16_f32 v{outr+p}, v{t+2*p}, v{t+2*p+1}")
def gelu_all(fn):
    for tt in range(2):
        for u in range(2):
            o_ = 128 + 4*(2*tt+u)
            fn(ACC+16*tt+8*u, 20+2*tt, 64+2*tt, CS+8*u, B1+8*u, o_)
            I(f"buffer_store_dwordx4 {vr(o_,4)}, v2, {srd(SH)}, s9 offen offset:{u*2048 + tt*1024} sc1", tag="hst")
GM = OPT.get("gelu", 0)
if GM == 0: gelu_all(gelu8)
elif GM == 1: gelu_all(gelu8s)
else:
    L_gy = newlabel("gy")
    I(f"s_cmp_ge_u32 s{sW}, 4"); I(f"s_cbranch_scc1 {L_gy}")
    st = a.save()
    gelu_all(gelu8s); I(f"s_branch {L_epdone}")
    a.label(L_gy); a.restore(st)
    gelu_all(gelu8)
a.label(L_epdone); a.flush_state(2); a.lg = []
a.label(L_skip2)
I(f"s_add_u32 s{sR}, s{sC}, s{sG}"); I(f"s_and_b32 s{sR}, s{sR}, 7"); I(f"s_xor_b32 s{sR}, s{sR}, s{sW}")
I(f"s_lshl_b32 s9, s{sR}, 10"); I(f"s_add_u32 s23, s9, {WS_V + 8192}"); I(f"s_add_u32 s22, s9, {WS_K + 8192}")
I("v_add_u32 v191, 0x8000, v2")
stamp(6)

vSK, vSV = 184, 186
I(f"s_lshl_b32 s11, s{sR}, 10"); I(f"v_add_u32 v{vSK}, s11, v2"); I(f"v_add_u32 v{vSK+1}, 0x8000, v{vSK}")
I(f"s_mul_i32 s11, s{sR}, {4*VS}"); I(f"s_add_u32 s11, s11, {VL}")
I(f"v_mul_u32_u24 v25, {VS}, v4"); I("v_lshl_add_u32 v25, v5, 4, v25"); I(f"v_add_u32 v{vSV}, s11, v25"); I(f"v_add_u32 v{vSV+1}, 8704, v{vSV}")
def kv_stage(i, which):
    if which == 0: return f"ds_write_b128 v{vSK + i % 2}, {vr(KVS+8*i,4)} offset:{(i//2)*8192}"
    return f"ds_write_b128 v{vSV + i % 2}, {vr(KVS+8*i+4,4)} offset:{(i//2)*VW}"
I(f"s_mul_i32 s11, s{sW}, {16*VS}"); I(f"s_add_u32 s11, s11, {VL + VW}")
I(f"v_mul_u32_u24 v183, {VS}, v5"); I("v_add_u32 v183, s11, v183")
for i in range(4): I(f"v_mov_b32 v{176+i}, s{sONES}")
QA, QB, KF, V1, V2 = 4, 8, 12, 16, 20
CA, CB, SA, SB, OA, OB = 32, 48, 64, 80, 96, 112
ACC2, A2, B2, XRES, BB2 = 192, 128, 136, 160, 164
vKA, vVA, vTR, vKE = 24, 25, 26, 29
vLP, vHH, vJJ = 188, 189, 190
I(f"v_mov_b32 v{vLP}, v17"); I(f"v_mov_b32 v{vHH}, v16"); I(f"v_mov_b32 v{vJJ}, v18")
I(f"s_and_b32 s11, s{sW}, 3"); I("s_lshl_b32 s9, s11, 11"); I(f"s_add_u32 s9, s9, {QX}"); I("v_add_u32 v165, s9, v2")
I("s_lshl_b32 s9, s11, 9"); I(f"s_add_u32 s9, s9, {MISC + 2048}"); I("v_lshl_add_u32 v166, v1, 2, s9")
I(f"s_lshl_b32 s11, s{sKH}, 15"); I(f"v_add_u32 v{vKA}, s11, v2")
I(f"s_lshl_b32 s11, s{sKH}, 13"); I(f"s_add_u32 s11, s11, {W2R}"); I(f"v_add_u32 v{vKE}, s11, v2")
I(f"s_mul_i32 s11, s{sKH}, 8704"); I(f"s_add_u32 s11, s11, {VL}")
I(f"v_min_u32 v{vVA}, 16, v18"); I(f"v_lshlrev_b32 v{vVA}, 4, v{vVA}")
I(f"v_mul_u32_u24 v167, {VS}, v16"); I(f"v_add3_u32 v{vVA}, v{vVA}, v167, s11")
if OPT.get("zrows", 1):
    I("v_and_b32 v167, 27, v18"); I("v_cmp_lt_u32 s[20:21], 16, v167")
    I("v_mov_b32 v167, 0x80000"); I(f"v_cndmask_b32 v{vVA}, v{vVA}, v167, s[20:21]")
def rdK(t): return f"ds_read_b128 {vr(KF,4)}, v{vKE if t < 8 else vKA} offset:{t*1024}"
def rdV(reg, u):
    t = u // 2
    return f"ds_read_b128 {vr(reg,4)}, v{vVA} offset:{(3 if t < 8 else t // 8)*VW + (t % 8)*4*VS + (u % 2)*2*VS}"
a.barrier()
I("ds_read_b32 v180, v166"); I("ds_read_b32 v182, v166 offset:256")
I(f"ds_read_b128 {vr(QA,4)}, v165"); I(rdK(0)); I(f"ds_read_b128 {vr(QB,4)}, v165 offset:1024")
I(f"ds_write_b128 v183, v[176:179] offset:256")
for i in range(16): I(f"v_sub_f32 v{CA+i}, 0, v180")
I("v_max_f32 v181, v180, v182")
I(f"v_cmp_nge_f32 vcc, {fbits(50.0)}, v181")
for i in range(16): I(f"v_sub_f32 v{CB+i}, 0, v182")
def publish_h():
    L = newlabel("nohf"); L2 = newlabel("noep")
    a.force_wait(vm=0)
    vm_keep = []
    I(f"v_mov_b32 v171, s{sTAG}")
    I("s_mov_b64 exec, 1")
    I(f"s_cmp_lt_u32 s{sW}, 2"); I(f"s_cbranch_scc1 {L}")
    I(f"s_lshl_b32 s9, s{sG}, 8"); I(f"s_lshl_b32 s10, s{sTILE}, 2"); I("s_add_u32 s9, s9, s10"); I(f"s_add_u32 s9, s9, {WS_HFLAG}")
    I(f"buffer_store_dword v171, off, {srd(SWS)}, s9 sc1")
    a.label(L)
    I("s_or_b32 s11, s2, s%d" % sW); I("s_cmp_lg_u32 s11, 0"); I(f"s_cbranch_scc1 {L2}")
    I(f"buffer_store_dword v171, off, {srd(SWS)}, 0 offset:{WS_EPOCH} sc1")
    a.label(L2)
    I("s_mov_b64 exec, -1")
    a.vm = vm_keep
L_fast = newlabel("fast"); L_slow = newlabel("slowloop")
I(f"s_cbranch_vccz {L_fast}")
st_f = a.save()
I(f"v_mov_b32 v176, {fbits(-3.0e38)}"); I(f"v_mov_b32 v178, {fbits(-3.0e38)}")
I(f"s_mov_b32 s10, {WS_K}"); I("s_mov_b32 s11, 64")
a.label(L_slow); a.flush_state(16)
I(f"buffer_load_dwordx4 {vr(V1,4)}, v2, {srd(SWS)}, s10 offen sc1")
a.force_wait(vm=0)
I(f"v_mfma_f32_32x32x16_bf16 {vr(SA,16)}, {vr(V1,4)}, {vr(QA,4)}, 0")
I(f"v_mfma_f32_32x32x16_bf16 {vr(SB,16)}, {vr(V1,4)}, {vr(QB,4)}, 0")
I("s_add_u32 s10, s10, 1024")
for (S_, t) in ((SA, 176), (SB, 178)):
    for i in range(8): I(f"v_max3_f32 v{t}, v{t}, v{S_+2*i}, v{S_+2*i+1}")
I("s_sub_u32 s11, s11, 1"); I("s_cmp_lg_u32 s11, 0"); I(f"s_cbranch_scc1 {L_slow}")
for t in (176, 178):
    I(f"v_mov_b32 v{t+1}, v{t}"); I(f"v_permlane32_swap_b32 v{t}, v{t+1}"); I(f"v_max_f32 v{t}, v{t}, v{t+1}")
for i in range(16):
    I(f"v_sub_f32 v{CA+i}, 0, v176"); I(f"v_sub_f32 v{CB+i}, 0, v178")
I("s_nop 15")
a.label(L_fast); a.restore(st_f)
stamp(7)

def mm(d, x, y, c):
    cs = "0" if c is None else vr(c, 16)
    return f"v_mfma_f32_32x32x16_bf16 {vr(d,16)}, {vr(x,4)}, {vr(y,4)}, {cs}"
def blk(S_, h):
    b = S_ + 8*h
    return [f"v_exp_f32 v{b+i}, v{b+i}" for i in range(8)] + [f"v_cvt_pk_bf16_f32 v{b+i}, v{b+2*i}, v{b+2*i+1}" for i in range(4)]
I(rdV(V1, 0))
I(mm(SA, KF, QA, CA))

vWD, vOUT, vTR2, vT = 30, 31, 27, 28
sW2OFF, sHOFF, sWOM, sWOOFF, sRB = sT1, sT2, sKSTR, sOFF, 21
sKQ = sNT2
WOREG = [8192, 32768 + 8192, VL + VW, VL + VW + 16384]
sRA2 = 38; vTR3 = 181
NK2 = 22
def sel4(dst, idx, tab):
    I(f"s_mov_b32 s{dst}, {tab[0]}")
    for k_ in range(1, 4):
        I(f"s_cmp_eq_u32 s{idx}, {k_}"); I(f"s_cselect_b32 s{dst}, {tab[k_]}, s{dst}")
def setup1():
    I(f"s_lshr_b32 s{sKQ}, s{sW}, 1")
    I(f"s_lshl_b32 s11, s{sW}, 11"); I(f"s_add_u32 s{sT0}, s11, {W2R}"); I(f"s_add_u32 s{sRB}, s11, {VL}")
    I(f"s_and_b32 s9, s{sW}, 3"); I("s_lshl_b32 s9, s9, 11"); I(f"s_lshl_b32 s10, s{sKH}, 15"); I(f"s_add_u32 s{sRA2}, s9, s10")
    I(f"v_lshl_add_u32 v{vT}, v{vHH}, 8, v{vLP}"); I(f"v_add_u32 v{vTR}, s{sRA2}, v{vT}"); I(f"v_add_u32 v{vTR2}, s{sRB}, v{vT}"); I(f"v_add_u32 v{vTR3}, s{sT0}, v{vT}")
    I(f"v_lshrrev_b32 v{vWD}, 2, v{vJJ}"); I(f"v_lshlrev_b32 v{vWD}, 10, v{vWD}")
    I(f"v_lshl_add_u32 v{vWD}, v{vHH}, 6, v{vWD}"); I(f"v_and_b32 v{vT}, 3, v1"); I(f"v_lshl_add_u32 v{vWD}, v{vT}, 4, v{vWD}")
    I(f"s_lshl_b32 s11, s{sC}, 7"); I(f"v_add_u32 v{vWD}, s11, v{vWD}")
    mk_srd(SW2, 32, 33, 1376*1024)
    I(f"s_mul_i32 s{sW2OFF}, s{sKQ}, {NK2*16384}"); I(f"s_mul_i32 s{sHOFF}, s{sKQ}, {NK2*2048}")
    I(f"s_lshl_b32 s9, s{sTT}, 10"); I(f"s_add_u32 s{sHOFF}, s{sHOFF}, s9")
    I(f"v_lshlrev_b32 v{vT}, 10, v1"); I(f"v_add_u32 v{vT}, s11, v{vT}")
    I(f"s_mul_i32 s9, s{sTT}, {176*1024}"); I(f"s_add_u32 s9, s9, s{sW2OFF}")
    for i in range(3 if OPT.get("touchw", 0) else 0):
        I(f"buffer_load_dword v{172+i}, v{vT}, {srd(SW2)}, s9 offen")
        if i < 2: I("s_add_u32 s9, s9, 65536")
def setup2():
    mk_srd(SWO, 24, 25, 512*1024)
    I(f"s_lshl_b32 s{sWOOFF}, s{sW}, 16")
    if OPT.get("touchw", 0): I(f"buffer_load_dword v175, v{vT}, {srd(SWO)}, s{sWOOFF} offen")
    sel4(sWOM, sKQ, WOREG)
    I(f"s_lshl_b32 s9, s{sTT}, 13"); I(f"s_add_u32 s{sWOM}, s{sWOM}, s9")
def setup3():
    mk_srd(SB2, 34, 35, 1024)
    mk_srd(SOUT, 36, 37, 2048*1024)
    I(f"s_lshl_b32 s11, s{sC}, 7"); I(f"s_lshl_b32 s9, s{sKQ}, 5"); I("s_add_u32 s11, s11, s9")
    I(f"v_lshl_add_u32 v{vT}, v{vHH}, 4, s11")
    I(f"buffer_load_dwordx4 {vr(BB2,4)}, v{vT}, {srd(SB2)}, 0 offen")
    I(f"s_lshl_b32 s9, s{sG}, 6"); I(f"s_lshl_b32 s10, s{sTT}, 5"); I("s_add_u32 s9, s9, s10")
    I(f"v_add_u32 v{vOUT}, s9, v{vJJ}"); I(f"v_lshl_add_u32 v{vOUT}, v{vOUT}, 10, v{vT}")
    I(f"buffer_load_dwordx4 {vr(XRES,4)}, v{vOUT}, {srd(SX)}, 0 offen")
    if OPT.get("touchout", 0):
        I(f"s_lshl_b32 s9, s{sG}, 16"); I(f"buffer_load_dword v174, off, {srd(SOUT)}, s9")
def slot_base(n): return ((f"s{sRA2}", f"s{sRB}", f"s{sT0}")[n % 3], 0)
def w2_dma(n, hf):
    b, o = slot_base(n)
    return [("I", f"s_add_u32 m0, {b}, {o + hf*1024}"),
            ("I", f"s_add_u32 s{sW2OFF}, s{sW2OFF}, 8192") if (n, hf) != (0, 0) else ("I", "s_nop 0"),
            ("I", f"buffer_load_dwordx4 v{vWD}, {srd(SW2)}, s{sW2OFF} offen lds", f"w2_{n}")]
NB2 = 4
def h_load(n):
    b = B2 + 4*(n % NB2)
    L = [("I", f"buffer_load_dwordx4 {vr(b,4)}, v2, {srd(SH)}, s{sHOFF} offen offset:{(n % 2)*2048} sc1")]
    if n % 2: L.append(("I", f"s_add_u32 s{sHOFF}, s{sHOFF}, 4096"))
    return L
A2 = 128; B2 = 144
def w2_tr(n, nt):
    ab = A2 + 8*(n % 2) + 4*nt
    ad = (vTR, vTR2, vTR3)[n % 3]
    o = slot_base(n)[1] + nt*512
    return [("WV", f"w2_{n}"),
            ("I", f"ds_read_b64_tr_b16 {vr(ab,2)}, v{ad} offset:{o}", f"tr_{n}"),
            ("I", f"ds_read_b64_tr_b16 {vr(ab+2,2)}, v{ad} offset:{o+1024}", f"tr_{n}")]
def f2_mm(n, nt):
    d = ACC2 + 16*nt
    return [("I", mm(d, A2+8*(n % 2)+4*nt, B2+4*(n % NB2), None if n == 0 else d))]
def hpoll():
    I(f"s_mul_i32 s9, s{sKQ}, 11")
    I(f"v_min_u32 v{vT}, 10, v1"); I(f"v_add_u32 v{vT}, s9, v{vT}"); I(f"v_min_u32 v{vT}, 42, v{vT}"); I(f"v_lshlrev_b32 v{vT}, 2, v{vT}")
    I(f"s_lshl_b32 s27, s{sG}, 8"); I(f"s_add_u32 s27, s27, {WS_HFLAG}")
    I(f"buffer_load_dword v171, v{vT}, {srd(SWS)}, s27 offen sc1")
def hcheck():
    L = newlabel("hok")
    I(f"v_cmp_ne_u32 vcc, s{sTAG}, v171")
    I("s_nop 4")
    I(f"s_cbranch_vccz {L}")
    st = a.save()
    poll(lambda: I(f"buffer_load_dword v171, v{vT}, {srd(SWS)}, s27 offen sc1"),
         lambda: I(f"v_cmp_ne_u32 vcc, s{sTAG}, v171"), "ph")
    a.label(L); a.restore(st)
def wo_dma(i):
    return [("I", f"s_add_u32 m0, s{sWOM}, {i*1024}"),
            ("I", f"s_add_u32 s{sWOOFF}, s{sWOOFF}, 8192") if i else ("I", "s_nop 0"),
            ("I", f"buffer_load_dwordx4 v{vWD}, {srd(SWO)}, s{sWOOFF} offen lds", "wo")]
NSTEP = 32
extra = {t: {} for t in range(NSTEP + 1)}
def add(t, pos, L): extra[t].setdefault(pos, []).extend(L)
add(0, 3, [("F", publish_h)])
add(1, 20, [("F", setup1)])
add(1, 44, [("F", setup2)])
add(2, 44, [("F", setup3)])
for n_ in range(12):
    add(n_ // 4, (4, 16, 27, 40)[n_ % 4], [("F", (lambda n_=n_: kv_load(2 + n_ // 2, n_ % 2)))])
    if n_ < 8: add(3 + n_ // 2, (10, 45)[n_ % 2], [("I", kv_stage(2 + n_ // 2, n_ % 2))])
    else: add(8 + (n_ - 8) // 2, (10, 40)[n_ % 2], [("I", kv_stage(2 + n_ // 2, n_ % 2))])
T0 = 8
add(4, 30, [("F", hpoll)])
add(5, 6, w2_dma(0, 0)); add(5, 30, w2_dma(0, 1))
add(6, 6, [("F", hcheck)])
add(6, 7, h_load(0)); add(6, 30, h_load(1)); add(7, 6, h_load(2))
add(7, 21, w2_tr(0, 0)); add(7, 40, w2_tr(0, 1))
add(7, 10, w2_dma(1, 0)); add(7, 16, w2_dma(1, 1)); add(7, 27, w2_dma(2, 0)); add(7, 34, w2_dma(2, 1))
for n in range(NK2):
    t = T0 + n
    add(t, 20, f2_mm(n, 0))
    if n + 1 < NK2: add(t, 34, w2_tr(n+1, 0))
    add(t, 44, f2_mm(n, 1))
    if n + 1 < NK2: add(t, 45, w2_tr(n+1, 1))
    if n + 3 < NK2:
        add(t, 46, h_load(n+3))
        add(t, 27, [("WL", f"tr_{n}")] + w2_dma(n+3, 0)); add(t+1, 3, w2_dma(n+3, 1))
if OPT.get("nof2", 0):
    for t in range(6, NSTEP): extra[t] = {}
if OPT.get("astamps", 0):
    for k_, t in enumerate((1, 2, 3, 4, 5, 6, 7, 8) if OPT.get("astamps") == 2 else (2, 5, 8, 12, 16, 20, 24, 28)): add(t, 0, [("F", (lambda k_=k_: stamp(k_)))])
PW = 2
PRIO = OPT.get("prio", 1)
if PRIO == 1:
    for t in range(0, NSTEP, PW): add(t, 1, [("I", f"s_setprio {3 - (t // PW) % 4}")])
elif PRIO == 2:
    for t, p_ in ((0,3),(2,2),(4,1),(6,0),(8,3),(12,2),(16,1),(20,0),(24,3),(26,2),(28,1),(30,0)): add(t, 1, [("I", f"s_setprio {p_}")])
elif PRIO == 3:
    def yp():
        L = newlabel("yp"); I(f"s_cmp_lt_u32 s{sW}, 4"); I(f"s_cbranch_scc1 {L}"); I("s_setprio 1"); a.label(L)
    add(0, 1, [("F", yp)])
for t in ((7, 15, 23) if OPT.get("bar15", 1) else (7, 23)): add(t, 8, [("B",)])
for i in range(8): add(23 + (i+1)//2, 30 if i % 2 == 0 else 10, wo_dma(i))

def emit(L):
    for e in L:
        if e[0] == "I": I(e[1], tag=e[2] if len(e) > 2 else None)
        elif e[0] == "WV": a.wait_vm_tag(e[1])
        elif e[0] == "WL": a.wait_lg_tag(e[1])
        elif e[0] == "F": e[1]()
        elif e[0] == "B": a.barrier()
P4FLAG[0] = True
for t in range(NSTEP):
    valu = blk(SA, 0) + blk(SA, 1) + blk(SB, 0) + blk(SB, 1)
    ins = {}
    ins[2] = ([("I", mm(OB, V2, SB+8, OB))] if t > 0 else []) + [("I", rdV(V2, 2*t+1))]
    ins[9] = [("I", mm(SB, KF, QB, CB))] + ([("I", rdK(t+1))] if t+1 < NSTEP else [])
    ins[15] = [("I", mm(OA, V1, SA, OA if t > 0 else None))]
    ins[26] = [("I", mm(OA, V2, SA+8, OA))]
    ins[33] = [("I", mm(SA, KF, QA, CA))] if t+1 < NSTEP else []
    ins[39] = [("I", mm(OB, V1, SB, OB if t > 0 else None))] + ([("I", rdV(V1, 2*t+2))] if t+1 < NSTEP else [])
    for p_, L in extra[t].items():
        ins.setdefault(p_, []); ins[p_] = ins[p_] + L
    for i, v in enumerate(valu):
        if i in ins: emit(ins[i])
        I(v)
I(mm(OB, V2, SB+8, OB))
I("s_setprio 0")

L_k1 = newlabel("k1"); L_kj = newlabel("kj")
I(f"v_add_u32 v24, s{sT0}, v2")
I(f"s_xor_b32 s9, s{sW}, 4"); I("s_lshl_b32 s10, s9, 11"); I(f"s_add_u32 s10, s10, {W2R}"); I("v_add_u32 v25, s10, v2")
I(f"s_lshl_b32 s9, s9, 8"); I(f"s_add_u32 s9, s9, {QX}"); I("v_lshl_add_u32 v29, v1, 2, s9")
I(f"s_lshl_b32 s9, s{sW}, 8"); I(f"s_add_u32 s9, s9, {QX}"); I("v_lshl_add_u32 v28, v1, 2, s9")
a.wait_vm_tag("wo")
stamp(8)
I(f"s_cmp_lg_u32 s{sKH}, 0"); I(f"s_cbranch_scc1 {L_k1}")
hs = a.save()
for q in range(2): I(f"ds_write_b128 v24, {vr(OB+4*q,4)} offset:{q*1024}")
I(f"ds_write_b32 v28, v{OB+8}")
I(f"s_branch {L_kj}")
a.label(L_k1); a.restore(hs)
for q in range(2): I(f"ds_write_b128 v24, {vr(OA+4*q,4)} offset:{q*1024}")
I(f"ds_write_b32 v28, v{OA+8}")
for i in range(9): I(f"v_mov_b32 v{OA+i}, v{OB+i}")
a.label(L_kj); a.flush_state(2)
a.barrier()
for q in range(2): I(f"ds_read_b128 {vr(OB+4*q,4)}, v25 offset:{q*1024}")
I(f"ds_read_b32 v{OB+8}, v29")
WOF = 32
sel4(9, sKQ, WOREG)
I(f"v_lshl_add_u32 v26, v{vHH}, 8, v{vLP}"); I("v_add_u32 v26, s9, v26")
for i in range(9): I(f"v_add_f32 v{OA+i}, v{OA+i}, v{OB+i}")
I(f"v_rcp_f32 v{OA+8}, v{OA+8}")
for p in range(4): I(f"v_pk_mul_f32 {vr(OA+2*p,2)}, {vr(OA+2*p,2)}, {vr(OA+8,2)} op_sel_hi:[1,0]")
for p in range(4): I(f"v_cvt_pk_bf16_f32 v{OB+p}, v{OA+2*p}, v{OA+2*p+1}")
I(f"buffer_store_dwordx4 {vr(OB,4)}, v2, {srd(SO)}, s{sOSLOT} offen sc1")
stamp(9)
for hd in range(8):
    for nt in range(2):
        I(f"ds_read_b64_tr_b16 {vr(WOF+8*hd+4*nt,2)}, v26 offset:{hd*2048 + nt*512}")
        I(f"ds_read_b64_tr_b16 {vr(WOF+8*hd+4*nt+2,2)}, v26 offset:{hd*2048 + nt*512 + 1024}")
XB = 240
for d in range(4):
    I(f"v_lshlrev_b32 v{XB+2*d}, 16, v{XRES+d}"); I(f"v_and_b32 v{XB+1+2*d}, 0xffff0000, v{XRES+d}")
    I(f"v_lshlrev_b32 v{XB+8+2*d}, 16, v{BB2+d}"); I(f"v_and_b32 v{XB+9+2*d}, 0xffff0000, v{BB2+d}")
for p in range(4): I(f"v_pk_add_f32 {vr(XB+2*p,2)}, {vr(XB+2*p,2)}, {vr(XB+8+2*p,2)}")
AREA = [24576, VE, None]
def area_addr(dst, j, wreg):
    I(f"s_lshl_b32 s10, {wreg}, 11")
    if j < 2: I(f"s_add_u32 s10, s10, {AREA[j]}")
    else:
        I(f"s_cmp_ge_u32 {wreg}, 4"); I("s_cselect_b32 s11, 49152, 0"); I("s_add_u32 s10, s10, s11")
    I(f"v_add_u32 v{dst}, s10, v2")
for dl in range(1, 4):
    I(f"s_add_u32 s9, s{sW}, {2*dl}"); I("s_and_b32 s9, s9, 7"); area_addr(12 + dl, dl - 1, "s9")
    area_addr(16 + dl, dl - 1, f"s{sW}")
OF = 96
I(f"s_lshl_b32 s26, s{sKQ}, 14"); I(f"s_lshl_b32 s10, s{sTT}, 10"); I("s_add_u32 s26, s26, s10")
for k_ in range(1, 4): I(f"v_add_u32 v{3+k_}, {k_*4096}, v2")
def oload():
    for hd in range(8):
        ad = "v2" if hd < 2 else f"v{3 + hd//2}"
        I(f"buffer_load_dwordx4 {vr(OF+4*hd,4)}, {ad}, {srd(SO)}, s26 offen offset:{(hd%2)*2048} sc1")
stamp(10)
L_orep = newlabel("orep"); L_ook = newlabel("ook")
FB = 128
I(f"s_mov_b32 s{sCNT}, 0x4000")
a.label(L_orep); a.vm = []
oload()
for hd in range(8):
    o_ = OF + 4*hd
    for nt in range(2):
        I(mm(FB+16*nt, WOF+8*hd+4*nt, o_, ACC2+16*nt if hd == 0 else FB+16*nt))
    if hd == 0:
        I(f"v_max3_u32 v8, v{o_}, v{o_+1}, v{o_+2}"); I(f"v_mov_b32 v9, v{o_+3}")
    else:
        I(f"v_max3_u32 v8, v8, v{o_}, v{o_+1}"); I(f"v_max3_u32 v9, v9, v{o_+2}, v{o_+3}")
I("v_max_u32 v8, v8, v9")
I("v_cmp_eq_u32 vcc, -1, v8")
I("s_nop 4")
I(f"s_cbranch_vccz {L_ook}")
I("s_nop 15")
I(f"s_sub_u32 s{sCNT}, s{sCNT}, 1"); I(f"s_cmp_lg_u32 s{sCNT}, 0"); I(f"s_cbranch_scc1 {L_orep}")
a.label(L_ook)
stamp(11)
FA = 160
L_j = newlabel("rsj"); Ls = [newlabel(f"rs{k_}") for k_ in range(4)]
for k_ in range(1, 4):
    I(f"s_cmp_eq_u32 s{sKQ}, {k_}"); I(f"s_cbranch_scc1 {Ls[k_]}")
hs = a.save()
for k_ in range(4):
    a.label(Ls[k_]); a.restore(hs)
    for dl in range(1, 4):
        ch = (k_ + dl) % 4
        for q in range(2): I(f"ds_write_b128 v{12+dl}, {vr(FB+8*ch+4*q,4)} offset:{q*1024}")
    for p in range(4): I(f"v_pk_mov_b32 {vr(FA+2*p,2)}, {vr(FB+8*k_+2*p,2)}, {vr(FB+8*k_+2*p,2)} op_sel:[0,1]")
    if k_ < 3: I(f"s_branch {L_j}")
a.label(L_j); a.flush_state(2)
a.barrier()
for dl in range(1, 4):
    for q in range(2): I(f"ds_read_b128 {vr(32+8*(dl-1)+4*q,4)}, v{16+dl} offset:{q*1024}")
for p in range(4): I(f"v_pk_add_f32 {vr(FA+2*p,2)}, {vr(FA+2*p,2)}, {vr(32+2*p,2)}")
for p in range(4): I(f"v_pk_add_f32 {vr(40+2*p,2)}, {vr(40+2*p,2)}, {vr(48+2*p,2)}")
for p in range(4): I(f"v_pk_add_f32 {vr(FA+2*p,2)}, {vr(FA+2*p,2)}, {vr(40+2*p,2)}")
for i in range(4): I(f"v_permlane32_swap_b32 v{FA+i}, v{FA+4+i}")
for p in range(4): I(f"v_pk_add_f32 {vr(FA+2*p,2)}, {vr(FA+2*p,2)}, {vr(XB+2*p,2)}")
for p in range(4): I(f"v_cvt_pk_bf16_f32 v{56+p}, v{FA+2*p}, v{FA+2*p+1}")
I(f"buffer_store_dwordx4 v[56:59], v{vOUT}, {srd(SOUT)}, 0 offen " + ["", "sc1", "sc0 sc1", "nt", "sc1 nt"][OPT.get("ost", 0)])
stamp(12)
if OPT["stamps"] or OPT.get("dbg", 0): a.waitcnt(vm=0)
stamp(13)
a.raw("L_end:")
a.raw("    s_endpgm")
a.raw("L_codeend:")
if OPT.get("cpf", 0): a.raw(".set CODE_SPAN, L_codeend - L_pcbase")

ref = open(f"cdna_kernels/{NAME}.s.ref").read()
head = ref[:ref.index("; Override launch geometry")]
out = head + f"""; Written with my own generator script (gen/gen.py).  One workgroup of 8 waves per CU, 256 workgroups, one launch.
;  Workgroup (g, c): token tile g (64 tokens), member c (4 heads / ~5.4 FFN feature tiles / 64 output columns).
;  P0  raw x rows + row statistics -> LDS.  LayerNorm is folded into the epilogues: xn@W = rstd*(x@W - mean*colsum(W)).
;  P2  K/V projection of 16 tokens (published through d_ws), Q tiles, FFN1 + GELU (H published through d_ws).
;  P4  attention S^T = K Q^T - m (MFMA C operand), exp2, O^T += V^T P^T (a ones row of V^T gives the row sums);
;      FFN2 is interleaved.  m is the Cauchy-Schwarz bound |q|*max|k| >= row max; it is used only when a run-time check
;      shows m <= 50 (log2 units, so no exp2 argument leaves [-100, 0]); otherwise the true row max is computed first.
;  P5  O exchanged through d_ws, output projection on top of the FFN2 accumulators, + x + b2.
;  Hand-offs: write-through (sc1) stores, drained before the flag; flags carry a per-launch tag derived from an epoch word
;  in d_ws; every spin is bounded.
; @launch grid=(256,1,1) block=(512,1,1) lds={LDS_BYTES}
.amdgcn_target "amdgcn-amd-amdhsa--gfx950"
.text
.globl {NAME}_kernel
.p2align 8
.type {NAME}_kernel,@function
{NAME}_kernel:
""" + a.text() + f""".section .rodata,"a"
.p2align 6
.amdhsa_kernel {NAME}_kernel
  .amdhsa_next_free_vgpr 256
  .amdhsa_next_free_sgpr 102
  .amdhsa_accum_offset 256
  .amdhsa_group_segment_fixed_size 0
  .amdhsa_kernarg_size 104
  .amdhsa_user_sgpr_count 2
  .amdhsa_user_sgpr_kernarg_segment_ptr 1
  .amdhsa_system_sgpr_workgroup_id_x 1
.end_amdhsa_kernel
"""
path = OPT_OUT if (OPT_OUT := next((x for x in sys.argv[1:] if x.endswith(".s")), None)) else f"cdna_kernels/{NAME}.s"
open(path, "w").write(out)
print("wrote", path, "lines", len(a.out), "nops", a.nops)
```
